```python
import torch

def _softmax(x, axis=-1):
    return torch.softmax(x, dim=axis)

def _gelu(x):
    return torch.nn.functional.gelu(x, approximate='tanh')

def _silu(x):
    return torch.nn.functional.silu(x)

def _sigmoid(x):
    return torch.sigmoid(x)

def _layernorm(x, axis=-1, eps=1e-05):
    m = x.mean(dim=axis, keepdim=True)
    v = x.var(dim=axis, keepdim=True, unbiased=False)
    return (x - m) / torch.sqrt(v + eps)

def _scatter_add(tgt, idx, src, axis=0):
    return tgt.clone().index_add_(axis, idx, src)

def _segment_sum(src, seg, n):
    out = torch.zeros((n,) + src.shape[1:], dtype=src.dtype)
    return out.index_add_(0, seg, src)

def _pad(x, pw):
    flat = tuple((v for pair in reversed(pw) for v in pair))
    return torch.nn.functional.pad(x, flat)
kernel_name = 'adaLN_cond__gqa_block_cached__dense_activation_silu__decode'

def setup_inputs():

    _w = lambda a: (lambda t: t.to(torch.bfloat16) if t.is_floating_point() else t)(torch.as_tensor(a))

    def _A_setup():
        B, Sq, D = (1, 1, 576)
        Hq, Hkv, Sk, Dh = (32, 16, 8192, 128)
        assert Hq % Hkv == 0, (Hq, Hkv)
        return {'x': _w((lambda *s: torch.randn(*s, dtype=torch.bfloat16) * 0.1)(B, Sq, D)), 'k_cache': _w((lambda *s: torch.randn(*s, dtype=torch.bfloat16) * 1.6)(B, Hkv, Sk, Dh)), 'v_cache': _w((lambda *s: torch.randn(*s, dtype=torch.bfloat16) * 3.2)(B, Hkv, Sk, Dh)), 'wq': _w((lambda *s: torch.randn(*s, dtype=torch.bfloat16) * 1.6)(D, Hq * Dh) * D ** (-0.5)), 'wo': _w((lambda *s: torch.randn(*s, dtype=torch.bfloat16) * 3.2)(Hq * Dh, D) * (Hq * Dh) ** (-0.5))}
    _A_in = _A_setup()

    def _B_setup():
        B, S, D, F = (1, 1, 576, 4608)
        return {'x': _w((lambda *s: torch.randn(*s, dtype=torch.bfloat16) * 0.1)(B, S, D)), 'w1': _w((lambda *s: torch.randn(*s, dtype=torch.bfloat16) * 3.2)(D, F) * D ** (-0.5)), 'w2': _w((lambda *s: torch.randn(*s, dtype=torch.bfloat16) * 3.2)(F, D) * F ** (-0.5))}
    _B_in = _B_setup()
    return {'A_x': _A_in['x'], 'A_k_cache': _A_in['k_cache'], 'A_v_cache': _A_in['v_cache'], 'A_wq': _A_in['wq'], 'A_wo': _A_in['wo'], 'B_x': _B_in['x'], 'B_w1': _B_in['w1'], 'B_w2': _B_in['w2'], 'c': _w((lambda *s: torch.randn(*s, dtype=torch.bfloat16) * 0.2)(1, 576) * 8.0), 'w_mod': _w((lambda *s: torch.randn(*s, dtype=torch.bfloat16) * 0.2)(576, 6 * 576) * 576 ** (-0.5) * 8.0)}

def reference(A_x, A_k_cache, A_v_cache, A_wq, A_wo, B_x, B_w1, B_w2, c, w_mod):

    def _A_ref(x, k_cache, v_cache, wq, wo):
        B, Sq, D = x.shape
        Hq, Dh = (32, 128)
        Hkv = k_cache.shape[1]
        rep = Hq // Hkv
        q = (lambda x, *d: x.permute(*d))((x @ wq).reshape(B, Sq, Hq, Dh), 0, 2, 1, 3)
        k = (lambda x, n, axis: torch.repeat_interleave(x, n, dim=axis))(k_cache, rep, axis=1)
        v = (lambda x, n, axis: torch.repeat_interleave(x, n, dim=axis))(v_cache, rep, axis=1)
        scores = torch.einsum('bhqd,bhkd->bhqk', q, k) * Dh ** (-0.5)
        p = _softmax(scores, axis=-1)
        o = torch.einsum('bhqk,bhkd->bhqd', p, v)
        return (lambda x, *d: x.permute(*d))(o, 0, 2, 1, 3).reshape(B, Sq, Hq * Dh) @ wo

    def _B_ref(x, w1, w2):
        h = torch.einsum('bsd,df->bsf', x, w1)
        h = _silu(h)
        out = torch.einsum('bsf,fd->bsd', h, w2)
        return out
    x = A_x
    mod = (_silu(c) @ w_mod).reshape(c.shape[0], 6, 1, -1)
    sa, ca, ga, sb, cb, gb = (mod[:, 0].clone(), mod[:, 1].clone(), mod[:, 2].clone(), mod[:, 3].clone(), mod[:, 4].clone(), mod[:, 5].clone())
    h = _layernorm(x, axis=-1) * (1 + ca) + sa
    x = x + ga * _A_ref(h, A_k_cache, A_v_cache, A_wq, A_wo)
    h = _layernorm(x, axis=-1) * (1 + cb) + sb
    x = x + gb * _B_ref(h, B_w1, B_w2)
    return x
```

```python
import re

REG_RE = re.compile(r'(?<![\w.])([vsa])(\d+)(?![\w\[])|(?<![\w.])([vsa])\[(\d+):(\d+)\]')
TRANS = ('v_exp_f32', 'v_log_f32', 'v_rcp_f32', 'v_rsq_f32', 'v_sqrt_f32', 'v_sin_f32', 'v_cos_f32', 'v_rcp_iflag_f32')

def regs_of(tok):
    out = set()
    tok = tok.strip()
    if tok.startswith('-'): tok = tok[1:]
    if tok.startswith('abs(') or tok.startswith('|'): tok = tok.strip('abs()|')
    if tok == 'vcc': return {('s', 'vcc')}
    if tok == 'exec': return {('s', 'exec')}
    m = re.fullmatch(r'([vsa])(\d+)', tok)
    if m: return {(m.group(1), int(m.group(2)))}
    m = re.fullmatch(r'([vsa])\[(\d+):(\d+)\]', tok)
    if m: return {(m.group(1), i) for i in range(int(m.group(2)), int(m.group(3)) + 1)}
    return out

class Ins:
    __slots__ = ('text', 'mn', 'kind', 'wv', 'rv', 'ws', 'rs', 'dpp', 'mfma_c', 'mfma_ab', 'store_data', 'nops', 'passes', 'lanesel')
    def __init__(self, text):
        self.text = text
        t = text.split(';')[0].strip()
        parts = t.split(None, 1)
        self.mn = mn = parts[0]
        rest = parts[1] if len(parts) > 1 else ''
        ops = []; cur = ''; depth = 0
        for ch in rest:
            if ch in '[(': depth += 1
            if ch in '])': depth -= 1
            if ch == ',' and depth == 0: ops.append(cur.strip()); cur = ''
            else: cur += ch
        if cur.strip(): ops.append(cur.strip())
        mods = ''
        if ops:
            sp = ops[-1].split(None, 1)
            if len(sp) > 1: ops[-1] = sp[0]; mods = sp[1]
        self.wv = set(); self.rv = set(); self.ws = set(); self.rs = set()
        self.dpp = set(); self.mfma_c = set(); self.mfma_ab = set(); self.store_data = set()
        self.nops = 1; self.passes = 0; self.lanesel = set()
        V = lambda toks: {r for t in toks for r in regs_of(t) if r[0] in 'va'}
        S = lambda toks: {r for t in toks for r in regs_of(t) if r[0] == 's'}
        if mn == 's_nop':
            self.kind = 'nop'; self.nops = int(ops[0], 0) + 1
        elif mn.startswith('v_mfma'):
            self.kind = 'mfma'
            self.wv = V(ops[:1]); self.mfma_ab = V(ops[1:3]); self.mfma_c = V(ops[3:4]); self.rv = self.mfma_ab | self.mfma_c
            self.passes = 8 if '32x32' in mn else 4
        elif mn.startswith('v_'):
            self.kind = 'trans' if mn.replace('_e32', '').replace('_e64', '') in TRANS else 'valu'
            base = mn
            if mn.startswith('v_cmp'):
                self.ws = S(ops[:1]); self.rv = V(ops[1:]); self.rs = S(ops[1:])
                if mn.startswith('v_cmpx'): self.ws |= {('s', 'exec')}
            elif mn.startswith('v_readlane') or mn.startswith('v_readfirstlane'):
                self.kind = 'readlane'
                self.ws = S(ops[:1]); self.rv = V(ops[1:2]); self.lanesel = S(ops[2:3])
            elif mn.startswith('v_writelane'):
                self.wv = V(ops[:1]); self.rv = V(ops[:1]); self.rs = S(ops[1:2]); self.lanesel = S(ops[2:3])
            elif 'permlane' in mn and 'swap' in mn:
                self.kind = 'permlane'
                self.wv = V(ops[:2]); self.rv = V(ops[:2])
            elif re.match(r'v_(add|sub|subrev)_co_u32', mn):
                self.wv = V(ops[:1]); self.ws = S(ops[1:2]); self.rv = V(ops[2:]); self.rs = S(ops[2:])
            elif re.match(r'v_(addc|subb|subbrev)_co_u32', mn):
                self.wv = V(ops[:1]); self.ws = S(ops[1:2]); self.rv = V(ops[2:]); self.rs = S(ops[2:])
            else:
                self.wv = V(ops[:1]); self.rv = V(ops[1:]); self.rs = S(ops[1:])
                if mn.startswith('v_fmac') or mn.startswith('v_dot2c') or mn.startswith('v_pk_fmac') or mn.startswith('v_mac'):
                    self.rv |= self.wv
                if mn.startswith('v_cndmask') and len(ops) == 3: self.rs |= {('s', 'vcc')}
            if 'quad_perm' in mods or 'row_' in mods or mn.endswith('_dpp'):
                self.dpp = V(ops[1:2]); self.rv |= self.wv
        elif mn.startswith('buffer_') or mn.startswith('global_'):
            self.kind = 'vmem'
            isstore = '_store' in mn or ('atomic' in mn and 'sc0' not in mods)
            if mn in ('buffer_inv', 'buffer_wbl2'):
                pass
            elif mn.startswith('buffer_'):
                if 'lds' in mods.split():
                    self.rv = V(ops[:1]); self.rs = S(ops[1:])
                elif isstore:
                    self.rv = V(ops[:2]); self.rs = S(ops[2:]); self.store_data = V(ops[:1])
                else:
                    self.wv = V(ops[:1]); self.rv = V(ops[1:2]); self.rs = S(ops[2:])
            else:
                if isstore:
                    self.rv = V(ops[:2]); self.rs = S(ops[2:]); self.store_data = V(ops[1:2])
                else:
                    self.wv = V(ops[:1]); self.rv = V(ops[1:]); self.rs = S(ops[1:])
            if not re.search(r'x3|x4', mn): self.store_data = set()
        elif mn.startswith('ds_'):
            self.kind = 'ds'
            if mn.startswith('ds_read') or 'rtn' in mn or 'permute' in mn or 'swizzle' in mn:
                self.wv = V(ops[:1]); self.rv = V(ops[1:])
            else:
                self.rv = V(ops)
        else:
            self.kind = 'salu'
            self.rs = S(ops)

def need(prev, cur):
    n = 0
    pv = prev.kind in ('valu', 'trans', 'permlane')
    isvalu = lambda i: i.kind in ('valu', 'trans', 'permlane', 'readlane')
    if pv:
        if cur.dpp & prev.wv: n = max(n, 2)
        if cur.kind == 'mfma' and cur.rv & prev.wv: n = max(n, 2)
        if cur.kind == 'permlane' and cur.rv & prev.wv: n = max(n, 2)
        if cur.kind == 'readlane' and cur.rv & prev.wv: n = max(n, 1)
    if prev.kind == 'trans' and isvalu(cur) and cur.kind != 'trans' and cur.rv & prev.wv: n = max(n, 1)
    if prev.kind == 'trans' and cur.kind in ('trans',) and cur.rv & prev.wv: n = max(n, 1)
    if isvalu(prev) and prev.ws:
        if isvalu(cur) and (cur.rs & prev.ws): n = max(n, 2)
        if cur.kind == 'vmem' and (cur.rs & prev.ws): n = max(n, 5)
        if cur.lanesel & prev.ws: n = max(n, 4)
        if ('s', 'exec') in prev.ws:
            if cur.dpp: n = max(n, 5)
            if cur.kind in ('readlane', 'permlane', 'mfma'): n = max(n, 4)
        if cur.kind == 'salu' and (cur.rs & prev.ws): n = max(n, 1)
    if prev.kind == 'mfma':
        big = {4: 8, 8: 12}[prev.passes]
        if cur.kind == 'mfma':
            if cur.mfma_ab & prev.wv: n = max(n, big)
            if cur.mfma_c & prev.wv and cur.mfma_c != prev.wv: n = max(n, {4: 6, 8: 10}[prev.passes])
            if (cur.wv & prev.wv) and cur.mfma_c != prev.wv: n = max(n, big)
        else:
            if (cur.rv | cur.wv) & prev.wv: n = max(n, big)
            if isvalu(cur) and cur.wv & prev.mfma_c: n = max(n, {4: 3, 8: 7}[prev.passes])
    if prev.store_data and isvalu(cur) and (cur.wv & prev.store_data): n = max(n, 2)
    if prev.store_data and cur.kind in ('vmem', 'ds') and (cur.wv & prev.store_data): n = max(n, 1)
    return n

class Asm:
    def __init__(self):
        self.items = []
        self.nlabel = 0
    def __call__(self, s):
        for ln in s.strip('\n').split('\n'):
            ln = ln.strip()
            if not ln: continue
            if ln.startswith(';'): self.items.append(('c', ln)); continue
            code = ln.split(';')[0].strip()
            if code.endswith(':'): self.items.append(('l', code[:-1]))
            else: self.items.append(('i', ln))
    def label(self, name):
        self.items.append(('l', name))
    def newlabel(self, base='L'):
        self.nlabel += 1
        return f'{base}_{self.nlabel}'
    def comment(self, s):
        self.items.append(('c', '; ' + s))
    def text(self, fix=True):
        out = []
        hist = []
        ninsert = 0
        for kind, s in self.items:
            if kind == 'l':
                out.append(s + ':')
                continue
            if kind == 'c':
                out.append('    ' + s); continue
            if s.startswith('.'):
                out.append('    ' + s); continue
            ins = Ins(s)
            if fix:
                req = 0
                for p, el in hist:
                    r = need(p, ins) - el
                    if r > req: req = r
                if req > 0:
                    ninsert += 1
                    k = req
                    while k > 0:
                        c = min(k, 16)
                        out.append(f'    s_nop {c-1}')
                        k -= c
                    hist = [(p, el + req) for p, el in hist]
            out.append('    ' + s)
            hist = [(p, el + ins.nops) for p, el in hist if el + ins.nops < 24]
            if ins.kind not in ('nop', 'salu'):
                hist.append((ins, 0))
            if ins.mn in ('s_branch', 's_endpgm', 's_setpc_b64'):
                hist = []
        self.ninsert = ninsert
        return '\n'.join(out) + '\n'

def vr(a, n=1):
    return f'v{a}' if n == 1 else f'v[{a}:{a+n-1}]'
def sr(a, n=1):
    return f's{a}' if n == 1 else f's[{a}:{a+n-1}]'

HEADER_COMMENT = '''; Kernarg layout for this problem (104 bytes, ptrs only, base s[0:1]):
;   offset  16: d_in[2] A_v_cache  shape=(1, 16, 8192, 128) dtype=bfloat16
'''

KNAME = 'adaLN_cond__gqa_block_cached__dense_activation_silu__decode_kernel'

def wrap(body, grid, block, lds, nvgpr, nsgpr=102, accum=None, extra_comment=''):
    accum = accum or ((nvgpr + 3) // 4 * 4)
    return (HEADER_COMMENT + extra_comment + f'; @launch grid=({grid},1,1) block=({block},1,1) lds={lds}\n'
      + '.amdgcn_target "amdgcn-amd-amdhsa--gfx950"\n.text\n'
      + f'.globl {KNAME}\n.p2align 8\n.type {KNAME},@function\n{KNAME}:\n'
      + body +
      f'''.section .rodata,"a"
.p2align 6
.amdhsa_kernel {KNAME}
  .amdhsa_next_free_vgpr {nvgpr}
  .amdhsa_next_free_sgpr {nsgpr}
  .amdhsa_accum_offset {accum}
  .amdhsa_group_segment_fixed_size 0
  .amdhsa_kernarg_size 104
  .amdhsa_user_sgpr_count 2
  .amdhsa_user_sgpr_kernarg_segment_ptr 1
  .amdhsa_system_sgpr_workgroup_id_x 1
  .amdhsa_float_denorm_mode_32 3
  .amdhsa_float_denorm_mode_16_64 3
.end_amdhsa_kernel
''')
```

```python
import sys, struct
from asmgen import *

WS_EPOCH = 0x0
WS_FLAGS = 0x1000
WS_MODP = 0x2000
MODP_P = 3456 * 8
WS_QP = 0x10000
QP_P = 4096 * 8
WS_OP = 0x20000
WS_ST = 0x60000
WS_AP = 0x70000
WS_YP = 0x80000
WS_DIAG = 0x800000
WS_SRD_SIZE = 0x1000000
LQ = 0x0000; LMX = 0x0200; LLS = 0x0240; LST2 = 0x0280; LF_XX = 0x02C4
LH2 = 0x0300
LUP = 0x0C00
LAP = 0x0E00
LXXT = 0x1700; LOXX = 0x1C00; LOP = 0x2000
LDS_BYTES = 0x4000
sB = 2; sW = 3; sG = 4; sS = 5
PX, PK, PV, PWQ, PWO, PW1, PW2, PC, PWM, POUT, PDBG, PWS = 16, 18, 20, 22, 24, 28, 30, 32, 34, 36, 38, 40
sTAG = 42; sCNT = 43
SRD_WS = 44; SRD_A = 48; SRD_B = 52
sSCALE = 56; sLOG2E = 57; sF = 58; sSLOT = 59
SCALE = 0x3DB504F3
LOG2E = 0x3FB8AA3B
MAXSPIN = 200000
NT = ' nt'
ALL = (1 << 64) - 1

def f2u(x):
    return struct.unpack('<I', struct.pack('<f', x))[0]

class VM:
    def __init__(self, a):
        self.a = a; self.q = []; self.done = 0
    def issue(self, tag, text):
        self.a(text); self.q.append(tag)
    def wait(self, tag):
        i = self.q.index(tag)
        if i < self.done: return
        n = len(self.q) - 1 - i
        self.a(f's_waitcnt vmcnt({min(n, 63)})')
        self.done = i + 1

class Gen:
    def __init__(self, depth=3, diag=False, prefetch_code=True, sl_stream=16, sl_p1=4, sl_q0=32, sl_m0=8, sl_h2=16, nb1=10, extra=2, sl_hint=8):
        self.a = Asm(); self.depth = depth; self.diag = diag
        self.prefetch_code = prefetch_code; self.nb1 = nb1; self.extra = extra; self.sl_hint = sl_hint
        self.sl_stream = sl_stream; self.sl_p1 = sl_p1; self.sl_q0 = sl_q0; self.sl_m0 = sl_m0; self.sl_h2 = sl_h2

    def stamp(self, idx):
        if not self.diag: return
        self.a(f'''
        s_memrealtime s[92:93]
        s_waitcnt lgkmcnt(0)
        v_writelane_b32 v3, s92, {idx}
        ''')
    def exec_set(self, mask):
        a = self.a
        lo = mask & 0xffffffff; hi = mask >> 32
        if mask == ALL: a('s_mov_b64 exec, -1')
        elif hi == 0 and lo <= 0x7fffffff and False: a(f's_mov_b64 exec, {lo:#x}')
        else:
            a(f's_mov_b32 exec_lo, {lo:#x}'); a(f's_mov_b32 exec_hi, {hi:#x}')
    def exec_all(self): self.a('s_mov_b64 exec, -1')
    def rnd(self, regs, tmps):
        a = self.a
        regs = list(regs)
        if isinstance(tmps, int): tmps = [tmps]
        pairs = [(regs[i], regs[i + 1] if i + 1 < len(regs) else None) for i in range(0, len(regs), 2)]
        for c in range(0, len(pairs), len(tmps)):
            grp = pairs[c:c + len(tmps)]
            for (x, y), t in zip(grp, tmps): a(f'v_cvt_pk_bf16_f32 v{t}, v{x}, v{y if y is not None else x}')
            for (x, y), t in zip(grp, tmps):
                a(f'v_lshlrev_b32 v{x}, 16, v{t}')
                if y is not None: a(f'v_and_b32 v{y}, 0xffff0000, v{t}')
    def unpack(self, src, lo, hi):
        self.a(f'v_lshlrev_b32 v{lo}, 16, v{src}')
        self.a(f'v_and_b32 v{hi}, 0xffff0000, v{src}')
    def xstep(self, op, regs, tmps, st):
        a = self.a
        sw = 'v_permlane16_swap_b32' if st == 16 else 'v_permlane32_swap_b32'
        n = len(regs)
        for i, r in enumerate(regs): a(f'v_mov_b32 v{tmps[i]}, v{r}')
        for i, r in enumerate(regs): a(f'{sw} v{r}, v{tmps[i]}')
        for i, r in enumerate(regs): a(f'{op} v{r}, v{r}, v{tmps[i]}')
    def xgroup(self, op, regs, tmps, steps=(16, 32)):
        for st in steps: self.xstep(op, regs, tmps, st)
    def row_red(self, op, regs, rors=(8, 4, 2, 1)):
        a = self.a
        for n in rors:
            for r in regs:
                a(f'{op}_dpp v{r}, v{r}, v{r} row_ror:{n} row_mask:0xf bank_mask:0xf')
    def wave_red(self, op, regs, tmps):
        self.row_red(op, regs)
        self.xgroup(op, regs, tmps)
    def masks(self, m0, t):
        a = self.a
        a(f'''
        v_and_b32 v{t}, 1, v1
        v_lshlrev_b32 v{t}, 4, v{t}
        v_mov_b32 v{m0}, 0xffff
        v_lshlrev_b32 v{m0+3}, v{t}, v{m0}
        v_bfe_u32 v{t}, v1, 1, 2
        ''')
        for w in range(4):
            a(f'v_cmp_eq_u32 vcc, {w}, v{t}')
            a(f'v_cndmask_b32 v{m0+w}, 0, v{m0+3}, vcc')
    def abuild(self, dst, xx, m0=4):
        for w in range(4):
            self.a(f'v_and_b32 v{dst+w}, v{xx}, v{m0+w}')
    def poll_begin(self, name):
        self.a(f's_mov_b32 s{sCNT}, 0')
        self.a.label(name)
    def _poll_tail(self, name, sleep):
        a = self.a
        a(f'''
        s_cbranch_vccz {name}_done
        s_add_u32 s{sCNT}, s{sCNT}, 1
        s_cmp_lt_u32 s{sCNT}, {MAXSPIN}
        s_cbranch_scc0 {name}_done
        ''')
        if sleep: a(f's_sleep {sleep}')
        a(f'''
        s_branch {name}
        {name}_done:
        ''')
    def poll_end(self, name, chk, sleep=0):
        self.a(f'v_cmp_u_f32 vcc, v{chk}, v{chk}')
        self._poll_tail(name, sleep)
    def poll_end_nz(self, name, chk, sleep=1):
        self.a(f'v_cmp_ne_u32 vcc, 0, v{chk}')
        self._poll_tail(name, sleep)
    def tag_check(self, tags, t1, t2):
        a = self.a
        tags = list(tags)
        a(f'v_min_u32 v{t1}, v{tags[0]}, v{tags[1]}')
        a(f'v_max_u32 v{t2}, v{tags[0]}, v{tags[1]}')
        for i in range(2, len(tags) - 1, 2):
            a(f'v_min3_u32 v{t1}, v{t1}, v{tags[i]}, v{tags[i+1]}')
            a(f'v_max3_u32 v{t2}, v{t2}, v{tags[i]}, v{tags[i+1]}')
        a(f'v_xor_b32 v{t1}, s{sTAG}, v{t1}')
        a(f'v_xor_b32 v{t2}, s{sTAG}, v{t2}')
        a(f'v_or_b32 v{t1}, v{t1}, v{t2}')
    def shint(self, name, base, offs, s0, sleep=None):
        a = self.a
        sleep = self.sl_hint if sleep is None else sleep
        a(f's_mov_b32 s{sCNT}, 0')
        a.label(name)
        for i, o in enumerate(offs): a(f's_load_dword s{s0+i}, {sr(base,2)}, {o} glc')
        a('s_waitcnt lgkmcnt(0)')
        a(f's_xor_b32 s6, s{s0}, s{sTAG}') if False else None
        a(f's_xor_b32 s15, s{s0}, s{sTAG}')
        for i in range(1, len(offs)):
            a(f's_xor_b32 s14, s{s0+i}, s{sTAG}')
            a(f's_or_b32 s15, s15, s14')
        a(f'''
        s_cmp_eq_u32 s15, 0
        s_cbranch_scc1 {name}_done
        s_add_u32 s{sCNT}, s{sCNT}, 1
        s_cmp_lt_u32 s{sCNT}, {MAXSPIN}
        s_cbranch_scc0 {name}_done
        s_sleep {sleep}
        s_branch {name}
        {name}_done:
        ''')
    def lds_wait_flag(self, name, addr, vt):
        a = self.a
        a(f'''
        s_mov_b32 s{sCNT}, 0
        v_mov_b32 v{vt}, {addr}
        {name}:
        ds_read_b32 v{vt+1}, v{vt}
        s_waitcnt lgkmcnt(0)
        v_cmp_ne_u32 vcc, 1, v{vt+1}
        s_cbranch_vccz {name}_done
        s_add_u32 s{sCNT}, s{sCNT}, 1
        s_cmp_lt_u32 s{sCNT}, {MAXSPIN*8}
        s_cbranch_scc0 {name}_done
        s_sleep 1
        s_branch {name}
        {name}_done:
        ''')
    def flags_check(self, name, vo, vd, sleep=16):
        a = self.a
        a(f'''
        v_lshlrev_b32 v{vo}, 4, v1
        s_mov_b32 s{sCNT}, 0
        s_mov_b32 s6, {WS_FLAGS}
        {name}:
        buffer_load_dwordx4 {vr(vd,4)}, v{vo}, {sr(SRD_WS,4)}, s6 offen sc1
        s_waitcnt vmcnt(0)
        ''')
        self.tag_check([vd, vd + 1, vd + 2, vd + 3], vo + 1, vo + 2)
        self.a(f'v_cmp_ne_u32 vcc, 0, v{vo+1}')
        self._poll_tail(name, sleep)
    def srd(self, s, ptr, off_s, size):
        a = self.a
        a(f's_add_u32 s{s}, s{ptr}, s{off_s}')
        a(f's_addc_u32 s{s+1}, s{ptr+1}, 0')
        a(f's_mov_b32 s{s+2}, {size}')
        a(f's_mov_b32 s{s+3}, 0x20000')
    def srd_plain(self, s, ptr, size):
        a = self.a
        a(f's_mov_b32 s{s}, s{ptr}'); a(f's_mov_b32 s{s+1}, s{ptr+1}')
        a(f's_mov_b32 s{s+2}, {size}'); a(f's_mov_b32 s{s+3}, 0x20000')
    def setsum2(self, ds, outs):
        a = self.a
        for d in ds:
            a(f'v_permlane32_swap_b32 v{d}, v{d+2}')
            a(f'v_permlane32_swap_b32 v{d+1}, v{d+3}')
        for d, o in zip(ds, outs):
            a(f'v_add_f32_dpp v{o}, v{d+2}, v{d} row_ror:8 row_mask:0xf bank_mask:0xf')
            a(f'v_add_f32_dpp v{o+1}, v{d+3}, v{d+1} row_ror:8 row_mask:0xf bank_mask:0xf')
    def set_addr(self, dst, t):
        a = self.a
        a(f'''
        v_and_b32 v{dst}, 7, v1
        v_lshlrev_b32 v{dst}, 5, v{dst}
        v_bfe_u32 v{t}, v1, 4, 1
        v_lshl_add_u32 v{dst}, v{t}, 4, v{dst}
        v_lshrrev_b32 v{t}, 5, v1
        v_lshl_add_u32 v{dst}, v{t}, 3, v{dst}
        ''')
    SETMASK = 0x00FF00FF00FF00FF
    def silu(self, regs, tmps):
        a = self.a
        for r, t in zip(regs, tmps): a(f'v_mul_f32 v{t}, 0xbfb8aa3b, v{r}')
        for r, t in zip(regs, tmps): a(f'v_exp_f32 v{t}, v{t}')
        for r, t in zip(regs, tmps): a(f'v_add_f32 v{t}, 1.0, v{t}')
        for r, t in zip(regs, tmps): a(f'v_rcp_f32 v{t}, v{t}')
        for r, t in zip(regs, tmps): a(f'v_mul_f32 v{r}, v{r}, v{t}')
    def end_wave(self):
        a = self.a
        if self.diag:
            self.stamp(15)
            a(f'''
            s_memtime s[86:87]
            s_waitcnt lgkmcnt(0)
            s_sub_u32 s86, s86, s88
            v_writelane_b32 v3, s86, 14
            s_mov_b64 exec, -1
            s_lshl_b32 s6, s{sB}, 10
            s_lshl_b32 s7, s94, 6
            s_add_u32 s6, s6, s7
            s_add_u32 s6, s6, {WS_DIAG}
            v_lshlrev_b32 v2, 2, v1
            s_mov_b64 exec, 0xffff
            buffer_store_dword v3, v2, {sr(SRD_WS,4)}, s6 offen
            ''')
        a('s_endpgm')

    def prologue(self):
        a = self.a
        if self.diag: a('s_memrealtime s[90:91]'); a('s_memtime s[88:89]')
        a(f'''
        s_cmp_ge_u32 s{sB}, 256
        s_cbranch_scc1 L_exit
        s_load_dwordx16 s[16:31], s[0:1], 0
        s_load_dwordx8 s[32:39], s[0:1], 64
        s_load_dwordx2 s[40:41], s[0:1], 96
        v_lshrrev_b32 v2, 6, v0
        v_and_b32 v1, 63, v0
        v_readfirstlane_b32 s{sW}, v2
        s_and_b32 s6, s{sB}, 7
        s_mov_b32 s94, s{sW}
        s_lshr_b32 s7, s{sB}, 3
        s_lshl_b32 s{sG}, s6, 1
        s_lshr_b32 s8, s7, 4
        s_add_u32 s{sG}, s{sG}, s8
        s_and_b32 s{sS}, s7, 15
        s_lshl_b32 s{sSLOT}, s{sG}, 4
        s_add_u32 s{sSLOT}, s{sSLOT}, s{sS}
        s_mul_i32 s{sF}, s{sG}, 9
        s_add_u32 s{sF}, s{sF}, s{sS}
        s_sub_u32 s{sF}, s{sF}, 7
        s_mov_b32 s{sSCALE}, {SCALE:#x}
        s_mov_b32 s{sLOG2E}, {LOG2E:#x}
        v_mov_b32 v3, 0
        s_waitcnt lgkmcnt(0)
        s_mov_b32 s{SRD_WS}, s{PWS}
        s_mov_b32 s{SRD_WS+1}, s{PWS+1}
        s_mov_b32 s{SRD_WS+2}, {WS_SRD_SIZE}
        s_mov_b32 s{SRD_WS+3}, 0x20000
        ''')
        if self.diag: a('v_writelane_b32 v3, s90, 0')
        a(f'''
        s_cmp_ge_u32 s{sW}, 8
        s_cbranch_scc1 L_chain
        ''')

    def stream(self):
        a = self.a; D = self.depth
        KB, VB = 40, 104
        a(f'''
        s_lshl_b32 s6, s{sG}, 21
        s_lshl_b32 s7, s{sS}, 17
        s_add_u32 s6, s6, s7
        s_lshl_b32 s7, s{sW}, 14
        s_add_u32 s6, s6, s7
        ''')
        self.srd(SRD_A, PK, 6, 16384)
        self.srd(SRD_B, PV, 6, 16384)
        a(f'''
        v_lshrrev_b32 v8, 4, v1
        v_bfe_u32 v9, v1, 2, 2
        v_and_b32 v10, 3, v1
        v_lshlrev_b32 v8, 6, v8
        v_lshlrev_b32 v9, 8, v9
        v_lshlrev_b32 v10, 4, v10
        v_add3_u32 v36, v8, v9, v10          ; K voffset
        v_lshlrev_b32 v37, 4, v1             ; V voffset
        s_mov_b32 s61, 4096
        s_mov_b32 s62, 8192
        s_mov_b32 s63, 12288
        ''')
        vm = VM(a)
        def ld(kind, t):
            so = '0' if t < 4 else f's{60 + t // 4}'
            off = (t % 4) * 1024
            if kind == 'K':
                return f'buffer_load_dwordx4 {vr(KB+4*t,4)}, v36, {sr(SRD_A,4)}, {so} offen offset:{off}{NT}'
            return f'buffer_load_dwordx4 {vr(VB+4*t,4)}, v37, {sr(SRD_B,4)}, {so} offen offset:{off}{NT}'
        seq = [('K', t) for t in range(16)] + [('V', t) for t in range(16)]
        self.masks(4, 8)
        a(f'''
        v_bfe_u32 v16, v1, 3, 1              ; head
        v_lshlrev_b32 v38, 5, v16
        s_lshl_b32 s6, s{sW}, 2
        v_add_u32 v39, s6, v38               ; head*32 + w*4
        v_lshlrev_b32 v16, 8, v16
        v_lshrrev_b32 v17, 4, v1
        v_lshlrev_b32 v17, 6, v17
        v_and_b32 v18, 3, v1
        v_lshlrev_b32 v18, 4, v18
        v_add3_u32 v0, v16, v17, v18
        ''')
        a('s_barrier')
        if self.sl_stream: a(f's_sleep {self.sl_stream}')
        st = {'pos': 0}
        def pump(depth=D, force=False):
            pos = st['pos']
            if pos >= 32: return
            if pos >= depth: vm.wait(seq[pos - depth])
            vm.issue(seq[pos], ld(*seq[pos]))
            st['pos'] = pos + 1
            if pos == D - 1: self.stamp(1)
            if pos == 31: a('s_barrier')
        while st['pos'] < 16 + self.nb1: pump()
        for _ in range(self.extra): pump(depth=D + self.extra)
        vm.wait(('K', 15))
        self.stamp(2)
        a('s_barrier')
        self.stamp(3)
        a(f'''
        ds_read_b128 v[8:11], v0 offset:{LQ}
        s_waitcnt lgkmcnt(0)
        ''')
        DX = D + self.extra
        def dreg(t): return 16 if t == 0 else KB + 4 * (t - 1)
        for t in range(16):
            a(f'v_mfma_f32_16x16x32_bf16 {vr(dreg(t),4)}, {vr(KB+4*t,4)}, v[8:11], 0')
        SB = 20
        for t0 in range(0, 16, 4):
            for j, pat in enumerate(('[0,0,0,0]', '[1,1,1,1]', '[2,2,2,2]', '[3,3,3,3]')):
                for t in range(t0, t0 + 4):
                    d = dreg(t); s = SB + t
                    if j == 0: a(f'v_mov_b32_dpp v{s}, v{d} quad_perm:{pat} row_mask:0xf bank_mask:0xf')
                    else: a(f'v_add_f32_dpp v{s}, v{d+j}, v{s} quad_perm:{pat} row_mask:0xf bank_mask:0xf')
            if t0 in (4, 12): pump(DX)
        sc = list(range(SB, SB + 16))
        T8 = [8, 9, 10, 11, 16, 17, 18, 19]
        self.rnd(sc, T8)
        for s in sc: a(f'v_mul_f32 v{s}, s{sSCALE}, v{s}')
        pump(DX)
        self.rnd(sc, T8)
        a(f'v_max3_f32 v16, v{SB}, v{SB+1}, v{SB+2}')
        a(f'v_max3_f32 v17, v{SB+3}, v{SB+4}, v{SB+5}')
        a(f'v_max3_f32 v18, v{SB+6}, v{SB+7}, v{SB+8}')
        a(f'v_max3_f32 v19, v{SB+9}, v{SB+10}, v{SB+11}')
        a(f'v_max3_f32 v16, v16, v{SB+12}, v{SB+13}')
        a(f'v_max3_f32 v17, v17, v{SB+14}, v{SB+15}')
        a(f'v_max3_f32 v16, v16, v18, v19')
        a(f'v_max_f32 v16, v16, v17')
        self.xgroup('v_max_f32', [16], [17])
        a(f'''
        s_mov_b64 exec, 0x101
        ds_write_b32 v39, v16 offset:{LMX}
        s_mov_b64 exec, -1
        s_waitcnt lgkmcnt(0)
        ''')
        pump(DX)
        self.stamp(4)
        a('s_barrier')
        a(f'''
        ds_read_b128 v[8:11], v38 offset:{LMX}
        ds_read_b128 v[16:19], v38 offset:{LMX+16}
        s_waitcnt lgkmcnt(0)
        v_max3_f32 v8, v8, v9, v10
        v_max3_f32 v16, v16, v17, v18
        v_max3_f32 v8, v8, v11, v19
        v_max_f32 v2, v8, v16
        v_mul_f32 v9, s{sLOG2E}, v2
        v_sub_f32 v9, 0, v9
        ''')
        for s in sc: a(f'v_fma_f32 v{s}, v{s}, s{sLOG2E}, v9')
        pump(DX)
        for s in sc: a(f'v_exp_f32 v{s}, v{s}')
        pump(DX)
        a(f'v_add_f32 v8, v{SB}, v{SB+1}'); a(f'v_add_f32 v9, v{SB+2}, v{SB+3}')
        a(f'v_add_f32 v10, v{SB+4}, v{SB+5}'); a(f'v_add_f32 v11, v{SB+6}, v{SB+7}')
        for i in range(8, 16, 4):
            a(f'v_add_f32 v8, v8, v{SB+i}'); a(f'v_add_f32 v9, v9, v{SB+i+1}')
            a(f'v_add_f32 v10, v10, v{SB+i+2}'); a(f'v_add_f32 v11, v11, v{SB+i+3}')
        for s in sc: a(f'v_cvt_pk_bf16_f32 v{s}, v{s}, v{s}')
        a('v_add_f32 v8, v8, v9'); a('v_add_f32 v10, v10, v11'); a('v_add_f32 v10, v10, v8')
        self.xgroup('v_add_f32', [10], [17])
        a(f'''
        s_mov_b64 exec, 0x101
        ds_write_b32 v39, v10 offset:{LLS}
        s_mov_b64 exec, -1
        v_lshrrev_b32 v8, 5, v1
        v_lshlrev_b32 v8, 9, v8
        v_and_b32 v9, 15, v1
        v_lshl_add_u32 v8, v9, 5, v8
        v_bfe_u32 v9, v1, 4, 1
        v_lshl_add_u32 v8, v9, 4, v8
        s_lshl_b32 s6, s{sW}, 10
        v_add_u32 v36, s6, v8
        v_lshrrev_b32 v8, 5, v1
        v_lshlrev_b32 v8, 12, v8
        v_and_b32 v9, 31, v1
        v_lshlrev_b32 v9, 2, v9              ; (l&31)*4
        s_lshl_b32 s6, s{sW}, 7
        v_add3_u32 v0, v8, v9, s6
        v_add_u32 v2, 0, v2
        s_lshl_b32 s8, s{sSLOT}, 10
        s_add_u32 s8, s8, {WS_OP}
        s_lshl_b32 s9, s{sSLOT}, 7
        s_add_u32 s9, s9, {WS_ST}
        ''')
        self.stamp(5)
        for t in range(16):
            pump(DX)
            A = 16 if t % 2 == 0 else 8
            self.abuild(A, SB + t)
            vm.wait(('V', t))
            c = '0' if t == 0 else 'v[12:15]'
            a(f'v_mfma_f32_16x16x32_bf16 v[12:15], {vr(A,4)}, {vr(VB+4*t,4)}, {c}')
        assert st['pos'] == 32
        a(f'''
        v_and_b32 v9, 31, v1
        v_lshlrev_b32 v9, 2, v9
        s_lshl_b32 s6, s{sW}, 7
        v_add_u32 v37, s6, v9
        ''')
        a(f'''
        ds_write_b128 v36, v[12:15] offset:{LOP}
        s_waitcnt lgkmcnt(0)
        ''')
        self.stamp(6)
        a('s_barrier')
        for i in range(4): a(f'ds_read_b32 v{16+i}, v0 offset:{LOP + 1024*i}')
        a(f'''
        s_cmp_lg_u32 s{sW}, 0
        s_cbranch_scc1 L_nostat
        ds_read_b128 v[20:23], v38 offset:{LLS}
        ds_read_b128 v[24:27], v38 offset:{LLS+16}
        s_waitcnt lgkmcnt(0)
        v_add_f32 v20, v20, v21
        v_add_f32 v22, v22, v23
        v_add_f32 v24, v24, v25
        v_add_f32 v26, v26, v27
        v_add_f32 v20, v20, v22
        v_add_f32 v24, v24, v26
        v_add_f32 v25, v20, v24
        v_mov_b32 v24, v2
        v_lshrrev_b32 v9, 2, v38             ; head*8
        s_mov_b64 exec, 0x101
        buffer_store_dwordx2 v[24:25], v9, {sr(SRD_WS,4)}, s9 offen sc1
        s_mov_b64 exec, -1
        L_nostat:
        s_waitcnt lgkmcnt(0)
        v_add_f32 v16, v16, v17
        v_add_f32 v18, v18, v19
        v_add_f32 v16, v16, v18
        ''')
        self.xstep('v_add_f32', [16], [17], 32)
        a(f'''
        s_mov_b32 exec_hi, 0
        buffer_store_dword v16, v37, {sr(SRD_WS,4)}, s8 offen sc1
        s_mov_b64 exec, -1
        ''')
        self.stamp(7)
        a(f'''
        s_cmp_ge_u32 s{sS}, 7
        s_cbranch_scc1 L_w2
        ''')
        self.end_wave()
        a.label('L_w2')
        a(f'''
        s_cmp_ge_u32 s{sW}, 6
        s_cbranch_scc1 L_s_idle
        s_mul_i32 s6, s{sW}, {96*9216}
        s_lshl_b32 s7, s{sF}, 6
        s_add_u32 s6, s6, s7
        ''')
        self.srd(SRD_A, PW1, 6, f'{576*9216}')
        a(f'''
        s_sub_u32 s{SRD_A+2}, s{SRD_A+2}, s6
        v_lshrrev_b32 v8, 2, v1
        v_mul_u32_u24 v8, 9216, v8
        v_and_b32 v9, 3, v1
        v_lshl_add_u32 v8, v9, 4, v8
        s_mov_b32 s64, 0
        ''')
        for i in range(6):
            a(f'buffer_load_dwordx4 {vr(KB+4*i,4)}, v8, {sr(SRD_A,4)}, s64 offen{NT}')
            if i < 5: a('s_add_u32 s64, s64, 147456')
        self.gemv1_prep()
        self.stamp(13)
        a('s_barrier')
        a('s_barrier')
        self.stamp(8)
        self.gemv1(KB, 104)
        self.stamp(9)
        a('s_barrier')
        self.end_wave()
        a.label('L_s_idle')
        self.end_wave()

    def w2_loads(self, WB):
        a = self.a
        a(f'''
        s_mul_i32 s6, s{sF}, {32*1152}
        s_lshl_b32 s7, s{sW}, 7
        s_add_u32 s6, s6, s7
        ''')
        self.srd(SRD_B, PW2, 6, f'{4608*1152}')
        a(f'''
        s_sub_u32 s{SRD_B+2}, s{SRD_B+2}, s6
        v_lshrrev_b32 v8, 3, v1
        v_mul_u32_u24 v8, 1152, v8
        v_and_b32 v9, 7, v1
        v_lshl_add_u32 v8, v9, 4, v8
        s_mul_i32 s74, s{sF}, 2304
        s_lshl_b32 s7, s{sW}, 8
        s_add_u32 s74, s74, s7
        s_add_u32 s74, s74, {WS_YP}
        ''')
    def w2_issue(self, WB):
        a = self.a
        a('s_mov_b32 s64, 0')
        for ro in range(4):
            a(f'buffer_load_dwordx4 {vr(WB+4*ro,4)}, v8, {sr(SRD_B,4)}, s64 offen{NT}')
            a(f'buffer_load_dwordx4 {vr(WB+16+4*ro,4)}, v8, {sr(SRD_B,4)}, s64 offen offset:512{NT}')
            if ro < 3: a('s_add_u32 s64, s64, 9216')
        a(f'''
        s_cmp_lg_u32 s{sW}, 0
        s_cbranch_scc1 L_w2_no3
        s_mov_b32 s64, 0
        ''')
        for ro in range(4):
            a(f'buffer_load_dwordx4 {vr(WB+32+4*ro,4)}, v8, {sr(SRD_B,4)}, s64 offen offset:1024{NT}')
            if ro < 3: a('s_add_u32 s64, s64, 9216')
        a.label('L_w2_no3')

    def gemv2(self, WB, TB):
        a = self.a
        a(f'''
        v_lshrrev_b32 v8, 3, v1
        v_lshlrev_b32 v8, 5, v8              ; (l>>3)*32
        ''')
        for ro in range(4):
            a(f'ds_read_b128 {vr(TB+8*ro,4)}, v8 offset:{LUP + 256*ro}')
            a(f'ds_read_b64 {vr(TB+8*ro+4,2)}, v8 offset:{LUP + 256*ro + 16}')
        self.set_addr(9, 10)
        a('s_waitcnt lgkmcnt(0)')
        for ro in range(4):
            b = TB + 8 * ro
            a(f'v_add_f32 v{b}, v{b}, v{b+1}')
            a(f'v_add_f32 v{b+2}, v{b+2}, v{b+3}')
            a(f'v_add_f32 v{b+4}, v{b+4}, v{b+5}')
        for ro in range(4): a(f'v_add_f32 v{TB+8*ro}, v{TB+8*ro}, v{TB+8*ro+2}')
        for ro in range(4): a(f'v_add_f32 v{16+ro}, v{TB+8*ro}, v{TB+8*ro+4}')
        u = [16, 17, 18, 19]
        self.rnd(u, [20, 21])
        self.silu(u, [20, 21, 22, 23])
        for ro in range(4): a(f'v_cvt_pk_bf16_f32 v{16+ro}, v{16+ro}, v{16+ro}')
        for ro in range(4): self.abuild(TB + 4 * ro, 16 + ro)
        DB = TB + 16
        for ro in range(4):
            for k in range(2):
                c = '0' if ro == 0 else vr(DB + 4 * k, 4)
                a(f'v_mfma_f32_16x16x32_bf16 {vr(DB+4*k,4)}, {vr(TB+4*ro,4)}, {vr(WB+16*k+4*ro,4)}, {c}')
        a(f'''
        s_cmp_lg_u32 s{sW}, 0
        s_cbranch_scc1 L_g2_no3
        ''')
        for ro in range(4):
            c = '0' if ro == 0 else vr(DB + 8, 4)
            a(f'v_mfma_f32_16x16x32_bf16 {vr(DB+8,4)}, {vr(TB+4*ro,4)}, {vr(WB+32+4*ro,4)}, {c}')
        a('s_nop 7')
        self.setsum2([DB + 8], [DB + 16])
        self.exec_set(self.SETMASK)
        a(f'buffer_store_dwordx2 {vr(DB+16,2)}, v9, {sr(SRD_WS,4)}, s74 offen offset:2048 sc1')
        self.exec_all()
        a.label('L_g2_no3')
        a('s_nop 7')
        self.setsum2([DB, DB + 4], [DB + 12, DB + 14])
        self.exec_set(self.SETMASK)
        a(f'buffer_store_dwordx2 {vr(DB+12,2)}, v9, {sr(SRD_WS,4)}, s74 offen sc1')
        a(f'buffer_store_dwordx2 {vr(DB+14,2)}, v9, {sr(SRD_WS,4)}, s74 offen offset:1024 sc1')
        self.exec_all()

    def gemv1_prep(self):
        a = self.a
        a(f'''
        s_mul_i32 s6, s{sW}, {96*4}
        v_lshrrev_b32 v36, 4, v1
        v_lshlrev_b32 v36, 4, v36
        v_bfe_u32 v37, v1, 3, 1
        v_lshlrev_b32 v37, 2, v37
        v_add3_u32 v36, v36, v37, s6
        v_add_u32 v36, {LH2}, v36
        v_and_b32 v37, 3, v1
        v_lshlrev_b32 v37, 8, v37            ; 8*(l&3) rows * 32 B
        v_bfe_u32 v38, v1, 4, 1
        v_lshl_add_u32 v37, v38, 7, v37      ; + 4 rows * 32 B
        s_lshl_b32 s6, s{sW}, 2
        v_add_u32 v37, s6, v37
        s_mov_b32 s66, 0x0f0f0f0f
        s_mov_b32 s67, 0xf0f0f0f0
        s_mov_b32 s68, 0xff00ff00
        s_mov_b32 s69, 0xff00ff00
        ''')
    def gemv1(self, KB, XB):
        a = self.a
        N = 6
        for i in range(N):
            a(f'ds_read2_b32 {vr(XB+2*i,2)}, v36 offset0:{16*i} offset1:{16*i+2}')
        for i in range(N):
            A1, A2 = (16, 20) if i % 2 == 0 else (28, 32)
            a(f's_waitcnt lgkmcnt({N-1-i})')
            self.abuild(A1, XB + 2 * i)
            self.abuild(A2, XB + 2 * i + 1)
            a(f's_waitcnt vmcnt({N-1-i})')
            ca = '0' if i == 0 else 'v[12:15]'; cb = '0' if i == 0 else 'v[24:27]'
            a(f'v_mfma_f32_16x16x32_bf16 v[12:15], {vr(A1,4)}, {vr(KB+4*i,4)}, {ca}')
            a(f'v_mfma_f32_16x16x32_bf16 v[24:27], {vr(A2,4)}, {vr(KB+4*i,4)}, {cb}')
        for r in range(4): a(f'v_cndmask_b32 v{12+r}, v{12+r}, v{24+r}, s[68:69]')
        for r in range(4): a(f'v_cndmask_b32 v{12+r}, 0, v{12+r}, s[66:67]')
        u = [12, 13, 14, 15]
        self.row_red('v_add_f32', u, rors=(8, 4))
        self.xstep('v_add_f32', u, [16, 17, 18, 19], 32)
        self.exec_set(0x000F000F)
        for r in range(4): a(f'ds_write_b32 v37, v{12+r} offset:{LUP + 32*r}')
        self.exec_all()
        a('s_waitcnt lgkmcnt(0)')

    def chain(self):
        a = self.a
        a.label('L_chain')
        a(f'''
        s_setprio 3
        s_load_dword s{sTAG}, {sr(PWS,2)}, {WS_EPOCH}
        s_sub_u32 s{sW}, s{sW}, 8
        s_mov_b32 s60, 1
        s_mov_b32 s6, s{sB}
        s_cmp_lt_u32 s{sB}, 108
        s_cbranch_scc1 L_p1role
        s_mov_b32 s60, 2
        s_sub_u32 s6, s{sB}, 108
        s_cmp_lt_u32 s{sB}, 236
        s_cbranch_scc1 L_p1role
        s_mov_b32 s60, 0
        L_p1role:
        s_lshr_b32 s61, s6, 1
        s_and_b32 s62, s6, 1
        s_cmp_eq_u32 s{sW}, 0
        s_cbranch_scc1 L_c0
        s_cmp_eq_u32 s{sW}, 1
        s_cbranch_scc1 L_c1
        s_cmp_eq_u32 s{sW}, 2
        s_cbranch_scc1 L_c2
        ''')
        self.c3(); self.c0(); self.c1(); self.c2(); self.ctail()

    def c3(self):
        a = self.a
        if self.prefetch_code:
            a(f'''
            s_getpc_b64 s[64:65]
            L_pc:
            s_sub_u32 s{SRD_A}, s64, (L_pc - {KNAME})
            s_subb_u32 s{SRD_A+1}, s65, 0
            s_mov_b32 s{SRD_A+2}, (L_code_end - {KNAME})
            s_mov_b32 s{SRD_A+3}, 0x20000
            s_lshr_b32 s6, s{sB}, 3
            s_mul_i32 s6, s6, 768
            v_lshlrev_b32 v8, 6, v1
            s_mov_b64 exec, 0xfff
            buffer_load_dword v12, v8, {sr(SRD_A,4)}, s6 offen
            s_mov_b64 exec, -1
            ''')
        a(f'''
        s_barrier                            ; B0
        s_waitcnt lgkmcnt(0)
        s_add_u32 s{sTAG}, s{sTAG}, 1
        s_sleep 127
        ''')
        self.flags_check('L_c3_flags', 8, 12, sleep=32)
        self.stamp(1)
        a('s_branch L_ctail')
    code_kb4 = 6

    def c0(self):
        a = self.a
        a.label('L_c0')
        a(f"""
        s_cmp_eq_u32 s60, 0
        s_cbranch_scc1 L_c0_skip
        s_mov_b32 s63, 6912
        s_mov_b32 s64, s{PWM}
        s_mov_b32 s65, s{PWM+1}
        s_cmp_eq_u32 s60, 1
        s_cbranch_scc1 L_c0_sel
        s_mov_b32 s63, 8192
        s_mov_b32 s64, s{PWQ}
        s_mov_b32 s65, s{PWQ+1}
        L_c0_sel:
        s_mul_i32 s6, s62, 288
        s_mul_i32 s6, s6, s63                ; kh*288*pitch
        s_lshl_b32 s7, s61, 7
        s_add_u32 s6, s6, s7
        s_add_u32 s{SRD_A}, s64, s6
        s_addc_u32 s{SRD_A+1}, s65, 0
        s_mul_i32 s{SRD_A+2}, s63, 288
        s_mov_b32 s{SRD_A+3}, 0x20000
        v_lshrrev_b32 v8, 3, v1
        v_mul_lo_u32 v8, v8, s63
        v_and_b32 v9, 7, v1
        v_lshlrev_b32 v9, 4, v9
        v_add_u32 v8, v8, v9
        s_lshl_b32 s66, s63, 3               ; 8*pitch
        s_mov_b32 s67, 0
        """)
        TB = 24
        for i in range(36):
            a(f'buffer_load_dwordx4 {vr(TB+4*i,4)}, v8, {sr(SRD_A,4)}, s67 offen{NT}')
            if i < 35: a('s_add_u32 s67, s67, s66')
        a('s_barrier')
        self.masks(4, 9)
        a(f"""
        v_lshrrev_b32 v2, 3, v1
        v_mul_u32_u24 v2, 144, v2
        s_lshl_b32 s6, s61, 9                ; ct*512
        s_mul_i32 s7, s62, {MODP_P}
        s_add_u32 s7, s7, {WS_MODP}
        s_cmp_eq_u32 s60, 1
        s_cbranch_scc1 L_c0_pub
        s_mul_i32 s7, s62, {QP_P}
        s_add_u32 s7, s7, {WS_QP}
        L_c0_pub:
        s_add_u32 s68, s6, s7
        s_waitcnt lgkmcnt(0)
        s_add_u32 s{sTAG}, s{sTAG}, 1
        """)
        self.stamp(1)
        self.lds_wait_flag('L_c0_wxx', LF_XX, 8)
        self.stamp(2)
        a(f'ds_read_b128 v[8:11], v2 offset:{LXXT}')
        for n in range(9):
            xb = 8 if n == 0 else TB + 16 * (n - 1)
            a('s_waitcnt lgkmcnt(0)')
            for k in range(4):
                i = 4 * n + k
                A = 16 if i % 2 == 0 else 20
                self.abuild(A, xb + k)
                a(f's_waitcnt vmcnt({35 - i})')
                c = '0' if i == 0 else 'v[12:15]'
                a(f'v_mfma_f32_16x16x32_bf16 v[12:15], {vr(A,4)}, {vr(TB+4*i,4)}, {c}')
                if k == 0 and n < 8:
                    a(f'ds_read_b128 {vr(TB + 16*n, 4)}, v2 offset:{LXXT + 16*(n+1)}')
        self.stamp(3)
        self.set_addr(9, 10)
        a('v_lshlrev_b32 v9, 1, v9')
        self.setsum2([12], [16])
        a(f"""
        v_mov_b32 v18, v17
        v_mov_b32 v17, s{sTAG}
        v_mov_b32 v19, s{sTAG}
        """)
        self.exec_set(self.SETMASK)
        a(f'buffer_store_dwordx4 v[16:19], v9, {sr(SRD_WS,4)}, s68 offen sc1')
        self.exec_all()
        self.stamp(4)
        a('s_branch L_ctail')
        a.label('L_c0_skip')
        a(f"""
        s_barrier
        s_waitcnt lgkmcnt(0)
        s_add_u32 s{sTAG}, s{sTAG}, 1
        s_branch L_ctail
        """)

    def c1(self):
        a = self.a
        a.label('L_c1')
        a(f"""
        v_mov_b32 v8, -1
        v_mov_b32 v9, -1
        v_mov_b32 v10, -1
        v_mov_b32 v11, -1
        v_lshlrev_b32 v12, 4, v1             ; lane*16
        s_lshl_b32 s6, s{sSLOT}, 10
        s_add_u32 s6, s6, {WS_OP}
        buffer_store_dwordx4 v[8:11], v12, {sr(SRD_WS,4)}, s6 offen sc1
        s_cmp_lt_u32 s{sS}, 7
        s_cbranch_scc1 L_c1_ap
        s_mul_i32 s6, s{sF}, 2304
        s_add_u32 s6, s6, {WS_YP}
        buffer_store_dwordx4 v[8:11], v12, {sr(SRD_WS,4)}, s6 offen sc1
        buffer_store_dwordx4 v[8:11], v12, {sr(SRD_WS,4)}, s6 offen offset:1024 sc1
        s_mov_b64 exec, 0xffff
        buffer_store_dwordx4 v[8:11], v12, {sr(SRD_WS,4)}, s6 offen offset:2048 sc1
        s_branch L_c1_st
        L_c1_ap:
        s_add_u32 s7, s{sS}, 2
        s_mov_b64 exec, 0xffff
        s_cmp_ge_u32 s{sS}, 2
        s_cbranch_scc1 L_c1_ap1
        s_lshl_b32 s7, s{sS}, 1
        s_mov_b32 exec_lo, -1
        L_c1_ap1:
        s_lshl_b32 s7, s7, 8
        s_mul_i32 s6, s{sG}, 2304
        s_add_u32 s6, s6, s7
        s_add_u32 s6, s6, {WS_AP}
        buffer_store_dwordx4 v[8:11], v12, {sr(SRD_WS,4)}, s6 offen sc1
        L_c1_st:
        s_mov_b64 exec, 1
        s_lshl_b32 s6, s{sSLOT}, 7
        s_add_u32 s6, s6, {WS_ST}
        buffer_store_dwordx4 v[8:11], v12, {sr(SRD_WS,4)}, s6 offen sc1
        s_mov_b64 exec, -1
        s_barrier                            ; B0
        s_waitcnt vmcnt(0) lgkmcnt(0)
        s_add_u32 s{sTAG}, s{sTAG}, 1
        v_mov_b32 v13, s{sTAG}
        s_lshl_b32 s6, s{sB}, 2
        s_add_u32 s6, s6, {WS_FLAGS}
        v_mov_b32 v15, 0
        s_mov_b64 exec, 1
        buffer_store_dword v13, v15, {sr(SRD_WS,4)}, s6 offen sc1
        s_mov_b64 exec, -1
        """)
        self.stamp(1)
        a(f"""
        v_lshlrev_b32 v8, 4, v1
        s_lshl_b32 s6, s{sG}, 11
        s_add_u32 s6, s6, {WS_QP}
        s_add_u32 s7, s6, {QP_P}
        s_add_u32 s64, s{PWS}, s6
        s_addc_u32 s65, s{PWS+1}, 0
        s_sleep {self.sl_q0}
        """)
        self.shint('L_c1_hint', 64, [4 + kh * QP_P + j * 512 for kh in range(2) for j in range(4)], 66)
        self.stamp(2)
        self.poll_begin('L_c1_q')
        a(f"""
        buffer_load_dwordx4 v[112:115], v8, {sr(SRD_WS,4)}, s6 offen sc1
        buffer_load_dwordx4 v[116:119], v8, {sr(SRD_WS,4)}, s6 offen offset:1024 sc1
        buffer_load_dwordx4 v[120:123], v8, {sr(SRD_WS,4)}, s7 offen sc1
        buffer_load_dwordx4 v[124:127], v8, {sr(SRD_WS,4)}, s7 offen offset:1024 sc1
        s_waitcnt vmcnt(0)
        """)
        self.tag_check(list(range(113, 128, 2)), 128, 129)
        self.poll_end_nz('L_c1_q', 128, sleep=self.sl_p1)
        a(f"""
        v_add_f32 v112, v112, v120
        v_add_f32 v114, v114, v122
        v_add_f32 v116, v116, v124
        v_add_f32 v118, v118, v126
        v_cvt_pk_bf16_f32 v112, v112, v114
        v_cvt_pk_bf16_f32 v113, v116, v118
        v_lshlrev_b32 v8, 2, v1
        ds_write_b32 v8, v112 offset:{LQ}
        ds_write_b32 v8, v113 offset:{LQ+256}
        s_waitcnt lgkmcnt(0)
        """)
        self.stamp(3)
        a('s_branch L_ctail')

    def c2(self):
        a = self.a
        a.label('L_c2')
        a(f"""
        v_mov_b32 v13, 0
        v_mov_b32 v14, {LF_XX}
        ds_write_b32 v14, v13
        ds_write_b32 v14, v13 offset:4
        s_cmp_eq_u32 s60, 0
        s_cbranch_scc1 L_c2_skip
        s_cmp_eq_u32 s60, 2
        s_cbranch_scc1 L_c2_h
        s_mul_i32 s6, s62, 576
        s_add_u32 s{SRD_A}, s{PC}, s6
        s_addc_u32 s{SRD_A+1}, s{PC+1}, 0
        s_mov_b32 s{SRD_A+2}, 576
        s_mov_b32 s{SRD_A+3}, 0x20000
        v_lshlrev_b32 v8, 4, v1
        buffer_load_dwordx4 v[12:15], v8, {sr(SRD_A,4)}, 0 offen
        s_waitcnt lgkmcnt(0)
        s_barrier                            ; B0
        s_waitcnt vmcnt(0)
        s_add_u32 s{sTAG}, s{sTAG}, 1
        """)
        xs = list(range(16, 24))
        for i in range(4): self.unpack(12 + i, 16 + 2 * i, 17 + 2 * i)
        self.silu(xs, list(range(24, 32)))
        for i in range(8): a(f'v_cvt_pk_bf16_f32 v{16+i}, v{16+i}, v{16+i}')
        a(f'v_lshlrev_b32 v8, 2, v1')
        self.exec_set((1 << 36) - 1)
        for e in range(8): a(f'ds_write_b32 v8, v{16+e} offset:{LXXT + 144*e}')
        self.exec_all()
        a('s_branch L_c2_flag')
        a.label('L_c2_h')
        self.srd_plain(SRD_A, PX, 1152)
        a(f"""
        v_lshlrev_b32 v8, 5, v1
        buffer_load_dwordx4 v[12:15], v8, {sr(SRD_A,4)}, 0 offen
        buffer_load_dwordx4 v[16:19], v8, {sr(SRD_A,4)}, 0 offen offset:16
        s_mul_i32 s6, s62, 576
        v_lshlrev_b32 v9, 2, v1
        buffer_load_dword v20, v9, {sr(SRD_A,4)}, s6 offen
        buffer_load_dword v21, v9, {sr(SRD_A,4)}, s6 offen offset:256
        buffer_load_dword v22, v9, {sr(SRD_A,4)}, s6 offen offset:512
        s_waitcnt lgkmcnt(0)
        s_barrier                            ; B0
        s_waitcnt vmcnt(0)
        s_add_u32 s{sTAG}, s{sTAG}, 1
        """)
        xv = list(range(32, 48))
        for i in range(8): self.unpack(12 + i, 32 + 2 * i, 33 + 2 * i)
        a(f'v_add_f32 v26, v32, v33')
        for r in xv[2:]: a(f'v_add_f32 v26, v26, v{r}')
        self.wave_red('v_add_f32', [26], [27])
        a(f'v_mul_f32 v24, {f2u(1.0/576):#x}, v26')
        a('v_mov_b32 v26, 0')
        self.exec_set((1 << 36) - 1)
        for r in xv:
            a(f'v_sub_f32 v29, v{r}, v24')
            a(f'v_fmac_f32 v26, v29, v29')
        self.exec_all()
        self.wave_red('v_add_f32', [26], [27])
        a(f'v_mul_f32 v25, {f2u(1.0/576):#x}, v26')
        self.ln_finish(24, 25, 27)
        for i in range(3): self.unpack(20 + i, 32 + 2 * i, 33 + 2 * i)
        xr = list(range(32, 38))
        self.ln_apply(xr, mean=24, sd=25, tmps=[26, 27, 28])
        self.stamp(1)
        a(f"""
        s_mul_i32 s6, s62, {288*8}
        s_add_u32 s6, s6, {WS_MODP}
        s_add_u32 s7, s6, {MODP_P}
        s_add_u32 s8, s6, {576*8}
        s_add_u32 s9, s7, {576*8}
        v_lshlrev_b32 v8, 4, v1
        s_sleep {self.sl_m0}
        """)
        self.poll_begin('L_c2_mod')
        for base, so in ((64, 's6'), (76, 's8'), (88, 's7'), (100, 's9')):
            a(f'buffer_load_dwordx4 {vr(base,4)}, v8, {sr(SRD_WS,4)}, {so} offen sc1')
            a(f'buffer_load_dwordx4 {vr(base+4,4)}, v8, {sr(SRD_WS,4)}, {so} offen offset:1024 sc1')
        for base in (64, 76, 88, 100):
            a(f'v_mov_b32 v{base+9}, s{sTAG}'); a(f'v_mov_b32 v{base+11}, s{sTAG}')
            a(f'v_mov_b32 v{base+8}, 0'); a(f'v_mov_b32 v{base+10}, 0')
        a('s_mov_b64 exec, 0xffff')
        for base, so in ((64, 's6'), (76, 's8'), (88, 's7'), (100, 's9')):
            a(f'buffer_load_dwordx4 {vr(base+8,4)}, v8, {sr(SRD_WS,4)}, {so} offen offset:2048 sc1')
        a('s_mov_b64 exec, -1')
        a('s_waitcnt vmcnt(0)')
        self.tag_check(list(range(65, 112, 2)), 48, 49)
        self.poll_end_nz('L_c2_mod', 48, sleep=self.sl_p1)
        self.stamp(2)
        for e in range(6):
            a(f'v_add_f32 v{48+e}, v{64+2*e}, v{88+2*e}')
            a(f'v_add_f32 v{56+e}, v{76+2*e}, v{100+2*e}')
        sa = list(range(48, 54)); ca = list(range(56, 62))
        T = list(range(64, 70))
        self.rnd(sa + ca, T)
        for r in ca: a(f'v_add_f32 v{r}, 1.0, v{r}')
        self.rnd(ca, T)
        for x, c in zip(xr, ca): a(f'v_mul_f32 v{x}, v{x}, v{c}')
        self.rnd(xr, T)
        for x, s, d in zip(xr, sa, range(16, 22)): a(f'v_add_f32 v{d}, v{x}, v{s}')
        for i in range(6): a(f'v_cvt_pk_bf16_f32 v{16+i}, v{16+i}, v{16+i}')
        a(f"""
        v_and_b32 v8, 3, v1
        v_mul_u32_u24 v8, 288, v8
        v_lshrrev_b32 v9, 2, v1
        v_lshlrev_b32 v9, 2, v9
        v_add_u32 v8, v8, v9
        ds_write_b32 v8, v16 offset:{LXXT}
        ds_write_b32 v8, v17 offset:{LXXT+144}
        ds_write_b32 v8, v18 offset:{LXXT+64}
        ds_write_b32 v8, v19 offset:{LXXT+64+144}
        s_mov_b64 exec, 0xffff
        ds_write_b32 v8, v20 offset:{LXXT+128}
        ds_write_b32 v8, v21 offset:{LXXT+128+144}
        s_mov_b64 exec, -1
        """)
        a.label('L_c2_flag')
        a(f"""
        v_mov_b32 v13, 1
        v_mov_b32 v14, {LF_XX}
        s_waitcnt lgkmcnt(0)
        s_mov_b64 exec, 1
        ds_write_b32 v14, v13
        s_mov_b64 exec, -1
        """)
        self.stamp(3)
        a('s_branch L_ctail')
        a.label('L_c2_skip')
        a(f"""
        s_waitcnt lgkmcnt(0)
        s_barrier
        s_add_u32 s{sTAG}, s{sTAG}, 1
        """)

    def ln_finish(self, mean, var, t):
        a = self.a
        self.rnd([mean, var], [t])
        a(f'v_add_f32 v{var}, {f2u(1e-5):#x}, v{var}')
        self.rnd([var], [t])
        a(f'v_sqrt_f32 v{var}, v{var}')
        self.rnd([var], [t])
        a(f'v_rcp_f32 v{var}, v{var}')

    def ln_apply(self, xr, mean, sd, tmps):
        a = self.a
        for r in xr: a(f'v_sub_f32 v{r}, v{r}, v{mean}')
        self.rnd(xr, tmps)
        for r in xr: a(f'v_mul_f32 v{r}, v{r}, v{sd}')
        self.rnd(xr, tmps)

    def ffn_consts_issue(self):
        a = self.a
        for p, so in ((0, 8), (1, 9)):
            for arr in range(3):
                if arr: a(f's_add_u32 s10, s{so}, {576*8*arr}')
                sreg = f's{so}' if arr == 0 else 's10'
                b = 64 + 24 * p + 8 * arr
                a(f'buffer_load_dwordx4 {vr(b,4)}, v9, {sr(SRD_WS,4)}, {sreg} offen sc1')
                a(f'buffer_load_dwordx4 {vr(b+4,4)}, v9, {sr(SRD_WS,4)}, {sreg} offen offset:16 sc1')
    def ffn_consts_prep(self):
        a = self.a
        self.srd_plain(SRD_B, PX, 1152)
        a(f"""
        s_mul_i32 s6, s{sW}, 288
        v_lshlrev_b32 v8, 3, v1
        s_mul_i32 s7, s{sW}, {144*8}
        s_add_u32 s8, s7, {WS_MODP + 1152*8}
        s_add_u32 s9, s8, {MODP_P}
        v_lshlrev_b32 v9, 5, v1
        """)
        self.exec_set((1 << 36) - 1)
        a(f'buffer_load_dwordx2 v[40:41], v8, {sr(SRD_B,4)}, s6 offen')
        self.exec_all()
    def ffn_consts_finish(self):
        a = self.a
        self.exec_set((1 << 36) - 1)
        a(f's_mov_b32 s{sCNT}, 0')
        a('s_branch L_ct_mod_chk')
        a.label('L_ct_mod')
        self.ffn_consts_issue()
        a.label('L_ct_mod_chk')
        a('s_waitcnt vmcnt(0)')
        self.tag_check(list(range(65, 112, 2)), 44, 45)
        self.poll_end_nz('L_ct_mod', 44, sleep=4)
        for i in range(12): a(f'v_add_f32 v{24+i}, v{64+2*i}, v{88+2*i}')
        T = list(range(42, 48))
        self.rnd(list(range(24, 36)), T)
        for i in range(4): a(f'v_add_f32 v{32+i}, 1.0, v{32+i}')
        self.rnd(list(range(32, 36)), T)
        self.unpack(40, 36, 37); self.unpack(41, 38, 39)
        self.exec_all()

    def red_consts(self):
        a = self.a
        self.srd_plain(SRD_B, PX, 1152)
        a(f"""
        v_and_b32 v8, 3, v1
        v_lshlrev_b32 v9, 5, v8
        v_lshlrev_b32 v8, 3, v8
        s_lshl_b32 s6, s69, 5
        buffer_load_dwordx2 v[40:41], v8, {sr(SRD_B,4)}, s6 offen
        s_lshl_b32 s7, s69, 7
        s_add_u32 s8, s7, {WS_MODP + 1152*8}
        s_add_u32 s9, s8, {MODP_P}
        s_add_u32 s10, s8, {1728*8}
        s_add_u32 s11, s9, {1728*8}
        """)
        self.poll_begin('L_ct_red')
        for b, so in ((128, 's8'), (136, 's10'), (144, 's9'), (152, 's11')):
            a(f'buffer_load_dwordx4 {vr(b,4)}, v9, {sr(SRD_WS,4)}, {so} offen sc1')
            a(f'buffer_load_dwordx4 {vr(b+4,4)}, v9, {sr(SRD_WS,4)}, {so} offen offset:16 sc1')
        a('s_waitcnt vmcnt(0)')
        self.tag_check(list(range(129, 160, 2)), 44, 45)
        self.poll_end_nz('L_ct_red', 44, sleep=4)
        for i in range(8): a(f'v_add_f32 v{24+i}, v{128+2*i}, v{144+2*i}')
        self.rnd(list(range(24, 32)), list(range(44, 48)))
        self.unpack(40, 36, 37); self.unpack(41, 38, 39)

    def ctail(self):
        a = self.a
        a.label('L_ctail')
        self.stamp(5)
        WB = 64
        a(f"""
        s_mov_b32 s68, 0
        s_sub_u32 s6, s{sS}, 2
        s_cmp_ge_u32 s6, 3
        s_cbranch_scc1 L_ct_nored
        s_cmp_ge_u32 s{sG}, 12
        s_cbranch_scc1 L_ct_nored
        s_cmp_lg_u32 s{sW}, 3
        s_cbranch_scc1 L_ct_nored
        s_mov_b32 s68, 1
        s_mul_i32 s69, s{sG}, 3
        s_add_u32 s69, s69, s6               ; r
        """)
        self.red_consts()
        a.label('L_ct_nored')
        self.masks(4, 8)
        a(f"""
        s_cmp_ge_u32 s{sS}, 7
        s_cbranch_scc1 L_ct_ffn
        s_add_u32 s71, s{sS}, 2              ; ct0
        s_mov_b32 s72, 1                     ; ntiles
        s_cmp_ge_u32 s{sS}, 2
        s_cbranch_scc1 L_ct_wo1
        s_lshl_b32 s71, s{sS}, 1
        s_mov_b32 s72, 2
        L_ct_wo1:
        s_lshl_b32 s6, s{sG}, 8
        s_lshl_b32 s7, s{sW}, 6
        s_add_u32 s6, s6, s7
        s_mul_i32 s6, s6, 1152
        s_lshl_b32 s7, s71, 7
        s_add_u32 s6, s6, s7
        """)
        self.srd(SRD_A, PWO, 6, f'{4096*1152}')
        a(f"""
        s_sub_u32 s{SRD_A+2}, s{SRD_A+2}, s6
        v_lshrrev_b32 v8, 3, v1
        v_mul_u32_u24 v8, 1152, v8
        v_and_b32 v9, 7, v1
        v_lshl_add_u32 v8, v9, 4, v8
        s_barrier                            ; B1
        s_barrier                            ; B2/Bv
        s_barrier                            ; Bv/B2
        s_mov_b32 s7, 0
        """)
        for i in range(8):
            a(f'buffer_load_dwordx4 {vr(WB+4*i,4)}, v8, {sr(SRD_A,4)}, s7 offen{NT}')
            if i < 7: a('s_add_u32 s7, s7, 9216')
        a(f"""
        s_cmp_eq_u32 s72, 1
        s_cbranch_scc1 L_ct_wo2
        s_mov_b32 s7, 0
        """)
        for i in range(8):
            a(f'buffer_load_dwordx4 {vr(WB+32+4*i,4)}, v8, {sr(SRD_A,4)}, s7 offen offset:128{NT}')
            if i < 7: a('s_add_u32 s7, s7, 9216')
        a.label('L_ct_wo2')
        self.stamp(6)
        self.hop1_prep()
        a('s_barrier')
        self.stamp(7)
        self.hop1(WB)
        a(f"""
        s_cmp_eq_u32 s68, 1
        s_cbranch_scc1 L_ct_red_go
        """)
        self.end_wave()
        a.label('L_ct_red_go')
        self.reducer()
        a.label('L_ct_ffn')
        self.ffn_consts_prep()
        a('s_barrier')
        self.exec_set((1 << 36) - 1)
        self.ffn_consts_issue()
        self.exec_all()
        a('s_barrier')
        self.ffn_consts_finish()
        self.w2_loads(48)
        self.stamp(12)
        a('s_barrier')
        self.w2_issue(48)
        self.stamp(6)
        a('s_barrier')
        self.stamp(7)
        self.hop2()

    def hop1_prep(self):
        a = self.a
        a(f"""
        v_lshrrev_b32 v8, 4, v1
        v_lshlrev_b32 v9, 10, v8             ; pp*1024
        v_and_b32 v10, 15, v1
        v_lshl_add_u32 v9, v10, 4, v9
        v_lshlrev_b32 v8, 7, v8
        s_lshl_b32 s6, s{sG}, 14
        s_lshl_b32 s7, s{sW}, 8
        s_add_u32 s6, s6, s7
        s_add_u32 s6, s6, {WS_OP}
        s_lshl_b32 s8, s{sG}, 11
        s_lshr_b32 s7, s{sW}, 1
        s_lshl_b32 s7, s7, 3
        s_add_u32 s8, s8, s7
        s_add_u32 s8, s8, {WS_ST}
        s_add_u32 s9, s6, 4096
        s_add_u32 s10, s6, 8192
        s_add_u32 s11, s6, 12288
        s_lshl_b32 s7, s{sW}, 8
        v_lshlrev_b32 v10, 4, v10
        v_add_u32 v10, s7, v10
        v_lshrrev_b32 v11, 3, v1
        v_lshlrev_b32 v11, 2, v11
        v_add_u32 v11, s7, v11
        s_mul_i32 s73, s{sG}, 2304
        s_lshl_b32 s7, s71, 8
        s_add_u32 s73, s73, s7
        s_add_u32 s73, s73, {WS_AP}
        """)
        self.set_addr(2, 40)
        a(f"""
        s_lshl_b32 s7, s{sW}, 9
        v_add_u32 v2, s7, v2
        v_lshlrev_b32 v41, 4, v1             ; v41 = l*16
        """)

    def hop1(self, WB):
        a = self.a
        GB = 128
        self.poll_begin('L_h1')
        for i, so in enumerate(('s6', 's9', 's10', 's11')):
            a(f'buffer_load_dwordx4 {vr(GB+4*i,4)}, v9, {sr(SRD_WS,4)}, {so} offen sc1')
        for i in range(4):
            a(f'buffer_load_dwordx2 {vr(144+2*i,2)}, v8, {sr(SRD_WS,4)}, s8 offen offset:{512*i} sc1')
        a('s_waitcnt vmcnt(0)')
        a(f"""
        v_max3_f32 v152, v144, v146, v148
        v_max_f32 v152, v152, v150
        """)
        self.xgroup('v_max_f32', [152], [153])
        for i in range(4): a(f'v_sub_f32 v{144+2*i}, v{144+2*i}, v152')
        for i in range(4): a(f'v_mul_f32 v{144+2*i}, s{sLOG2E}, v{144+2*i}')
        for i in range(4): a(f'v_exp_f32 v{144+2*i}, v{144+2*i}')
        O = [154, 155, 156, 157, 158]
        for r in range(4): a(f'v_mul_f32 v{154+r}, v144, v{GB+r}')
        a('v_mul_f32 v158, v144, v145')
        for i in range(1, 4):
            for r in range(4): a(f'v_fmac_f32 v{154+r}, v{144+2*i}, v{GB+4*i+r}')
            a(f'v_fmac_f32 v158, v{144+2*i}, v{145+2*i}')
        self.xgroup('v_add_f32', O, [159, 160, 161, 162, 163])
        a(f"""
        v_add_f32 v159, v154, v155
        v_add_f32 v160, v156, v157
        v_rcp_f32 v161, v158
        v_add_f32 v159, v159, v160
        v_add_f32 v159, v159, v158
        """)
        self.poll_end('L_h1', 159)
        self.stamp(8)
        for r in range(4): a(f'v_mul_f32 v{154+r}, v{154+r}, v161')
        for r in range(4): a(f'v_cvt_pk_bf16_f32 v{156+r if False else 154+r}, v{154+r}, v{154+r}')
        for r in range(4): a(f'v_mov_b32 v{128+r}, v{154+r}')
        a(f"""
        s_mov_b64 exec, 0xffff
        ds_write_b128 v10, v[128:131] offset:{LOXX}
        s_mov_b64 exec, -1
        s_waitcnt lgkmcnt(0)
        """)
        for i in range(8): a(f'ds_read_b32 v{132+i}, v11 offset:{LOXX + 32*i}')
        for i in range(8):
            A = 16 if i % 2 == 0 else 20
            a(f's_waitcnt lgkmcnt({7-i})')
            self.abuild(A, 132 + i)
            c = '0' if i == 0 else 'v[144:147]'
            a(f'v_mfma_f32_16x16x32_bf16 v[144:147], {vr(A,4)}, {vr(WB+4*i,4)}, {c}')
            a(f's_cmp_eq_u32 s72, 1')
            lab = a.newlabel('L_h1s')
            a(f's_cbranch_scc1 {lab}')
            c = '0' if i == 0 else 'v[148:151]'
            a(f'v_mfma_f32_16x16x32_bf16 v[148:151], {vr(A,4)}, {vr(WB+32+4*i,4)}, {c}')
            a.label(lab)
        a('s_nop 7')
        self.setsum2([144, 148], [152, 154])
        self.exec_set(self.SETMASK)
        a(f'ds_write_b64 v2, v[152:153] offset:{LAP}')
        a(f'ds_write_b64 v2, v[154:155] offset:{LAP+256}')
        self.exec_all()
        a(f"""
        s_waitcnt lgkmcnt(0)
        s_barrier
        s_cmp_lg_u32 s{sW}, 0
        s_cbranch_scc1 L_h1_nopub
        s_mov_b64 exec, 0xffff
        s_cmp_eq_u32 s72, 1
        s_cbranch_scc1 L_h1_p1
        s_mov_b32 exec_lo, -1
        L_h1_p1:
        ds_read_b128 v[128:131], v41 offset:{LAP}
        ds_read_b128 v[132:135], v41 offset:{LAP+512}
        ds_read_b128 v[136:139], v41 offset:{LAP+1024}
        ds_read_b128 v[140:143], v41 offset:{LAP+1536}
        s_waitcnt lgkmcnt(0)
        """)
        for r in range(4):
            a(f'v_add_f32 v{128+r}, v{128+r}, v{132+r}')
            a(f'v_add_f32 v{136+r}, v{136+r}, v{140+r}')
        for r in range(4): a(f'v_add_f32 v{128+r}, v{128+r}, v{136+r}')
        a(f"""
        buffer_store_dwordx4 v[128:131], v41, {sr(SRD_WS,4)}, s73 offen sc1
        s_mov_b64 exec, -1
        L_h1_nopub:
        """)
        self.stamp(9)

    def hop2(self):
        a = self.a
        GB = 104
        a(f"""
        v_lshlrev_b32 v9, 4, v1
        s_mul_i32 s7, s{sW}, 576
        v_add_u32 v8, s7, v9
        s_add_u32 s7, s7, {WS_AP}
        s_lshl_b32 s6, s{sW}, 4
        v_mov_b32 v10, s6
        v_mov_b32 v11, 0
        s_sleep {self.sl_h2}
        """)
        self.exec_set((1 << 36) - 1)
        self.poll_begin('L_h2')
        a('s_mov_b32 s6, s7')
        for p in range(16):
            a(f'buffer_load_dwordx4 {vr(GB+4*p,4)}, v9, {sr(SRD_WS,4)}, s6 offen sc1')
            if p < 15: a('s_add_u32 s6, s6, 2304')
        a('s_waitcnt vmcnt(0)')
        for st in (8, 4, 2, 1):
            for p in range(st):
                for r in range(4): a(f'v_add_f32 v{GB+4*p+r}, v{GB+4*p+r}, v{GB+4*(p+st)+r}')
        a(f"""
        v_add_f32 v12, v{GB}, v{GB+1}
        v_add_f32 v13, v{GB+2}, v{GB+3}
        v_add_f32 v12, v12, v13
        """)
        self.poll_end('L_h2', 12)
        self.stamp(10)
        av = [GB, GB + 1, GB + 2, GB + 3]
        T = [12, 13]
        self.rnd(av, T)
        for r in range(4): a(f'v_mul_f32 v{GB+r}, v{GB+r}, v{24+r}')
        self.rnd(av, T)
        for r in range(4): a(f'v_add_f32 v{GB+r}, v{GB+r}, v{36+r}')
        self.rnd(av, T)
        a(f'v_readfirstlane_b32 s64, v{GB}')
        self.exec_all()
        a('v_mov_b32 v16, 0'); a('v_mov_b32 v17, 0')
        self.exec_set((1 << 36) - 1)
        for r in range(4): a(f'v_subrev_f32 v{112+r}, s64, v{GB+r}')
        a('v_add_f32 v16, v112, v113'); a('v_mul_f32 v17, v112, v112')
        a('v_add_f32 v18, v114, v115'); a('v_fmac_f32 v17, v113, v113')
        a('v_add_f32 v16, v16, v18'); a('v_fmac_f32 v17, v114, v114')
        a('v_fmac_f32 v17, v115, v115')
        self.exec_all()
        self.wave_red('v_add_f32', [16, 17], [18, 19])
        a(f"""
        v_mov_b32 v18, v17
        v_mov_b32 v17, v16
        v_mov_b32 v16, s64
        v_mov_b32 v19, 0
        s_mov_b64 exec, 1
        ds_write_b128 v10, v[16:19] offset:{LST2}
        s_mov_b64 exec, -1
        s_waitcnt lgkmcnt(0)
        s_barrier                            ; Bh1
        ds_read_b128 v[116:119], v11 offset:{LST2}
        ds_read_b128 v[120:123], v11 offset:{LST2+16}
        ds_read_b128 v[124:127], v11 offset:{LST2+32}
        ds_read_b128 v[128:131], v11 offset:{LST2+48}
        s_waitcnt lgkmcnt(0)
        v_add_f32 v16, v116, v120
        v_add_f32 v17, v124, v128
        v_add_f32 v18, v117, v121
        v_add_f32 v19, v125, v129
        v_add_f32 v16, v16, v17
        v_add_f32 v18, v18, v19
        v_mul_f32 v16, 0x43100000, v16       ; *144
        v_add_f32 v16, v16, v18
        v_mul_f32 v16, {f2u(1.0/576):#x}, v16   ; mean (f32)
        """)
        for w in range(4): a(f'v_sub_f32 v{116+4*w}, v{116+4*w}, v16')
        for w in range(4): a(f'v_add_f32 v{117+4*w}, v{117+4*w}, v{117+4*w}')
        for w in range(4): a(f'v_fmac_f32 v{117+4*w}, 0x43100000, v{116+4*w}')
        for w in range(4): a(f'v_fmac_f32 v{118+4*w}, v{116+4*w}, v{117+4*w}')
        a(f"""
        v_add_f32 v17, v118, v122
        v_add_f32 v18, v126, v130
        v_add_f32 v17, v17, v18
        v_mul_f32 v17, {f2u(1.0/576):#x}, v17
        """)
        self.ln_finish(16, 17, 18)
        self.ln_apply(av, mean=16, sd=17, tmps=T)
        for r in range(4): a(f'v_mul_f32 v{GB+r}, v{GB+r}, v{32+r}')
        self.rnd(av, T)
        for r in range(4): a(f'v_add_f32 v{GB+r}, v{GB+r}, v{28+r}')
        for r in range(4): a(f'v_cvt_pk_bf16_f32 v{GB+r}, v{GB+r}, v{GB+r}')
        self.exec_set((1 << 36) - 1)
        a(f'ds_write_b128 v8, {vr(GB,4)} offset:{LH2}')
        self.exec_all()
        a('s_waitcnt lgkmcnt(0)')
        self.stamp(11)
        a('s_barrier')
        a('s_barrier')
        self.stamp(9)
        self.gemv2(48, 104)
        self.stamp(13)
        self.end_wave()

    def reducer(self):
        a = self.a
        GB = 96
        a(f"""
        v_lshrrev_b32 v8, 2, v1
        v_mul_u32_u24 v8, 2304, v8
        v_and_b32 v9, 3, v1
        v_lshl_add_u32 v8, v9, 4, v8
        s_lshl_b32 s7, s69, 6
        s_add_u32 s6, s7, {WS_AP}
        """)
        self.srd_plain(SRD_A, POUT, 1152)
        self.poll_begin('L_r1')
        a(f"""
        buffer_load_dwordx4 v[12:15], v8, {sr(SRD_WS,4)}, s6 offen sc1
        s_waitcnt vmcnt(0)
        """)
        av = [12, 13, 14, 15]
        self.row_red('v_add_f32', av, rors=(8, 4))
        self.xgroup('v_add_f32', av, [16, 17, 18, 19])
        a(f"""
        v_add_f32 v16, v12, v13
        v_add_f32 v17, v14, v15
        v_add_f32 v16, v16, v17
        """)
        self.poll_end('L_r1', 16, sleep=2)
        self.rnd(av, [16, 17])
        for r in range(4): a(f'v_mul_f32 v{12+r}, v{12+r}, v{24+r}')
        self.rnd(av, [16, 17])
        for r in range(4): a(f'v_add_f32 v{32+r}, v{12+r}, v{36+r}')
        self.rnd([32, 33, 34, 35], [16, 17])
        a(f"""
        v_lshlrev_b32 v10, 3, v1
        s_lshl_b32 s10, s69, 5
        v_mov_b32 v14, s{sTAG}
        v_mov_b32 v15, {WS_EPOCH}
        """)
        self.stamp(10)
        a(f's_add_u32 s7, s7, {WS_YP}')
        a(f's_sleep {self.sl_h2}')
        self.poll_begin('L_r2')
        a('s_mov_b32 s6, s7')
        for i in range(9):
            a(f'buffer_load_dwordx4 {vr(GB+4*i,4)}, v8, {sr(SRD_WS,4)}, s6 offen sc1')
            if i < 8: a(f's_add_u32 s6, s6, {16*2304}')
        a('s_waitcnt vmcnt(0)')
        for (x, y) in ((0, 1), (2, 3), (4, 5), (6, 7), (0, 2), (4, 6), (0, 8), (0, 4)):
            for r in range(4): a(f'v_add_f32 v{GB+4*x+r}, v{GB+4*x+r}, v{GB+4*y+r}')
        yv = [GB, GB + 1, GB + 2, GB + 3]
        self.row_red('v_add_f32', yv, rors=(8, 4))
        self.xgroup('v_add_f32', yv, [16, 17, 18, 19])
        a(f"""
        v_add_f32 v16, v{GB}, v{GB+1}
        v_add_f32 v17, v{GB+2}, v{GB+3}
        v_add_f32 v16, v16, v17
        """)
        self.poll_end('L_r2', 16)
        self.stamp(11)
        self.rnd(yv, [16, 17])
        for r in range(4): a(f'v_mul_f32 v{GB+r}, v{GB+r}, v{28+r}')
        self.rnd(yv, [16, 17])
        for r in range(4): a(f'v_add_f32 v{GB+r}, v{GB+r}, v{32+r}')
        a(f"""
        v_cvt_pk_bf16_f32 v12, v{GB}, v{GB+1}
        v_cvt_pk_bf16_f32 v13, v{GB+2}, v{GB+3}
        s_mov_b64 exec, 0xf
        buffer_store_dwordx2 v[12:13], v10, {sr(SRD_A,4)}, s10 offen
        s_mov_b64 exec, 1
        s_cmp_lg_u32 s69, 0
        s_cbranch_scc1 L_r_noepoch
        buffer_store_dword v14, v15, {sr(SRD_WS,4)}, 0 offen sc1
        L_r_noepoch:
        s_mov_b64 exec, -1
        """)
        self.end_wave()

    def build(self):
        self.prologue()
        self.stream()
        self.chain()
        self.a.label('L_exit')
        self.a('s_endpgm')
        self.a.label('L_code_end')
        body = self.a.text()
        return wrap(body, 256, 768, LDS_BYTES, 168)

if __name__ == '__main__':
    import argparse
    ap = argparse.ArgumentParser()
    ap.add_argument('-o', default='k.s'); ap.add_argument('--diag', action='store_true')
    ap.add_argument('--depth', type=int, default=3)
    for n, d in (('sl_stream', 16), ('sl_p1', 4), ('sl_q0', 32), ('sl_m0', 8), ('sl_h2', 16)):
        ap.add_argument('--' + n, type=int, default=d)
    ap.add_argument('--nopf', action='store_true')
    ap.add_argument('--nb1', type=int, default=10); ap.add_argument('--extra', type=int, default=2); ap.add_argument('--sl_hint', type=int, default=8)
    args = ap.parse_args()
    g = Gen(depth=args.depth, diag=args.diag, sl_stream=args.sl_stream, sl_p1=args.sl_p1, sl_q0=args.sl_q0, sl_m0=args.sl_m0, sl_h2=args.sl_h2, prefetch_code=not args.nopf, nb1=args.nb1, extra=args.extra, sl_hint=args.sl_hint)
    s = g.build()
    open(args.o, 'w').write(s)
    print('hazard pads inserted:', g.a.ninsert, 'lines', s.count('\n'))
```

```python
import sys, struct
from asmgen import *

WS_EPOCH = 0x0
WS_FLAGS = 0x1000
WS_MODP = 0x2000
MODP_P = 3456 * 8
WS_QP = 0x10000
QP_P = 4096 * 8
WS_OP = 0x20000
WS_ST = 0x60000
WS_AP = 0x70000
WS_YP = 0x80000
WS_UX = 0x7A000
WS_DIAG = 0x800000
WS_SRD_SIZE = 0x1000000
LQ = 0x0000; LMX = 0x0200; LLS = 0x0240; LST2 = 0x0280; LF_XX = 0x02C4; LCNT = 0x02C8; LCNT2 = 0x02CC
LH2 = 0x0300
LUS = 0x1000
LUP = 0x0C00
LAP = 0x0E00
LXXT = 0x1700; LOXX = 0x1C00; LOP = 0x2000
LDS_BYTES = 0x4000
sB = 2; sW = 3; sG = 4; sS = 5
PX, PK, PV, PWQ, PWO, PW1, PW2, PC, PWM, POUT, PDBG, PWS = 16, 18, 20, 22, 24, 28, 30, 32, 34, 36, 38, 40
sTAG = 42; sCNT = 43
SRD_WS = 44; SRD_A = 48; SRD_B = 52
sSCALE = 56; sLOG2E = 57; sF = 58; sSLOT = 59
SCALE = 0x3DB504F3
LOG2E = 0x3FB8AA3B
MAXSPIN = 200000
NT = ' nt'
ALL = (1 << 64) - 1

def f2u(x):
    return struct.unpack('<I', struct.pack('<f', x))[0]

class VM:
    def __init__(self, a):
        self.a = a; self.q = []; self.done = 0
    def issue(self, tag, text):
        self.a(text); self.q.append(tag)
    def wait(self, tag):
        i = self.q.index(tag)
        if i < self.done: return
        n = len(self.q) - 1 - i
        self.a(f's_waitcnt vmcnt({min(n, 63)})')
        self.done = i + 1

class Gen:
    def __init__(self, depth=3, diag=False, prefetch_code=True, sl_stream=16, sl_p1=4, sl_q0=32, sl_m0=8, sl_h2=16, nb1=16, extra=0, sl_hint=8, dk=3, early_wo=4, early_w2=4, hint=True, dt_wo=2, thr_wo=8, dt_ffn=2, thr_ffn=6, w2_first=False, pf1=False, pf2=False, pf_nt=True, pf1_wave=3, sl_ffn=0, early2=False, sl_q1=0):
        self.a = Asm(); self.depth = depth; self.diag = diag
        self.prefetch_code = prefetch_code; self.nb1 = nb1; self.extra = extra; self.sl_hint = sl_hint; self.dk = dk; self.early_wo = early_wo; self.early_w2 = early_w2; self.hint = hint; self.dt_wo = dt_wo; self.thr_wo = thr_wo; self.dt_ffn = dt_ffn; self.thr_ffn = thr_ffn; self.w2_first = w2_first; self.pf1 = pf1; self.pf2 = pf2; self.pf_policy = ' nt' if pf_nt else ''; self.pf1_wave = pf1_wave; self.sl_ffn = sl_ffn; self.early2 = early2; self.sl_q1 = sl_q1
        self.sl_stream = sl_stream; self.sl_p1 = sl_p1; self.sl_q0 = sl_q0; self.sl_m0 = sl_m0; self.sl_h2 = sl_h2

    def stamp(self, idx):
        if not self.diag: return
        self.a(f'''
        s_memrealtime s[92:93]
        s_waitcnt lgkmcnt(0)
        v_writelane_b32 v3, s92, {idx}
        ''')
    def exec_set(self, mask):
        a = self.a
        lo = mask & 0xffffffff; hi = mask >> 32
        if mask == ALL: a('s_mov_b64 exec, -1')
        elif hi == 0 and lo <= 0x7fffffff and False: a(f's_mov_b64 exec, {lo:#x}')
        else:
            a(f's_mov_b32 exec_lo, {lo:#x}'); a(f's_mov_b32 exec_hi, {hi:#x}')
    def exec_all(self): self.a('s_mov_b64 exec, -1')
    def rnd(self, regs, tmps):
        a = self.a
        regs = list(regs)
        if isinstance(tmps, int): tmps = [tmps]
        pairs = [(regs[i], regs[i + 1] if i + 1 < len(regs) else None) for i in range(0, len(regs), 2)]
        for c in range(0, len(pairs), len(tmps)):
            grp = pairs[c:c + len(tmps)]
            for (x, y), t in zip(grp, tmps): a(f'v_cvt_pk_bf16_f32 v{t}, v{x}, v{y if y is not None else x}')
            for (x, y), t in zip(grp, tmps):
                a(f'v_lshlrev_b32 v{x}, 16, v{t}')
                if y is not None: a(f'v_and_b32 v{y}, 0xffff0000, v{t}')
    def unpack(self, src, lo, hi):
        self.a(f'v_lshlrev_b32 v{lo}, 16, v{src}')
        self.a(f'v_and_b32 v{hi}, 0xffff0000, v{src}')
    def xstep(self, op, regs, tmps, st):
        a = self.a
        sw = 'v_permlane16_swap_b32' if st == 16 else 'v_permlane32_swap_b32'
        n = len(regs)
        for i, r in enumerate(regs): a(f'v_mov_b32 v{tmps[i]}, v{r}')
        for i, r in enumerate(regs): a(f'{sw} v{r}, v{tmps[i]}')
        for i, r in enumerate(regs): a(f'{op} v{r}, v{r}, v{tmps[i]}')
    def xgroup(self, op, regs, tmps, steps=(16, 32)):
        for st in steps: self.xstep(op, regs, tmps, st)
    def row_red(self, op, regs, rors=(8, 4, 2, 1)):
        a = self.a
        for n in rors:
            for r in regs:
                a(f'{op}_dpp v{r}, v{r}, v{r} row_ror:{n} row_mask:0xf bank_mask:0xf')
    def wave_red(self, op, regs, tmps):
        self.row_red(op, regs)
        self.xgroup(op, regs, tmps)
    def masks(self, m0, t):
        a = self.a
        a(f'''
        v_and_b32 v{t}, 1, v1
        v_lshlrev_b32 v{t}, 4, v{t}
        v_mov_b32 v{m0}, 0xffff
        v_lshlrev_b32 v{m0+3}, v{t}, v{m0}
        v_bfe_u32 v{t}, v1, 1, 2
        ''')
        for w in range(4):
            a(f'v_cmp_eq_u32 vcc, {w}, v{t}')
            a(f'v_cndmask_b32 v{m0+w}, 0, v{m0+3}, vcc')
    def abuild(self, dst, xx, m0=4):
        for w in range(4):
            self.a(f'v_and_b32 v{dst+w}, v{xx}, v{m0+w}')
    def poll_begin(self, name):
        self.a(f's_mov_b32 s{sCNT}, 0')
        self.a.label(name)
    def _poll_tail(self, name, sleep):
        a = self.a
        a(f'''
        s_cbranch_vccz {name}_done
        s_add_u32 s{sCNT}, s{sCNT}, 1
        s_cmp_lt_u32 s{sCNT}, {MAXSPIN}
        s_cbranch_scc0 {name}_done
        ''')
        if sleep: a(f's_sleep {sleep}')
        a(f'''
        s_branch {name}
        {name}_done:
        ''')
    def poll_end(self, name, chk, sleep=0):
        self.a(f'v_cmp_u_f32 vcc, v{chk}, v{chk}')
        self._poll_tail(name, sleep)
    def poll_end_nz(self, name, chk, sleep=1):
        self.a(f'v_cmp_ne_u32 vcc, 0, v{chk}')
        self._poll_tail(name, sleep)
    def sent_check(self, regs, t1, t2):
        a = self.a
        regs = list(regs)
        acc = [t1, t2]
        a(f'v_max3_u32 v{t1}, v{regs[0]}, v{regs[1]}, v{regs[2]}')
        a(f'v_max3_u32 v{t2}, v{regs[3]}, v{regs[4]}, v{regs[5]}')
        i = 6; k = 0
        while i < len(regs):
            r2 = regs[i + 1] if i + 1 < len(regs) else regs[i]
            a(f'v_max3_u32 v{acc[k]}, v{acc[k]}, v{regs[i]}, v{r2}')
            i += 2; k ^= 1
        a(f'v_max_u32 v{t1}, v{t1}, v{t2}')
        a(f'v_cmp_eq_u32 vcc, -1, v{t1}')
    def tag_check(self, tags, t1, t2):
        a = self.a
        tags = list(tags)
        a(f'v_min_u32 v{t1}, v{tags[0]}, v{tags[1]}')
        a(f'v_max_u32 v{t2}, v{tags[0]}, v{tags[1]}')
        for i in range(2, len(tags) - 1, 2):
            a(f'v_min3_u32 v{t1}, v{t1}, v{tags[i]}, v{tags[i+1]}')
            a(f'v_max3_u32 v{t2}, v{t2}, v{tags[i]}, v{tags[i+1]}')
        a(f'v_xor_b32 v{t1}, s{sTAG}, v{t1}')
        a(f'v_xor_b32 v{t2}, s{sTAG}, v{t2}')
        a(f'v_or_b32 v{t1}, v{t1}, v{t2}')
    def shint(self, name, base, offs, s0, sleep=None):
        a = self.a
        sleep = self.sl_hint if sleep is None else sleep
        a(f's_mov_b32 s{sCNT}, 0')
        a.label(name)
        for i, o in enumerate(offs): a(f's_load_dword s{s0+i}, {sr(base,2)}, {o} glc')
        a('s_waitcnt lgkmcnt(0)')
        a(f's_xor_b32 s6, s{s0}, s{sTAG}') if False else None
        a(f's_xor_b32 s15, s{s0}, s{sTAG}')
        for i in range(1, len(offs)):
            a(f's_xor_b32 s14, s{s0+i}, s{sTAG}')
            a(f's_or_b32 s15, s15, s14')
        a(f'''
        s_cmp_eq_u32 s15, 0
        s_cbranch_scc1 {name}_done
        s_add_u32 s{sCNT}, s{sCNT}, 1
        s_cmp_lt_u32 s{sCNT}, {MAXSPIN}
        s_cbranch_scc0 {name}_done
        s_sleep {sleep}
        s_branch {name}
        {name}_done:
        ''')
    def lds_wait_cnt(self, name, addr, n, vt):
        a = self.a
        a(f'''
        s_mov_b32 s{sCNT}, 0
        v_mov_b32 v{vt}, {addr}
        {name}:
        ds_read_b32 v{vt+1}, v{vt}
        s_add_u32 s{sCNT}, s{sCNT}, 1
        s_cmp_lt_u32 s{sCNT}, {MAXSPIN*8}
        s_cbranch_scc0 {name}_done
        s_waitcnt lgkmcnt(0)
        v_cmp_ne_u32 vcc, {n}, v{vt+1}
        s_cbranch_vccz {name}_done
        s_sleep 1
        s_branch {name}
        {name}_done:
        s_waitcnt lgkmcnt(0)
        ''')
    def lds_wait_flag(self, name, addr, vt):
        a = self.a
        a(f'''
        s_mov_b32 s{sCNT}, 0
        v_mov_b32 v{vt}, {addr}
        {name}:
        ds_read_b32 v{vt+1}, v{vt}
        s_waitcnt lgkmcnt(0)
        v_cmp_ne_u32 vcc, 1, v{vt+1}
        s_cbranch_vccz {name}_done
        s_add_u32 s{sCNT}, s{sCNT}, 1
        s_cmp_lt_u32 s{sCNT}, {MAXSPIN*8}
        s_cbranch_scc0 {name}_done
        s_sleep 1
        s_branch {name}
        {name}_done:
        ''')
    def flags_check(self, name, vo, vd, sleep=16):
        a = self.a
        a(f'''
        v_lshlrev_b32 v{vo}, 4, v1
        s_mov_b32 s{sCNT}, 0
        s_mov_b32 s6, {WS_FLAGS}
        {name}:
        buffer_load_dwordx4 {vr(vd,4)}, v{vo}, {sr(SRD_WS,4)}, s6 offen sc1
        s_waitcnt vmcnt(0)
        ''')
        self.tag_check([vd, vd + 1, vd + 2, vd + 3], vo + 1, vo + 2)
        self.a(f'v_cmp_ne_u32 vcc, 0, v{vo+1}')
        self._poll_tail(name, sleep)
    def srd(self, s, ptr, off_s, size):
        a = self.a
        a(f's_add_u32 s{s}, s{ptr}, s{off_s}')
        a(f's_addc_u32 s{s+1}, s{ptr+1}, 0')
        a(f's_mov_b32 s{s+2}, {size}')
        a(f's_mov_b32 s{s+3}, 0x20000')
    def srd_plain(self, s, ptr, size):
        a = self.a
        a(f's_mov_b32 s{s}, s{ptr}'); a(f's_mov_b32 s{s+1}, s{ptr+1}')
        a(f's_mov_b32 s{s+2}, {size}'); a(f's_mov_b32 s{s+3}, 0x20000')
    def setsum2(self, ds, outs):
        a = self.a
        for d in ds:
            a(f'v_permlane32_swap_b32 v{d}, v{d+2}')
            a(f'v_permlane32_swap_b32 v{d+1}, v{d+3}')
        for d, o in zip(ds, outs):
            a(f'v_add_f32_dpp v{o}, v{d+2}, v{d} row_ror:8 row_mask:0xf bank_mask:0xf')
            a(f'v_add_f32_dpp v{o+1}, v{d+3}, v{d+1} row_ror:8 row_mask:0xf bank_mask:0xf')
    def setsum4(self, ds, outs):
        a = self.a
        self.setsum2(ds, outs)
        for o in outs:
            a(f'v_mov_b32 v{o+2}, v{o}')
            a(f'v_mov_b32 v{o+3}, v{o+1}')
        for o in outs:
            a(f'v_permlane32_swap_b32 v{o}, v{o+2}')
            a(f'v_permlane32_swap_b32 v{o+1}, v{o+3}')
    def set_addr4(self, dst, t):
        a = self.a
        a(f'''
        v_and_b32 v{dst}, 7, v1
        v_lshlrev_b32 v{dst}, 5, v{dst}
        v_bfe_u32 v{t}, v1, 4, 1
        v_lshl_add_u32 v{dst}, v{t}, 4, v{dst}
        ''')
    def quad_gather(self, src, dst):
        for j in range(4):
            self.a(f'v_mov_b32_dpp v{dst+j}, v{src} quad_perm:[{j},{j},{j},{j}] row_mask:0xf bank_mask:0xf')
    def set_addr(self, dst, t):
        a = self.a
        a(f'''
        v_and_b32 v{dst}, 7, v1
        v_lshlrev_b32 v{dst}, 5, v{dst}
        v_bfe_u32 v{t}, v1, 4, 1
        v_lshl_add_u32 v{dst}, v{t}, 4, v{dst}
        v_lshrrev_b32 v{t}, 5, v1
        v_lshl_add_u32 v{dst}, v{t}, 3, v{dst}
        ''')
    SETMASK = 0x00FF00FF00FF00FF
    def silu(self, regs, tmps):
        a = self.a
        for r, t in zip(regs, tmps): a(f'v_mul_f32 v{t}, 0xbfb8aa3b, v{r}')
        for r, t in zip(regs, tmps): a(f'v_exp_f32 v{t}, v{t}')
        for r, t in zip(regs, tmps): a(f'v_add_f32 v{t}, 1.0, v{t}')
        for r, t in zip(regs, tmps): a(f'v_rcp_f32 v{t}, v{t}')
        for r, t in zip(regs, tmps): a(f'v_mul_f32 v{r}, v{r}, v{t}')
    def end_wave(self):
        a = self.a
        if self.diag:
            self.stamp(15)
            a(f'''
            s_memtime s[86:87]
            s_waitcnt lgkmcnt(0)
            s_sub_u32 s86, s86, s88
            v_writelane_b32 v3, s86, 14
            s_mov_b64 exec, -1
            s_lshl_b32 s6, s{sB}, 10
            s_lshl_b32 s7, s94, 6
            s_add_u32 s6, s6, s7
            s_add_u32 s6, s6, {WS_DIAG}
            v_lshlrev_b32 v2, 2, v1
            s_mov_b64 exec, 0xffff
            buffer_store_dword v3, v2, {sr(SRD_WS,4)}, s6 offen
            ''')
        a('s_endpgm')

    def prologue(self):
        a = self.a
        if self.diag: a('s_memrealtime s[90:91]'); a('s_memtime s[88:89]')
        a(f'''
        s_cmp_ge_u32 s{sB}, 256
        s_cbranch_scc1 L_exit
        s_load_dwordx16 s[16:31], s[0:1], 0
        s_load_dwordx8 s[32:39], s[0:1], 64
        s_load_dwordx2 s[40:41], s[0:1], 96
        ''')
        if self.prefetch_code:
            a(f'''
            s_getpc_b64 s[64:65]
            L_pc:
            s_sub_u32 s{SRD_A}, s64, (L_pc - {KNAME})
            s_subb_u32 s{SRD_A+1}, s65, 0
            s_mov_b32 s{SRD_A+2}, (L_code_end - {KNAME})
            s_mov_b32 s{SRD_A+3}, 0x20000
            v_lshlrev_b32 v2, 7, v0
            buffer_load_dword v167, v2, {sr(SRD_A,4)}, 0 offen
            ''')
        a(f'''
        v_lshrrev_b32 v2, 6, v0
        v_and_b32 v1, 63, v0
        v_readfirstlane_b32 s{sW}, v2
        s_and_b32 s6, s{sB}, 7
        s_mov_b32 s94, s{sW}
        s_lshr_b32 s7, s{sB}, 3
        s_lshl_b32 s{sG}, s6, 1
        s_lshr_b32 s8, s7, 4
        s_add_u32 s{sG}, s{sG}, s8
        s_and_b32 s{sS}, s7, 15
        s_lshl_b32 s{sSLOT}, s{sG}, 4
        s_add_u32 s{sSLOT}, s{sSLOT}, s{sS}
        s_mul_i32 s{sF}, s{sG}, 9
        s_add_u32 s{sF}, s{sF}, s{sS}
        s_sub_u32 s{sF}, s{sF}, 7
        s_mov_b32 s{sSCALE}, {SCALE:#x}
        s_mov_b32 s{sLOG2E}, {LOG2E:#x}
        v_mov_b32 v3, 0
        s_waitcnt lgkmcnt(0)
        s_mov_b32 s{SRD_WS}, s{PWS}
        s_mov_b32 s{SRD_WS+1}, s{PWS+1}
        s_mov_b32 s{SRD_WS+2}, {WS_SRD_SIZE}
        s_mov_b32 s{SRD_WS+3}, 0x20000
        ''')
        if self.diag: a('v_writelane_b32 v3, s90, 0')
        a(f'''
        s_cmp_ge_u32 s{sW}, 8
        s_cbranch_scc1 L_chain
        ''')

    def stream(self):
        a = self.a; DK = self.dk; DV = self.depth
        KB, VB = 40, 104
        a(f'''
        s_load_dword s{sTAG}, {sr(PWS,2)}, {WS_EPOCH}
        s_lshl_b32 s6, s{sG}, 21
        s_lshl_b32 s7, s{sS}, 17
        s_add_u32 s6, s6, s7
        s_lshl_b32 s7, s{sW}, 14
        s_add_u32 s6, s6, s7
        ''')
        self.srd(SRD_A, PK, 6, 16384)
        self.srd(SRD_B, PV, 6, 16384)
        a(f'''
        v_lshrrev_b32 v8, 4, v1
        v_bfe_u32 v9, v1, 2, 2
        v_and_b32 v10, 3, v1
        v_lshlrev_b32 v8, 6, v8
        v_lshlrev_b32 v9, 8, v9
        v_lshlrev_b32 v10, 4, v10
        v_add3_u32 v36, v8, v9, v10          ; K voffset
        v_lshlrev_b32 v37, 4, v1             ; V voffset
        s_mov_b32 s61, 4096
        s_mov_b32 s62, 8192
        s_mov_b32 s63, 12288
        s_barrier                            ; B0
        ''')
        vm = VM(a)
        def ld(kind, t):
            so = '0' if t < 4 else f's{60 + t // 4}'
            off = (t % 4) * 1024
            if kind == 'K':
                return f'buffer_load_dwordx4 {vr(KB+4*t,4)}, v36, {sr(SRD_A,4)}, {so} offen offset:{off}{NT}'
            return f'buffer_load_dwordx4 {vr(VB+4*t,4)}, v37, {sr(SRD_B,4)}, {so} offen offset:{off}{NT}'
        seq = [('K', t) for t in range(16)] + [('V', t) for t in range(16)]
        if self.sl_stream: a(f's_sleep {self.sl_stream}')
        st = {'pos': 0}
        def pump(depth):
            pos = st['pos']
            if pos >= 32: return
            if pos >= depth: vm.wait(seq[pos - depth])
            vm.issue(seq[pos], ld(*seq[pos]))
            st['pos'] = pos + 1
            if pos == 31: a('s_barrier')
        for _ in range(DK): pump(DK)
        self.stamp(1)
        self.masks(4, 8)
        a(f'''
        v_bfe_u32 v16, v1, 3, 1              ; head
        v_lshlrev_b32 v38, 5, v16
        s_lshl_b32 s6, s{sW}, 2
        v_add_u32 v39, s6, v38               ; head*32 + w*4
        v_lshlrev_b32 v16, 8, v16
        v_lshrrev_b32 v17, 4, v1
        v_lshlrev_b32 v17, 6, v17
        v_and_b32 v18, 3, v1
        v_lshlrev_b32 v18, 4, v18
        v_add3_u32 v0, v16, v17, v18
        v_lshrrev_b32 v8, 5, v1
        v_lshlrev_b32 v8, 12, v8
        v_and_b32 v9, 31, v1
        v_lshlrev_b32 v9, 2, v9
        s_lshl_b32 s6, s{sW}, 7
        v_add3_u32 v2, v8, v9, s6
        s_lshl_b32 s8, s{sSLOT}, 10
        s_add_u32 s8, s8, {WS_OP}
        s_mov_b32 s66, 0xf0f0f0f0
        s_mov_b32 s67, 0xf0f0f0f0
        ''')
        while st['pos'] < 16: pump(DK)
        a(f'''
        v_lshrrev_b32 v8, 5, v1
        v_lshlrev_b32 v8, 9, v8
        v_and_b32 v9, 15, v1
        v_lshl_add_u32 v8, v9, 5, v8
        v_bfe_u32 v9, v1, 4, 1
        v_lshl_add_u32 v8, v9, 4, v8
        s_lshl_b32 s6, s{sW}, 10
        v_add_u32 v36, s6, v8
        ''')
        while st['pos'] < 16 + self.nb1: pump(DV)
        DX = DV + self.extra
        for _ in range(self.extra): pump(DX)
        vm.wait(('K', 15))
        self.stamp(2)
        a('s_barrier')
        self.stamp(3)
        a(f'''
        ds_read_b128 v[8:11], v0 offset:{LQ}
        s_waitcnt lgkmcnt(0)
        s_add_u32 s{sTAG}, s{sTAG}, 1
        ''')
        for r in range(4): a(f'v_cndmask_b32 v{12+r}, 0, v{8+r}, s[66:67]')
        for r in range(4): a(f'v_cndmask_b32 v{8+r}, v{8+r}, 0, s[66:67]')
        def dreg(p): return 16 if p == 0 else KB + 4 * (2 * p - 2)
        for p in range(8):
            a(f'v_mfma_f32_16x16x32_bf16 {vr(dreg(p),4)}, {vr(KB+8*p,4)}, v[8:11], 0')
            a(f'v_mfma_f32_16x16x32_bf16 {vr(dreg(p),4)}, {vr(KB+8*p+4,4)}, v[12:15], {vr(dreg(p),4)}')
        SB = 20; PM = 28
        for p0 in range(0, 8, 4):
            for j, pat in enumerate(('[0,0,0,0]', '[1,1,1,1]', '[2,2,2,2]', '[3,3,3,3]')):
                for p in range(p0, p0 + 4):
                    d = dreg(p); s = SB + p
                    if j == 0: a(f'v_mov_b32_dpp v{s}, v{d} quad_perm:{pat} row_mask:0xf bank_mask:0xf')
                    else: a(f'v_add_f32_dpp v{s}, v{d+j}, v{s} quad_perm:{pat} row_mask:0xf bank_mask:0xf')
            pump(DX)
        sc = list(range(SB, SB + 8))
        T4 = [8, 9, 10, 11]
        self.rnd(sc, T4)
        for s in sc: a(f'v_mul_f32 v{s}, s{sSCALE}, v{s}')
        self.rnd(sc, T4)
        pump(DX)
        a(f'v_max3_f32 v16, v{SB}, v{SB+1}, v{SB+2}')
        a(f'v_max3_f32 v17, v{SB+3}, v{SB+4}, v{SB+5}')
        a(f'v_max3_f32 v16, v16, v{SB+6}, v{SB+7}')
        a(f'v_max_f32 v16, v16, v17')
        a(f'v_max_f32_dpp v16, v16, v16 row_half_mirror row_mask:0xf bank_mask:0xf')
        self.xgroup('v_max_f32', [16], [17])
        a(f'''
        s_mov_b64 exec, 0x101
        ds_write_b32 v39, v16 offset:{LMX}
        s_mov_b64 exec, -1
        s_waitcnt lgkmcnt(0)
        ''')
        self.stamp(4)
        a('s_barrier')
        a(f'''
        ds_read_b128 v[8:11], v38 offset:{LMX}
        ds_read_b128 v[16:19], v38 offset:{LMX+16}
        ''')
        pump(DX)
        a(f'''
        s_waitcnt lgkmcnt(0)
        v_max3_f32 v8, v8, v9, v10
        v_max3_f32 v16, v16, v17, v18
        v_max3_f32 v8, v8, v11, v19
        v_max_f32 v8, v8, v16
        v_mul_f32 v9, s{sLOG2E}, v8
        v_sub_f32 v9, 0, v9
        ''')
        for s in sc: a(f'v_fma_f32 v{s}, v{s}, s{sLOG2E}, v9')
        for s in sc: a(f'v_exp_f32 v{s}, v{s}')
        pump(DX)
        a(f'v_add_f32 v8, v{SB}, v{SB+1}'); a(f'v_add_f32 v9, v{SB+2}, v{SB+3}')
        a(f'v_add_f32 v10, v{SB+4}, v{SB+5}'); a(f'v_add_f32 v11, v{SB+6}, v{SB+7}')
        for s in sc: a(f'v_cvt_pk_bf16_f32 v{s}, v{s}, v{s}')
        a('v_add_f32 v8, v8, v9'); a('v_add_f32 v10, v10, v11'); a('v_add_f32 v10, v10, v8')
        for p in range(8): a(f'v_mov_b32_dpp v{PM+p}, v{SB+p} row_half_mirror row_mask:0xf bank_mask:0xf')
        a(f'v_add_f32_dpp v10, v10, v10 row_half_mirror row_mask:0xf bank_mask:0xf')
        self.stamp(5)
        def pv(t):
            p, s_ = t // 2, t % 2
            A = 16 if t % 2 == 0 else 8
            for w in range(4):
                srcr = SB + p if (w >> 1) == s_ else PM + p
                a(f'v_and_b32 v{A+w}, v{srcr}, v{4+w}')
            vm.wait(('V', t))
            c = '0' if t == 0 else 'v[12:15]'
            a(f'v_mfma_f32_16x16x32_bf16 v[12:15], {vr(A,4)}, {vr(VB+4*t,4)}, {c}')
        self.xgroup('v_add_f32', [10], [0])
        a(f'''
        s_mov_b64 exec, 0x101
        ds_write_b32 v39, v10 offset:{LLS}
        s_mov_b64 exec, -1
        ''')
        for t in range(16):
            pump(DX)
            pv(t)
        assert st['pos'] == 32
        a(f'''
        v_mov_b32 v16, {LCNT}
        v_mov_b32 v17, 1
        s_nop 5
        ds_write_b128 v36, v[12:15] offset:{LOP}
        s_mov_b64 exec, 1
        ds_add_u32 v16, v17
        s_mov_b64 exec, -1
        ''')
        self.stamp(6)
        a(f'''
        s_mov_b32 s{sCNT}, 0
        L_sbar:
        ds_read_b32 v17, v16
        s_add_u32 s{sCNT}, s{sCNT}, 1
        s_cmp_lt_u32 s{sCNT}, {MAXSPIN*8}
        s_cbranch_scc0 L_sbar_done
        s_waitcnt lgkmcnt(0)
        v_cmp_ne_u32 vcc, 8, v17
        s_cbranch_vccnz L_sbar
        L_sbar_done:
        s_waitcnt lgkmcnt(0)
        ''')
        for i in range(4): a(f'ds_read_b32 v{16+i}, v2 offset:{LOP + 1024*i}')
        a(f'''
        s_waitcnt lgkmcnt(0)
        v_add_f32 v16, v16, v17
        v_add_f32 v18, v18, v19
        v_add_f32 v16, v16, v18
        ''')
        self.xstep('v_add_f32', [16], [17], 32)
        self.quad_gather(16, 20)
        a(f'''
        s_mov_b32 exec_lo, 0x11111111
        s_mov_b32 exec_hi, 0
        buffer_store_dwordx4 v[20:23], v2, {sr(SRD_WS,4)}, s8 offen sc1
        s_mov_b64 exec, -1
        ''')
        self.stamp(8)
        self.stats_pub('s', 7)
        a(f'''
        s_cmp_lt_u32 s{sS}, 7
        s_cbranch_scc1 L_s_sig
        s_cmp_ge_u32 s{sW}, 4
        s_cbranch_scc1 L_s_sig
        ''')
        self.ffn_consts_prep()
        self.exec_set((1 << 36) - 1)
        self.ffn_consts_issue()
        self.exec_all()
        a(f'''
        L_s_sig:
        v_mov_b32 v16, {LCNT2}
        v_mov_b32 v17, 1
        s_mov_b64 exec, 1
        ds_add_u32 v16, v17
        s_mov_b64 exec, -1
        ''')
        self.stamp(7)
        a(f'''
        s_cmp_lt_u32 s{sS}, 7
        s_cbranch_scc1 L_s_end
        s_cmp_lt_u32 s{sW}, 4
        s_cbranch_scc1 L_s_ffn
        L_s_end:
        ''')
        self.end_wave()
        a.label('L_s_ffn')
        self.ffn_consts_finish()
        self.stamp(12)
        self.hop2()

    def w2_loads(self, WB):
        a = self.a
        a(f'''
        s_mul_i32 s6, s{sF}, {32*1152}
        s_lshl_b32 s7, s{sW}, 7
        s_add_u32 s6, s6, s7
        ''')
        self.srd(SRD_B, PW2, 6, f'{4608*1152}')
        a(f'''
        s_sub_u32 s{SRD_B+2}, s{SRD_B+2}, s6
        v_lshrrev_b32 v8, 3, v1
        v_mul_u32_u24 v8, 1152, v8
        v_and_b32 v9, 7, v1
        v_lshl_add_u32 v45, v9, 4, v8
        s_mul_i32 s74, s{sF}, 2304
        s_lshl_b32 s7, s{sW}, 8
        s_add_u32 s74, s74, s7
        s_add_u32 s74, s74, {WS_YP}
        ''')
    def gemv1_prep(self):
        a = self.a
        a(f'''
        s_and_b32 s75, s{sF}, 1              ; kh
        s_mul_i32 s6, s75, {288*4}
        s_mul_i32 s7, s{sW}, {72*4}
        s_add_u32 s6, s6, s7
        v_lshrrev_b32 v39, 3, v1
        v_lshlrev_b32 v39, 2, v39            ; v39 = (l>>3)*4
        v_add_u32 v36, s6, v39
        v_add_u32 v36, {LH2}, v36
        ''')
        self.set_addr(40, 41)
        a(f'''
        s_lshl_b32 s6, s{sW}, 8
        v_add_u32 v37, s6, v40
        v_lshlrev_b32 v38, 2, v1             ; v38 = l*4
        s_lshl_b32 s76, s{sF}, 7
        s_add_u32 s76, s76, {WS_UX}
        s_xor_b32 s77, s{sF}, 1
        s_lshl_b32 s77, s77, 7
        s_add_u32 s77, s77, {WS_UX}
        v_and_b32 v41, 31, v1
        v_lshlrev_b32 v41, 2, v41            ; v41 = (l&31)*4
        ''')
        self.set_addr4(42, 43)
    def gemv1(self, KB, XB, extra_after):
        a = self.a
        N = 9
        for i in range(N): a(f'ds_read_b32 v{XB+i}, v36 offset:{32*i}')
        Areg = lambda i: (16, 20, 28)[i % 3]
        a(f's_waitcnt lgkmcnt({N-1})')
        self.abuild(Areg(0), XB)
        a(f's_waitcnt vmcnt({extra_after})')
        for i in range(N):
            if i < N - 1:
                a(f's_waitcnt lgkmcnt({N-2-i})')
                self.abuild(Areg(i + 1), XB + i + 1)
            c = '0' if i == 0 else 'v[12:15]'
            a(f'v_mfma_f32_16x16x32_bf16 v[12:15], {vr(Areg(i),4)}, {vr(KB+4*i,4)}, {c}')
        self.setsum2([12], [24])
        self.exec_set(self.SETMASK)
        a(f'ds_write_b64 v37, v[24:25] offset:{LUP}')
        self.exec_all()
        a('s_waitcnt lgkmcnt(0)')
        a('s_barrier')
        a(f'''
        s_cmp_lg_u32 s{sW}, 0
        s_cbranch_scc1 L_g1_skip
        ds_read_b32 v16, v38 offset:{LUP}
        ds_read_b32 v17, v38 offset:{LUP+256}
        ds_read_b32 v18, v38 offset:{LUP+512}
        ds_read_b32 v19, v38 offset:{LUP+768}
        s_mov_b32 s66, -1
        s_mov_b32 s67, 0                     ; s[66:67] = lanes 0..31
        s_cmp_eq_u32 s75, 0
        s_cbranch_scc1 L_g1_k0
        s_mov_b32 s66, 0
        s_mov_b32 s67, -1
        L_g1_k0:
        s_waitcnt lgkmcnt(0)
        v_add_f32 v16, v16, v17
        v_add_f32 v18, v18, v19
        v_add_f32 v16, v16, v18
        ''')
        self.quad_gather(16, 20)
        a(f'''
        s_not_b64 s[68:69], s[66:67]
        s_and_b32 s68, s68, 0x11111111
        s_and_b32 s69, s69, 0x11111111
        s_mov_b64 exec, s[68:69]
        buffer_store_dwordx4 v[20:23], v41, {sr(SRD_WS,4)}, s76 offen sc1
        s_mov_b64 exec, s[66:67]
        ''')
        self.poll_begin('L_ux')
        a(f'''
        buffer_load_dword v17, v41, {sr(SRD_WS,4)}, s77 offen sc1
        s_waitcnt vmcnt(0)
        ''')
        self.poll_end('L_ux', 17)
        a('v_add_f32 v16, v16, v17')
        self.rnd([16], [20])
        self.silu([16], [20])
        a(f'''
        v_cvt_pk_bf16_f32 v16, v16, v16
        ds_write_b32 v41, v16 offset:{LUS}
        s_mov_b64 exec, -1
        s_waitcnt lgkmcnt(0)
        L_g1_skip:
        ''')
        a('s_barrier')

    def gemv2(self, WB, TB):
        a = self.a
        for ro in range(4): a(f'ds_read_b32 v{16+ro}, v39 offset:{LUS + 32*ro}')
        DB = TB + 16
        for ro in range(4):
            a(f's_waitcnt lgkmcnt({3-ro})')
            self.abuild(TB + 4 * ro, 16 + ro)
        a('s_waitcnt vmcnt(0)')
        for ro in range(4):
            for k in range(2):
                c = '0' if ro == 0 else vr(DB + 4 * k, 4)
                a(f'v_mfma_f32_16x16x32_bf16 {vr(DB+4*k,4)}, {vr(TB+4*ro,4)}, {vr(WB+16*k+4*ro,4)}, {c}')
        a(f'''
        s_cmp_lg_u32 s{sW}, 0
        s_cbranch_scc1 L_g2_no3
        ''')
        for ro in range(4):
            c = '0' if ro == 0 else vr(DB + 8, 4)
            a(f'v_mfma_f32_16x16x32_bf16 {vr(DB+8,4)}, {vr(TB+4*ro,4)}, {vr(WB+32+4*ro,4)}, {c}')
        a('s_nop 7')
        self.setsum4([DB + 8], [DB + 20])
        self.exec_set(0x00FF00FF)
        a(f'buffer_store_dwordx4 {vr(DB+20,4)}, v42, {sr(SRD_WS,4)}, s74 offen offset:2048 sc1')
        self.exec_all()
        a.label('L_g2_no3')
        a('s_nop 7')
        self.setsum4([DB, DB + 4], [DB + 12, DB + 16])
        self.exec_set(0x00FF00FF)
        a(f'buffer_store_dwordx4 {vr(DB+12,4)}, v42, {sr(SRD_WS,4)}, s74 offen sc1')
        a(f'buffer_store_dwordx4 {vr(DB+16,4)}, v42, {sr(SRD_WS,4)}, s74 offen offset:1024 sc1')
        self.exec_all()

    def chain(self):
        a = self.a
        a.label('L_chain')
        a(f'''
        s_setprio 3
        s_load_dword s{sTAG}, {sr(PWS,2)}, {WS_EPOCH}
        s_sub_u32 s{sW}, s{sW}, 8
        s_mov_b32 s60, 1
        s_mov_b32 s6, s{sB}
        s_cmp_lt_u32 s{sB}, 108
        s_cbranch_scc1 L_p1role
        s_mov_b32 s60, 2
        s_sub_u32 s6, s{sB}, 108
        s_cmp_lt_u32 s{sB}, 236
        s_cbranch_scc1 L_p1role
        s_mov_b32 s60, 0
        L_p1role:
        s_lshr_b32 s61, s6, 1
        s_and_b32 s62, s6, 1
        s_cmp_eq_u32 s{sW}, 0
        s_cbranch_scc1 L_c0
        s_cmp_eq_u32 s{sW}, 1
        s_cbranch_scc1 L_c1
        s_cmp_eq_u32 s{sW}, 2
        s_cbranch_scc1 L_c2
        ''')
        self.c3(); self.c0(); self.c1(); self.c2(); self.ctail()

    def c3(self):
        a = self.a
        a(f'''
        s_barrier                            ; B0
        s_waitcnt lgkmcnt(0)
        s_add_u32 s{sTAG}, s{sTAG}, 1
        s_sleep 127
        ''')
        self.flags_check('L_c3_flags', 8, 12, sleep=32)
        self.stamp(1)
        a('s_branch L_ctail')
    code_kb4 = 6

    def c0(self):
        a = self.a
        a.label('L_c0')
        a(f"""
        s_cmp_eq_u32 s60, 0
        s_cbranch_scc1 L_c0_skip
        s_mov_b32 s63, 6912
        s_mov_b32 s64, s{PWM}
        s_mov_b32 s65, s{PWM+1}
        s_cmp_eq_u32 s60, 1
        s_cbranch_scc1 L_c0_sel
        s_mov_b32 s63, 8192
        s_mov_b32 s64, s{PWQ}
        s_mov_b32 s65, s{PWQ+1}
        L_c0_sel:
        s_mul_i32 s6, s62, 288
        s_mul_i32 s6, s6, s63                ; kh*288*pitch
        s_lshl_b32 s7, s61, 7
        s_add_u32 s6, s6, s7
        s_add_u32 s{SRD_A}, s64, s6
        s_addc_u32 s{SRD_A+1}, s65, 0
        s_mul_i32 s{SRD_A+2}, s63, 288
        s_mov_b32 s{SRD_A+3}, 0x20000
        v_lshrrev_b32 v8, 3, v1
        v_mul_lo_u32 v8, v8, s63
        v_and_b32 v9, 7, v1
        v_lshlrev_b32 v9, 4, v9
        v_add_u32 v8, v8, v9
        s_lshl_b32 s66, s63, 3               ; 8*pitch
        s_mov_b32 s67, 0
        """)
        TB = 24
        for i in range(36):
            a(f'buffer_load_dwordx4 {vr(TB+4*i,4)}, v8, {sr(SRD_A,4)}, s67 offen{NT}')
            if i < 35: a('s_add_u32 s67, s67, s66')
        a('s_barrier')
        self.masks(4, 9)
        a(f"""
        v_lshrrev_b32 v2, 3, v1
        v_mul_u32_u24 v2, 144, v2
        s_lshl_b32 s6, s61, 9                ; ct*512
        s_mul_i32 s7, s62, {MODP_P}
        s_add_u32 s7, s7, {WS_MODP}
        s_cmp_eq_u32 s60, 1
        s_cbranch_scc1 L_c0_pub
        s_mul_i32 s7, s62, {QP_P}
        s_add_u32 s7, s7, {WS_QP}
        L_c0_pub:
        s_add_u32 s68, s6, s7
        s_waitcnt lgkmcnt(0)
        s_add_u32 s{sTAG}, s{sTAG}, 1
        """)
        self.stamp(1)
        self.lds_wait_flag('L_c0_wxx', LF_XX, 8)
        self.stamp(2)
        a(f'ds_read_b128 v[8:11], v2 offset:{LXXT}')
        for n in range(9):
            xb = 8 if n == 0 else TB + 16 * (n - 1)
            a('s_waitcnt lgkmcnt(0)')
            for k in range(4):
                i = 4 * n + k
                A = 16 if i % 2 == 0 else 20
                self.abuild(A, xb + k)
                a(f's_waitcnt vmcnt({35 - i})')
                c = '0' if i == 0 else 'v[12:15]'
                a(f'v_mfma_f32_16x16x32_bf16 v[12:15], {vr(A,4)}, {vr(TB+4*i,4)}, {c}')
                if k == 0 and n < 8:
                    a(f'ds_read_b128 {vr(TB + 16*n, 4)}, v2 offset:{LXXT + 16*(n+1)}')
        self.stamp(3)
        self.set_addr(9, 10)
        a('v_lshlrev_b32 v9, 1, v9')
        self.setsum2([12], [16])
        a(f"""
        v_mov_b32 v18, v17
        v_mov_b32 v17, s{sTAG}
        v_mov_b32 v19, s{sTAG}
        """)
        self.exec_set(self.SETMASK)
        a(f'buffer_store_dwordx4 v[16:19], v9, {sr(SRD_WS,4)}, s68 offen sc1')
        self.exec_all()
        self.stamp(4)
        a('s_branch L_ctail')
        a.label('L_c0_skip')
        a(f"""
        s_barrier
        s_waitcnt lgkmcnt(0)
        s_add_u32 s{sTAG}, s{sTAG}, 1
        s_branch L_ctail
        """)

    def c1(self):
        a = self.a
        a.label('L_c1')
        a(f"""
        v_mov_b32 v8, -1
        v_mov_b32 v9, -1
        v_mov_b32 v10, -1
        v_mov_b32 v11, -1
        v_lshlrev_b32 v12, 4, v1             ; lane*16
        s_lshl_b32 s6, s{sSLOT}, 10
        s_add_u32 s6, s6, {WS_OP}
        buffer_store_dwordx4 v[8:11], v12, {sr(SRD_WS,4)}, s6 offen sc1
        s_cmp_lt_u32 s{sS}, 7
        s_cbranch_scc1 L_c1_ap
        s_mul_i32 s6, s{sF}, 2304
        s_add_u32 s6, s6, {WS_YP}
        buffer_store_dwordx4 v[8:11], v12, {sr(SRD_WS,4)}, s6 offen sc1
        buffer_store_dwordx4 v[8:11], v12, {sr(SRD_WS,4)}, s6 offen offset:1024 sc1
        s_mov_b64 exec, 0xffff
        buffer_store_dwordx4 v[8:11], v12, {sr(SRD_WS,4)}, s6 offen offset:2048 sc1
        s_mov_b64 exec, 0xff
        s_lshl_b32 s6, s{sF}, 7
        s_add_u32 s6, s6, {WS_UX}
        buffer_store_dwordx4 v[8:11], v12, {sr(SRD_WS,4)}, s6 offen sc1
        s_branch L_c1_st
        L_c1_ap:
        s_add_u32 s7, s{sS}, 2
        s_mov_b64 exec, 0xffff
        s_cmp_ge_u32 s{sS}, 2
        s_cbranch_scc1 L_c1_ap1
        s_lshl_b32 s7, s{sS}, 1
        s_mov_b32 exec_lo, -1
        L_c1_ap1:
        s_lshl_b32 s7, s7, 8
        s_mul_i32 s6, s{sG}, 2304
        s_add_u32 s6, s6, s7
        s_add_u32 s6, s6, {WS_AP}
        buffer_store_dwordx4 v[8:11], v12, {sr(SRD_WS,4)}, s6 offen sc1
        L_c1_st:
        s_mov_b64 exec, 1
        s_lshl_b32 s6, s{sSLOT}, 7
        s_add_u32 s6, s6, {WS_ST}
        buffer_store_dwordx4 v[8:11], v12, {sr(SRD_WS,4)}, s6 offen sc1
        s_mov_b64 exec, -1
        s_barrier                            ; B0
        s_waitcnt vmcnt(0) lgkmcnt(0)
        s_add_u32 s{sTAG}, s{sTAG}, 1
        v_mov_b32 v13, s{sTAG}
        s_lshl_b32 s6, s{sB}, 2
        s_add_u32 s6, s6, {WS_FLAGS}
        v_mov_b32 v15, 0
        s_mov_b64 exec, 1
        buffer_store_dword v13, v15, {sr(SRD_WS,4)}, s6 offen sc1
        s_mov_b64 exec, -1
        """)
        self.stamp(1)
        a(f"""
        v_lshlrev_b32 v8, 4, v1
        s_lshl_b32 s6, s{sG}, 11
        s_add_u32 s6, s6, {WS_QP}
        s_add_u32 s7, s6, {QP_P}
        s_add_u32 s64, s{PWS}, s6
        s_addc_u32 s65, s{PWS+1}, 0
        s_sleep {self.sl_q0}
        """)
        if self.sl_q1: a(f's_sleep {self.sl_q1}')
        if self.hint: self.shint('L_c1_hint', 64, [4 + kh * QP_P + j * 512 for kh in range(2) for j in range(4)], 66)
        self.stamp(2)
        self.poll_begin('L_c1_q')
        a(f"""
        buffer_load_dwordx4 v[112:115], v8, {sr(SRD_WS,4)}, s6 offen sc1
        buffer_load_dwordx4 v[116:119], v8, {sr(SRD_WS,4)}, s6 offen offset:1024 sc1
        buffer_load_dwordx4 v[120:123], v8, {sr(SRD_WS,4)}, s7 offen sc1
        buffer_load_dwordx4 v[124:127], v8, {sr(SRD_WS,4)}, s7 offen offset:1024 sc1
        s_waitcnt vmcnt(0)
        """)
        self.tag_check(list(range(113, 128, 2)), 128, 129)
        self.poll_end_nz('L_c1_q', 128, sleep=self.sl_p1)
        a(f"""
        v_add_f32 v112, v112, v120
        v_add_f32 v114, v114, v122
        v_add_f32 v116, v116, v124
        v_add_f32 v118, v118, v126
        v_cvt_pk_bf16_f32 v112, v112, v114
        v_cvt_pk_bf16_f32 v113, v116, v118
        v_lshlrev_b32 v8, 2, v1
        ds_write_b32 v8, v112 offset:{LQ}
        ds_write_b32 v8, v113 offset:{LQ+256}
        s_waitcnt lgkmcnt(0)
        """)
        self.stamp(3)
        a('s_branch L_ctail')

    def c2(self):
        a = self.a
        a.label('L_c2')
        a(f"""
        v_mov_b32 v13, 0
        v_mov_b32 v14, {LF_XX}
        ds_write_b32 v14, v13
        ds_write_b32 v14, v13 offset:4
        ds_write_b32 v14, v13 offset:8
        s_cmp_eq_u32 s60, 0
        s_cbranch_scc1 L_c2_skip
        s_cmp_eq_u32 s60, 2
        s_cbranch_scc1 L_c2_h
        s_mul_i32 s6, s62, 576
        s_add_u32 s{SRD_A}, s{PC}, s6
        s_addc_u32 s{SRD_A+1}, s{PC+1}, 0
        s_mov_b32 s{SRD_A+2}, 576
        s_mov_b32 s{SRD_A+3}, 0x20000
        v_lshlrev_b32 v8, 4, v1
        buffer_load_dwordx4 v[12:15], v8, {sr(SRD_A,4)}, 0 offen
        s_waitcnt lgkmcnt(0)
        s_barrier                            ; B0
        s_waitcnt vmcnt(0)
        s_add_u32 s{sTAG}, s{sTAG}, 1
        """)
        xs = list(range(16, 24))
        for i in range(4): self.unpack(12 + i, 16 + 2 * i, 17 + 2 * i)
        self.silu(xs, list(range(24, 32)))
        for i in range(8): a(f'v_cvt_pk_bf16_f32 v{16+i}, v{16+i}, v{16+i}')
        a(f'v_lshlrev_b32 v8, 2, v1')
        self.exec_set((1 << 36) - 1)
        for e in range(8): a(f'ds_write_b32 v8, v{16+e} offset:{LXXT + 144*e}')
        self.exec_all()
        a('s_branch L_c2_flag')
        a.label('L_c2_h')
        self.srd_plain(SRD_A, PX, 1152)
        a(f"""
        v_lshlrev_b32 v8, 5, v1
        buffer_load_dwordx4 v[12:15], v8, {sr(SRD_A,4)}, 0 offen
        buffer_load_dwordx4 v[16:19], v8, {sr(SRD_A,4)}, 0 offen offset:16
        s_mul_i32 s6, s62, 576
        v_lshlrev_b32 v9, 2, v1
        buffer_load_dword v20, v9, {sr(SRD_A,4)}, s6 offen
        buffer_load_dword v21, v9, {sr(SRD_A,4)}, s6 offen offset:256
        buffer_load_dword v22, v9, {sr(SRD_A,4)}, s6 offen offset:512
        s_waitcnt lgkmcnt(0)
        s_barrier                            ; B0
        s_waitcnt vmcnt(0)
        s_add_u32 s{sTAG}, s{sTAG}, 1
        """)
        xv = list(range(32, 48))
        for i in range(8): self.unpack(12 + i, 32 + 2 * i, 33 + 2 * i)
        a(f'v_add_f32 v26, v32, v33')
        for r in xv[2:]: a(f'v_add_f32 v26, v26, v{r}')
        self.wave_red('v_add_f32', [26], [27])
        a(f'v_mul_f32 v24, {f2u(1.0/576):#x}, v26')
        a('v_mov_b32 v26, 0')
        self.exec_set((1 << 36) - 1)
        for r in xv:
            a(f'v_sub_f32 v29, v{r}, v24')
            a(f'v_fmac_f32 v26, v29, v29')
        self.exec_all()
        self.wave_red('v_add_f32', [26], [27])
        a(f'v_mul_f32 v25, {f2u(1.0/576):#x}, v26')
        self.ln_finish(24, 25, 27)
        for i in range(3): self.unpack(20 + i, 32 + 2 * i, 33 + 2 * i)
        xr = list(range(32, 38))
        self.ln_apply(xr, mean=24, sd=25, tmps=[26, 27, 28])
        self.stamp(1)
        a(f"""
        s_mul_i32 s6, s62, {288*8}
        s_add_u32 s6, s6, {WS_MODP}
        s_add_u32 s7, s6, {MODP_P}
        s_add_u32 s8, s6, {576*8}
        s_add_u32 s9, s7, {576*8}
        v_lshlrev_b32 v8, 4, v1
        s_sleep {self.sl_m0}
        """)
        self.poll_begin('L_c2_mod')
        for base, so in ((64, 's6'), (76, 's8'), (88, 's7'), (100, 's9')):
            a(f'buffer_load_dwordx4 {vr(base,4)}, v8, {sr(SRD_WS,4)}, {so} offen sc1')
            a(f'buffer_load_dwordx4 {vr(base+4,4)}, v8, {sr(SRD_WS,4)}, {so} offen offset:1024 sc1')
        for base in (64, 76, 88, 100):
            a(f'v_mov_b32 v{base+9}, s{sTAG}'); a(f'v_mov_b32 v{base+11}, s{sTAG}')
            a(f'v_mov_b32 v{base+8}, 0'); a(f'v_mov_b32 v{base+10}, 0')
        a('s_mov_b64 exec, 0xffff')
        for base, so in ((64, 's6'), (76, 's8'), (88, 's7'), (100, 's9')):
            a(f'buffer_load_dwordx4 {vr(base+8,4)}, v8, {sr(SRD_WS,4)}, {so} offen offset:2048 sc1')
        a('s_mov_b64 exec, -1')
        a('s_waitcnt vmcnt(0)')
        self.tag_check(list(range(65, 112, 2)), 48, 49)
        self.poll_end_nz('L_c2_mod', 48, sleep=self.sl_p1)
        self.stamp(2)
        for e in range(6):
            a(f'v_add_f32 v{48+e}, v{64+2*e}, v{88+2*e}')
            a(f'v_add_f32 v{56+e}, v{76+2*e}, v{100+2*e}')
        sa = list(range(48, 54)); ca = list(range(56, 62))
        T = list(range(64, 70))
        self.rnd(sa + ca, T)
        for r in ca: a(f'v_add_f32 v{r}, 1.0, v{r}')
        self.rnd(ca, T)
        for x, c in zip(xr, ca): a(f'v_mul_f32 v{x}, v{x}, v{c}')
        self.rnd(xr, T)
        for x, s, d in zip(xr, sa, range(16, 22)): a(f'v_add_f32 v{d}, v{x}, v{s}')
        for i in range(6): a(f'v_cvt_pk_bf16_f32 v{16+i}, v{16+i}, v{16+i}')
        a(f"""
        v_and_b32 v8, 3, v1
        v_mul_u32_u24 v8, 288, v8
        v_lshrrev_b32 v9, 2, v1
        v_lshlrev_b32 v9, 2, v9
        v_add_u32 v8, v8, v9
        ds_write_b32 v8, v16 offset:{LXXT}
        ds_write_b32 v8, v17 offset:{LXXT+144}
        ds_write_b32 v8, v18 offset:{LXXT+64}
        ds_write_b32 v8, v19 offset:{LXXT+64+144}
        s_mov_b64 exec, 0xffff
        ds_write_b32 v8, v20 offset:{LXXT+128}
        ds_write_b32 v8, v21 offset:{LXXT+128+144}
        s_mov_b64 exec, -1
        """)
        a.label('L_c2_flag')
        a(f"""
        v_mov_b32 v13, 1
        v_mov_b32 v14, {LF_XX}
        s_waitcnt lgkmcnt(0)
        s_mov_b64 exec, 1
        ds_write_b32 v14, v13
        s_mov_b64 exec, -1
        """)
        self.stamp(3)
        a('s_branch L_ctail')
        a.label('L_c2_skip')
        a(f"""
        s_waitcnt lgkmcnt(0)
        s_barrier
        s_add_u32 s{sTAG}, s{sTAG}, 1
        """)

    def ln_finish(self, mean, var, t):
        a = self.a
        self.rnd([mean, var], [t])
        a(f'v_add_f32 v{var}, {f2u(1e-5):#x}, v{var}')
        self.rnd([var], [t])
        a(f'v_sqrt_f32 v{var}, v{var}')
        self.rnd([var], [t])
        a(f'v_rcp_f32 v{var}, v{var}')

    def ln_apply(self, xr, mean, sd, tmps):
        a = self.a
        for r in xr: a(f'v_sub_f32 v{r}, v{r}, v{mean}')
        self.rnd(xr, tmps)
        for r in xr: a(f'v_mul_f32 v{r}, v{r}, v{sd}')
        self.rnd(xr, tmps)

    def ffn_consts_issue(self):
        a = self.a
        for p, so in ((0, 8), (1, 9)):
            for arr in range(3):
                if arr: a(f's_add_u32 s10, s{so}, {576*8*arr}')
                sreg = f's{so}' if arr == 0 else 's10'
                b = 64 + 24 * p + 8 * arr
                a(f'buffer_load_dwordx4 {vr(b,4)}, v9, {sr(SRD_WS,4)}, {sreg} offen sc1')
                a(f'buffer_load_dwordx4 {vr(b+4,4)}, v9, {sr(SRD_WS,4)}, {sreg} offen offset:16 sc1')
    def ffn_consts_prep(self):
        a = self.a
        self.srd_plain(SRD_B, PX, 1152)
        a(f"""
        s_mul_i32 s6, s{sW}, 288
        v_lshlrev_b32 v8, 3, v1
        s_mul_i32 s7, s{sW}, {144*8}
        s_add_u32 s8, s7, {WS_MODP + 1152*8}
        s_add_u32 s9, s8, {MODP_P}
        v_lshlrev_b32 v9, 5, v1
        """)
        self.exec_set((1 << 36) - 1)
        a(f'buffer_load_dwordx2 v[40:41], v8, {sr(SRD_B,4)}, s6 offen')
        self.exec_all()
    def ffn_consts_finish(self):
        a = self.a
        self.exec_set((1 << 36) - 1)
        a(f's_mov_b32 s{sCNT}, 0')
        a('s_branch L_ct_mod_chk')
        a.label('L_ct_mod')
        self.ffn_consts_issue()
        a.label('L_ct_mod_chk')
        a('s_waitcnt vmcnt(0)')
        self.tag_check(list(range(65, 112, 2)), 44, 45)
        self.poll_end_nz('L_ct_mod', 44, sleep=4)
        for i in range(12): a(f'v_add_f32 v{24+i}, v{64+2*i}, v{88+2*i}')
        T = list(range(42, 48))
        self.rnd(list(range(24, 36)), T)
        for i in range(4): a(f'v_add_f32 v{32+i}, 1.0, v{32+i}')
        self.rnd(list(range(32, 36)), T)
        self.unpack(40, 36, 37); self.unpack(41, 38, 39)
        self.exec_all()

    def red_consts(self):
        a = self.a
        self.srd_plain(SRD_B, PX, 1152)
        a(f"""
        v_and_b32 v8, 3, v1
        v_lshlrev_b32 v9, 5, v8
        v_lshlrev_b32 v8, 3, v8
        s_lshl_b32 s6, s69, 5
        buffer_load_dwordx2 v[40:41], v8, {sr(SRD_B,4)}, s6 offen
        s_lshl_b32 s7, s69, 7
        s_add_u32 s8, s7, {WS_MODP + 1152*8}
        s_add_u32 s9, s8, {MODP_P}
        s_add_u32 s10, s8, {1728*8}
        s_add_u32 s11, s9, {1728*8}
        """)
        self.poll_begin('L_ct_red')
        for b, so in ((128, 's8'), (136, 's10'), (144, 's9'), (152, 's11')):
            a(f'buffer_load_dwordx4 {vr(b,4)}, v9, {sr(SRD_WS,4)}, {so} offen sc1')
            a(f'buffer_load_dwordx4 {vr(b+4,4)}, v9, {sr(SRD_WS,4)}, {so} offen offset:16 sc1')
        a('s_waitcnt vmcnt(0)')
        self.tag_check(list(range(129, 160, 2)), 44, 45)
        self.poll_end_nz('L_ct_red', 44, sleep=4)
        for i in range(8): a(f'v_add_f32 v{24+i}, v{128+2*i}, v{144+2*i}')
        self.rnd(list(range(24, 32)), list(range(44, 48)))
        self.unpack(40, 36, 37); self.unpack(41, 38, 39)

    def ctail(self):
        a = self.a
        a.label('L_ctail')
        self.stamp(5)
        WB = 64
        a(f"""
        s_mov_b32 s68, 0
        s_sub_u32 s6, s{sS}, 2
        s_cmp_ge_u32 s6, 3
        s_cbranch_scc1 L_ct_nored
        s_cmp_ge_u32 s{sG}, 12
        s_cbranch_scc1 L_ct_nored
        s_cmp_lg_u32 s{sW}, 3
        s_cbranch_scc1 L_ct_nored
        s_mov_b32 s68, 1
        s_mul_i32 s69, s{sG}, 3
        s_add_u32 s69, s69, s6               ; r
        """)
        self.red_consts()
        a.label('L_ct_nored')
        self.masks(4, 8)
        a(f"""
        s_cmp_ge_u32 s{sS}, 7
        s_cbranch_scc1 L_ct_ffn
        s_add_u32 s71, s{sS}, 2              ; ct0
        s_mov_b32 s72, 1                     ; ntiles
        s_cmp_ge_u32 s{sS}, 2
        s_cbranch_scc1 L_ct_wo1
        s_lshl_b32 s71, s{sS}, 1
        s_mov_b32 s72, 2
        L_ct_wo1:
        s_lshl_b32 s6, s{sG}, 8
        s_lshl_b32 s7, s{sW}, 6
        s_add_u32 s6, s6, s7
        s_mul_i32 s6, s6, 1152
        s_lshl_b32 s7, s71, 7
        s_add_u32 s6, s6, s7
        """)
        self.srd(SRD_A, PWO, 6, f'{4096*1152}')
        a(f"""
        s_sub_u32 s{SRD_A+2}, s{SRD_A+2}, s6
        v_lshrrev_b32 v8, 3, v1
        v_mul_u32_u24 v8, 1152, v8
        v_and_b32 v9, 7, v1
        v_lshl_add_u32 v8, v9, 4, v8
        v_mov_b32 v42, v8
        """)
        self.hop1_prep()
        a("""
        s_barrier                            ; B1
        s_barrier                            ; B2/Bv
        s_barrier                            ; Bv/B2
        """)
        self.pf_wo('a')
        if self.early2:
            a("""
            s_cmp_eq_u32 s72, 1
            s_cbranch_scc1 L_ct_wo2e
            """)
            for i in range(8):
                a(f's_mov_b32 s7, {9216*i}')
                a(f'buffer_load_dwordx4 {vr(WB+32+4*i,4)}, v42, {sr(SRD_A,4)}, s7 offen offset:128{NT}')
            a.label('L_ct_wo2e')
        vm = VM(a)
        DT = self.dt_wo
        n = 0
        for i in range(8):
            if i == self.thr_wo:
                self.lds_wait_cnt('L_wo_wp', LCNT2, 8, 46)
                self.stamp(12)
            if n >= DT and i < self.thr_wo: vm.wait(('o', i - DT))
            a(f's_mov_b32 s7, {9216*i}')
            vm.issue(('o', i), f'buffer_load_dwordx4 {vr(WB+4*i,4)}, v42, {sr(SRD_A,4)}, s7 offen{NT}')
            n += 1
        if not self.early2:
            a(f"""
            s_cmp_eq_u32 s72, 1
            s_cbranch_scc1 L_ct_wo2
            """)
            for i in range(8):
                a(f's_mov_b32 s7, {9216*i}')
                a(f'buffer_load_dwordx4 {vr(WB+32+4*i,4)}, v42, {sr(SRD_A,4)}, s7 offen offset:128{NT}')
            a.label('L_ct_wo2')
        self.pf_w2()
        self.stamp(6)
        self.hop1(WB)
        a(f"""
        s_cmp_eq_u32 s68, 1
        s_cbranch_scc1 L_ct_red_go
        """)
        self.end_wave()
        a.label('L_ct_red_go')
        self.reducer()
        a.label('L_ct_ffn')
        W1B, W2B = 64, 100
        a(f'''
        s_and_b32 s6, s{sF}, 1
        s_mul_i32 s6, s6, 288
        s_mul_i32 s7, s{sW}, 72
        s_add_u32 s6, s6, s7
        s_mul_i32 s6, s6, 9216
        s_lshr_b32 s7, s{sF}, 1
        s_lshl_b32 s7, s7, 7
        s_add_u32 s6, s6, s7
        ''')
        self.srd(SRD_A, PW1, 6, f'{576*9216}')
        a(f'''
        s_sub_u32 s{SRD_A+2}, s{SRD_A+2}, s6
        v_lshrrev_b32 v8, 3, v1
        v_mul_u32_u24 v8, 9216, v8
        v_and_b32 v9, 7, v1
        v_lshl_add_u32 v44, v9, 4, v8        ; v44 = w1 voffset
        ''')
        self.w2_loads(W2B)
        self.gemv1_prep()
        a('s_barrier')
        a('s_barrier')
        a('s_barrier')
        self.pf_wo('b')
        vm = VM(a)
        lst = [('w1', i) for i in range(9)] + [('w2', n) for n in range(8)]
        if self.w2_first: lst = [('w2', n) for n in range(8)] + [('w1', i) for i in range(9)]
        DT = self.dt_ffn
        for idx, (k, i) in enumerate(lst):
            if idx == self.thr_ffn:
                self.lds_wait_cnt('L_ffn_wp', LCNT2, 8, 46)
                if self.sl_ffn: a(f's_sleep {self.sl_ffn}')
            if idx >= DT and idx < self.thr_ffn: vm.wait(lst[idx - DT])
            if k == 'w1':
                a(f's_mov_b32 s64, {73728*i}')
                vm.issue((k, i), f'buffer_load_dwordx4 {vr(W1B+4*i,4)}, v44, {sr(SRD_A,4)}, s64 offen{NT}')
            else:
                ro, kk = i // 2, i % 2
                a(f's_mov_b32 s64, {9216*ro}')
                vm.issue((k, i), f'buffer_load_dwordx4 {vr(W2B+16*kk+4*ro,4)}, v45, {sr(SRD_B,4)}, s64 offen offset:{512*kk}{NT}')
        a(f'''
        s_cmp_lg_u32 s{sW}, 0
        s_cbranch_scc1 L_w2_no3
        ''')
        for ro in range(4):
            a(f's_mov_b32 s64, {9216*ro}')
            a(f'buffer_load_dwordx4 {vr(W2B+32+4*ro,4)}, v45, {sr(SRD_B,4)}, s64 offen offset:1024{NT}')
        a.label('L_w2_no3')
        self.stamp(6)
        a('s_barrier')
        a('s_barrier')
        self.stamp(8)
        after = 0 if self.w2_first else 8
        self.gemv1(W1B, 148, after)
        self.stamp(9)
        self.gemv2(W2B, 64)
        self.stamp(13)
        self.end_wave()

    def stats_pub(self, tag, who):
        a = self.a
        a(f'''
        s_cmp_lg_u32 s{sW}, {who}
        s_cbranch_scc1 L_nostat{tag}
        v_bfe_u32 v12, v1, 3, 1
        v_lshlrev_b32 v12, 5, v12
        ds_read_b128 v[16:19], v12 offset:{LMX}
        ds_read_b128 v[20:23], v12 offset:{LMX+16}
        ds_read_b128 v[152:155], v12 offset:{LLS}
        ds_read_b128 v[156:159], v12 offset:{LLS+16}
        s_lshl_b32 s12, s{sSLOT}, 7
        s_add_u32 s12, s12, {WS_ST}
        v_lshrrev_b32 v12, 2, v12            ; head*8
        s_waitcnt lgkmcnt(0)
        v_max3_f32 v16, v16, v17, v18
        v_max3_f32 v20, v20, v21, v22
        v_add_f32 v152, v152, v153
        v_add_f32 v154, v154, v155
        v_add_f32 v156, v156, v157
        v_add_f32 v158, v158, v159
        v_max3_f32 v16, v16, v19, v23
        v_add_f32 v152, v152, v154
        v_add_f32 v156, v156, v158
        v_max_f32 v16, v16, v20
        v_add_f32 v17, v152, v156
        s_mov_b64 exec, 0x101
        buffer_store_dwordx2 v[16:17], v12, {sr(SRD_WS,4)}, s12 offen sc1
        s_mov_b64 exec, -1
        L_nostat{tag}:
        ''')

    def l2_prefetch(self, ptr, base_expr_lines, nbytes, total, tag, lanes_stride=128):
        a = self.a
        PF = self.pf_policy
        a(base_expr_lines)
        self.srd_plain(80, ptr, total)
        a(f'v_lshlrev_b32 v47, 7, v1')
        nl = nbytes // 128
        k = 0
        while nl > 0:
            n = min(nl, 64)
            if n < 64: self.exec_set((1 << n) - 1)
            a(f'buffer_load_dword v43, v47, s[80:83], s14 offen{PF}')
            if n < 64: self.exec_all()
            nl -= n; k += 1
            if nl > 0: a('s_add_u32 s14, s14, 8192')

    def pf_wo(self, tag):
        a = self.a
        if not self.pf1: return
        a(f'''
        s_cmp_lg_u32 s{sW}, {self.pf1_wave}
        s_cbranch_scc1 L_pfwo{tag}
        ''')
        self.l2_prefetch(PWO, f'''
        s_mul_i32 s14, s{sG}, {256*1152}
        s_mul_i32 s15, s{sS}, 18432
        s_add_u32 s14, s14, s15
        ''', 18432, 4096*1152, tag)
        a.label(f'L_pfwo{tag}')

    def pf_w2(self):
        a = self.a
        if not self.pf2: return
        self.l2_prefetch(PW2, f'''
        s_mul_i32 s14, s{sG}, {288*1152}
        s_lshl_b32 s15, s{sS}, 2
        s_add_u32 s15, s15, s{sW}
        s_mul_i32 s15, s15, {96*128}
        s_add_u32 s14, s14, s15
        ''', 96*128, 4608*1152, 'w2')

    def hop1_prep(self):
        a = self.a
        a(f"""
        v_lshrrev_b32 v8, 4, v1
        v_lshlrev_b32 v9, 10, v8             ; pp*1024
        v_and_b32 v10, 15, v1
        v_lshl_add_u32 v9, v10, 4, v9
        v_lshlrev_b32 v8, 7, v8
        s_lshl_b32 s6, s{sG}, 14
        s_lshl_b32 s7, s{sW}, 8
        s_add_u32 s6, s6, s7
        s_add_u32 s6, s6, {WS_OP}
        s_lshl_b32 s8, s{sG}, 11
        s_lshr_b32 s7, s{sW}, 1
        s_lshl_b32 s7, s7, 3
        s_add_u32 s8, s8, s7
        s_add_u32 s8, s8, {WS_ST}
        s_add_u32 s9, s6, 4096
        s_add_u32 s10, s6, 8192
        s_add_u32 s11, s6, 12288
        s_lshl_b32 s7, s{sW}, 8
        v_lshlrev_b32 v10, 4, v10
        v_add_u32 v10, s7, v10
        v_lshrrev_b32 v11, 3, v1
        v_lshlrev_b32 v11, 2, v11
        v_add_u32 v11, s7, v11
        s_mul_i32 s73, s{sG}, 2304
        s_lshl_b32 s7, s71, 8
        s_add_u32 s73, s73, s7
        s_add_u32 s73, s73, {WS_AP}
        """)
        self.set_addr(2, 40)
        a(f"""
        s_lshl_b32 s7, s{sW}, 9
        v_add_u32 v2, s7, v2
        v_lshlrev_b32 v41, 4, v1             ; v41 = l*16
        """)

    def hop1(self, WB):
        a = self.a
        GB = 128
        self.poll_begin('L_h1')
        for i, so in enumerate(('s6', 's9', 's10', 's11')):
            a(f'buffer_load_dwordx4 {vr(GB+4*i,4)}, v9, {sr(SRD_WS,4)}, {so} offen sc1')
        for i in range(4):
            a(f'buffer_load_dwordx2 {vr(144+2*i,2)}, v8, {sr(SRD_WS,4)}, s8 offen offset:{512*i} sc1')
        a('s_waitcnt vmcnt(0)')
        if self.diag:
            a(f's_cmp_lg_u32 s{sCNT}, 0')
            a('s_cbranch_scc1 L_h1_ns')
            self.stamp(11)
            a.label('L_h1_ns')
        self.sent_check(list(range(128, 152)), 152, 153)
        self._poll_tail('L_h1', 0)
        if self.diag: a(f'v_writelane_b32 v3, s{sCNT}, 13')
        a(f"""
        v_max3_f32 v152, v144, v146, v148
        v_max_f32 v152, v152, v150
        """)
        self.xgroup('v_max_f32', [152], [153])
        for i in range(4): a(f'v_sub_f32 v{144+2*i}, v{144+2*i}, v152')
        for i in range(4): a(f'v_mul_f32 v{144+2*i}, s{sLOG2E}, v{144+2*i}')
        for i in range(4): a(f'v_exp_f32 v{144+2*i}, v{144+2*i}')
        O = [156, 157, 158, 159, 160]
        for r in range(4): a(f'v_mul_f32 v{156+r}, v144, v{GB+r}')
        a('v_mul_f32 v160, v144, v145')
        for i in range(1, 4):
            for r in range(4): a(f'v_fmac_f32 v{156+r}, v{144+2*i}, v{GB+4*i+r}')
            a(f'v_fmac_f32 v160, v{144+2*i}, v{145+2*i}')
        self.xgroup('v_add_f32', O, [161, 162, 163, 164, 165])
        a('v_rcp_f32 v161, v160')
        self.stamp(8)
        for r in range(4): a(f'v_mul_f32 v{156+r}, v{156+r}, v161')
        for r in range(4): a(f'v_cvt_pk_bf16_f32 v{156+r}, v{156+r}, v{156+r}')
        a(f"""
        s_mov_b64 exec, 0xffff
        ds_write_b128 v10, v[156:159] offset:{LOXX}
        s_mov_b64 exec, -1
        s_waitcnt lgkmcnt(0)
        """)
        for i in range(8): a(f'ds_read_b32 v{132+i}, v11 offset:{LOXX + 32*i}')
        def mf(two):
            Areg = lambda i: (16, 20, 128)[i % 3]
            a('s_waitcnt lgkmcnt(7)')
            self.abuild(Areg(0), 132)
            for i in range(8):
                if i < 7:
                    a(f's_waitcnt lgkmcnt({6-i})')
                    self.abuild(Areg(i + 1), 132 + i + 1)
                c = '0' if i == 0 else 'v[144:147]'
                a(f'v_mfma_f32_16x16x32_bf16 v[144:147], {vr(Areg(i),4)}, {vr(WB+4*i,4)}, {c}')
                if two:
                    c = '0' if i == 0 else 'v[148:151]'
                    a(f'v_mfma_f32_16x16x32_bf16 v[148:151], {vr(Areg(i),4)}, {vr(WB+32+4*i,4)}, {c}')
        a(f"""
        s_cmp_eq_u32 s72, 1
        s_cbranch_scc1 L_h1_one
        """)
        mf(True)
        a('s_branch L_h1_mm')
        a.label('L_h1_one')
        mf(False)
        a.label('L_h1_mm')
        a('s_nop 7')
        self.setsum2([144, 148], [152, 154])
        self.exec_set(self.SETMASK)
        a(f'ds_write_b64 v2, v[152:153] offset:{LAP}')
        a(f'ds_write_b64 v2, v[154:155] offset:{LAP+256}')
        self.exec_all()
        a(f"""
        s_waitcnt lgkmcnt(0)
        s_barrier
        s_cmp_lg_u32 s{sW}, 0
        s_cbranch_scc1 L_h1_nopub
        s_mov_b64 exec, 0xffff
        s_cmp_eq_u32 s72, 1
        s_cbranch_scc1 L_h1_p1
        s_mov_b32 exec_lo, -1
        L_h1_p1:
        ds_read_b128 v[128:131], v41 offset:{LAP}
        ds_read_b128 v[132:135], v41 offset:{LAP+512}
        ds_read_b128 v[136:139], v41 offset:{LAP+1024}
        ds_read_b128 v[140:143], v41 offset:{LAP+1536}
        s_waitcnt lgkmcnt(0)
        """)
        for r in range(4):
            a(f'v_add_f32 v{128+r}, v{128+r}, v{132+r}')
            a(f'v_add_f32 v{136+r}, v{136+r}, v{140+r}')
        for r in range(4): a(f'v_add_f32 v{128+r}, v{128+r}, v{136+r}')
        a(f"""
        buffer_store_dwordx4 v[128:131], v41, {sr(SRD_WS,4)}, s73 offen sc1
        s_mov_b64 exec, -1
        L_h1_nopub:
        """)
        self.stamp(9)

    def hop2(self):
        a = self.a
        GB = 104
        a(f"""
        v_lshlrev_b32 v9, 4, v1
        s_mul_i32 s7, s{sW}, 576
        v_add_u32 v8, s7, v9
        s_add_u32 s7, s7, {WS_AP}
        s_lshl_b32 s6, s{sW}, 4
        v_mov_b32 v10, s6
        v_mov_b32 v11, 0
        s_sleep {self.sl_h2}
        """)
        self.exec_set((1 << 36) - 1)
        self.poll_begin('L_h2')
        a('s_mov_b32 s6, s7')
        for p in range(16):
            a(f'buffer_load_dwordx4 {vr(GB+4*p,4)}, v9, {sr(SRD_WS,4)}, s6 offen sc1')
            if p < 15: a('s_add_u32 s6, s6, 2304')
        a('s_waitcnt vmcnt(0)')
        for st in (8, 4, 2, 1):
            for p in range(st):
                for r in range(4): a(f'v_add_f32 v{GB+4*p+r}, v{GB+4*p+r}, v{GB+4*(p+st)+r}')
        a(f"""
        v_add_f32 v12, v{GB}, v{GB+1}
        v_add_f32 v13, v{GB+2}, v{GB+3}
        v_add_f32 v12, v12, v13
        """)
        self.poll_end('L_h2', 12)
        self.stamp(10)
        av = [GB, GB + 1, GB + 2, GB + 3]
        T = [12, 13]
        self.rnd(av, T)
        for r in range(4): a(f'v_mul_f32 v{GB+r}, v{GB+r}, v{24+r}')
        self.rnd(av, T)
        for r in range(4): a(f'v_add_f32 v{GB+r}, v{GB+r}, v{36+r}')
        self.rnd(av, T)
        a(f'v_readfirstlane_b32 s64, v{GB}')
        self.exec_all()
        a('v_mov_b32 v16, 0'); a('v_mov_b32 v17, 0')
        self.exec_set((1 << 36) - 1)
        for r in range(4): a(f'v_subrev_f32 v{112+r}, s64, v{GB+r}')
        a('v_add_f32 v16, v112, v113'); a('v_mul_f32 v17, v112, v112')
        a('v_add_f32 v18, v114, v115'); a('v_fmac_f32 v17, v113, v113')
        a('v_add_f32 v16, v16, v18'); a('v_fmac_f32 v17, v114, v114')
        a('v_fmac_f32 v17, v115, v115')
        self.exec_all()
        self.wave_red('v_add_f32', [16, 17], [18, 19])
        a(f"""
        v_mov_b32 v18, v17
        v_mov_b32 v17, v16
        v_mov_b32 v16, s64
        v_mov_b32 v19, 0
        s_mov_b64 exec, 1
        ds_write_b128 v10, v[16:19] offset:{LST2}
        s_mov_b64 exec, -1
        s_waitcnt lgkmcnt(0)
        s_barrier                            ; Bh1
        ds_read_b128 v[116:119], v11 offset:{LST2}
        ds_read_b128 v[120:123], v11 offset:{LST2+16}
        ds_read_b128 v[124:127], v11 offset:{LST2+32}
        ds_read_b128 v[128:131], v11 offset:{LST2+48}
        s_waitcnt lgkmcnt(0)
        v_add_f32 v16, v116, v120
        v_add_f32 v17, v124, v128
        v_add_f32 v18, v117, v121
        v_add_f32 v19, v125, v129
        v_add_f32 v16, v16, v17
        v_add_f32 v18, v18, v19
        v_mul_f32 v16, 0x43100000, v16       ; *144
        v_add_f32 v16, v16, v18
        v_mul_f32 v16, {f2u(1.0/576):#x}, v16   ; mean (f32)
        """)
        for w in range(4): a(f'v_sub_f32 v{116+4*w}, v{116+4*w}, v16')
        for w in range(4): a(f'v_add_f32 v{117+4*w}, v{117+4*w}, v{117+4*w}')
        for w in range(4): a(f'v_fmac_f32 v{117+4*w}, 0x43100000, v{116+4*w}')
        for w in range(4): a(f'v_fmac_f32 v{118+4*w}, v{116+4*w}, v{117+4*w}')
        a(f"""
        v_add_f32 v17, v118, v122
        v_add_f32 v18, v126, v130
        v_add_f32 v17, v17, v18
        v_mul_f32 v17, {f2u(1.0/576):#x}, v17
        """)
        self.ln_finish(16, 17, 18)
        self.ln_apply(av, mean=16, sd=17, tmps=T)
        for r in range(4): a(f'v_mul_f32 v{GB+r}, v{GB+r}, v{32+r}')
        self.rnd(av, T)
        for r in range(4): a(f'v_add_f32 v{GB+r}, v{GB+r}, v{28+r}')
        for r in range(4): a(f'v_cvt_pk_bf16_f32 v{GB+r}, v{GB+r}, v{GB+r}')
        self.exec_set((1 << 36) - 1)
        a(f'ds_write_b128 v8, {vr(GB,4)} offset:{LH2}')
        self.exec_all()
        a('s_waitcnt lgkmcnt(0)')
        self.stamp(11)
        a('s_barrier')
        self.end_wave()

    def reducer(self):
        a = self.a
        GB = 96
        a(f"""
        v_lshrrev_b32 v8, 2, v1
        v_mul_u32_u24 v8, 2304, v8
        v_and_b32 v9, 3, v1
        v_lshl_add_u32 v8, v9, 4, v8
        s_lshl_b32 s7, s69, 6
        s_add_u32 s6, s7, {WS_AP}
        """)
        self.srd_plain(SRD_A, POUT, 1152)
        self.poll_begin('L_r1')
        a(f"""
        buffer_load_dwordx4 v[12:15], v8, {sr(SRD_WS,4)}, s6 offen sc1
        s_waitcnt vmcnt(0)
        """)
        av = [12, 13, 14, 15]
        self.row_red('v_add_f32', av, rors=(8, 4))
        self.xgroup('v_add_f32', av, [16, 17, 18, 19])
        a(f"""
        v_add_f32 v16, v12, v13
        v_add_f32 v17, v14, v15
        v_add_f32 v16, v16, v17
        """)
        self.poll_end('L_r1', 16, sleep=2)
        self.rnd(av, [16, 17])
        for r in range(4): a(f'v_mul_f32 v{12+r}, v{12+r}, v{24+r}')
        self.rnd(av, [16, 17])
        for r in range(4): a(f'v_add_f32 v{32+r}, v{12+r}, v{36+r}')
        self.rnd([32, 33, 34, 35], [16, 17])
        a(f"""
        v_lshlrev_b32 v10, 3, v1
        s_lshl_b32 s10, s69, 5
        v_mov_b32 v14, s{sTAG}
        v_mov_b32 v15, {WS_EPOCH}
        """)
        self.stamp(10)
        a(f's_add_u32 s7, s7, {WS_YP}')
        a(f's_sleep {self.sl_h2}')
        self.poll_begin('L_r2')
        a('s_mov_b32 s6, s7')
        for i in range(9):
            a(f'buffer_load_dwordx4 {vr(GB+4*i,4)}, v8, {sr(SRD_WS,4)}, s6 offen sc1')
            if i < 8: a(f's_add_u32 s6, s6, {16*2304}')
        a('s_waitcnt vmcnt(0)')
        self.sent_check(list(range(GB, GB + 36)), 16, 17)
        self._poll_tail('L_r2', 0)
        for (x, y) in ((0, 1), (2, 3), (4, 5), (6, 7), (0, 2), (4, 6), (0, 8), (0, 4)):
            for r in range(4): a(f'v_add_f32 v{GB+4*x+r}, v{GB+4*x+r}, v{GB+4*y+r}')
        yv = [GB, GB + 1, GB + 2, GB + 3]
        self.row_red('v_add_f32', yv, rors=(8, 4))
        self.xgroup('v_add_f32', yv, [16, 17, 18, 19])
        self.stamp(11)
        self.rnd(yv, [16, 17])
        for r in range(4): a(f'v_mul_f32 v{GB+r}, v{GB+r}, v{28+r}')
        self.rnd(yv, [16, 17])
        for r in range(4): a(f'v_add_f32 v{GB+r}, v{GB+r}, v{32+r}')
        a(f"""
        v_cvt_pk_bf16_f32 v12, v{GB}, v{GB+1}
        v_cvt_pk_bf16_f32 v13, v{GB+2}, v{GB+3}
        s_mov_b64 exec, 0xf
        buffer_store_dwordx2 v[12:13], v10, {sr(SRD_A,4)}, s10 offen
        s_mov_b64 exec, 1
        s_cmp_lg_u32 s69, 0
        s_cbranch_scc1 L_r_noepoch
        buffer_store_dword v14, v15, {sr(SRD_WS,4)}, 0 offen sc1
        L_r_noepoch:
        s_mov_b64 exec, -1
        """)
        self.end_wave()

    def build(self):
        self.prologue()
        self.stream()
        self.chain()
        self.a.label('L_exit')
        self.a('s_endpgm')
        self.a.label('L_code_end')
        body = self.a.text()
        return wrap(body, 256, 768, LDS_BYTES, 168)

if __name__ == '__main__':
    import argparse
    ap = argparse.ArgumentParser()
    ap.add_argument('-o', default='k.s'); ap.add_argument('--diag', action='store_true')
    ap.add_argument('--depth', type=int, default=3)
    for n, d in (('sl_stream', 16), ('sl_p1', 4), ('sl_q0', 32), ('sl_m0', 8), ('sl_h2', 16)):
        ap.add_argument('--' + n, type=int, default=d)
    ap.add_argument('--nopf', action='store_true')
    ap.add_argument('--nb1', type=int, default=16); ap.add_argument('--extra', type=int, default=0); ap.add_argument('--dk', type=int, default=3); ap.add_argument('--early_wo', type=int, default=4); ap.add_argument('--early_w2', type=int, default=4); ap.add_argument('--nohint', action='store_true')
    for n, d in (('dt_wo', 2), ('thr_wo', 8), ('dt_ffn', 2), ('thr_ffn', 6)): ap.add_argument('--' + n, type=int, default=d)
    ap.add_argument('--w2_first', action='store_true'); ap.add_argument('--pf1', action='store_true'); ap.add_argument('--pf2', action='store_true'); ap.add_argument('--pf_nont', action='store_true'); ap.add_argument('--sl_ffn', type=int, default=0); ap.add_argument('--early2', action='store_true'); ap.add_argument('--sl_q1', type=int, default=0); ap.add_argument('--sl_hint', type=int, default=8)
    args = ap.parse_args()
    g = Gen(depth=args.depth, diag=args.diag, sl_stream=args.sl_stream, sl_p1=args.sl_p1, sl_q0=args.sl_q0, sl_m0=args.sl_m0, sl_h2=args.sl_h2, prefetch_code=not args.nopf, nb1=args.nb1, extra=args.extra, sl_hint=args.sl_hint, dk=args.dk, early_wo=args.early_wo, early_w2=args.early_w2, hint=not args.nohint, dt_wo=args.dt_wo, thr_wo=args.thr_wo, dt_ffn=args.dt_ffn, thr_ffn=args.thr_ffn, w2_first=args.w2_first, pf1=args.pf1, pf2=args.pf2, pf_nt=not args.pf_nont, sl_ffn=args.sl_ffn, early2=args.early2, sl_q1=args.sl_q1)
    s = g.build()
    open(args.o, 'w').write(s)
    print('hazard pads inserted:', g.a.ninsert, 'lines', s.count('\n'))
```

```python
import sys, struct
from asmgen import *

WS_EPOCH = 0x0
WS_FLAGS = 0x1000
WS_MODP = 0x2000
MODP_P = 3456 * 8
WS_QP = 0x10000
QP_P = 4096 * 8
WS_OP = 0x20000
WS_ST = 0x60000
WS_AP = 0x70000
WS_YP = 0x80000
WS_RC = 0x7F000
WS_UX = 0x7A000
WS_DIAG = 0x800000
WS_SRD_SIZE = 0x1000000
LQ = 0x0000; LMX = 0x0200; LLS = 0x0240; LST2 = 0x0280; LF_XX = 0x02C0; LF_Q = 0x02C4; LCNT = 0x02C8; LCNT2 = 0x02CC; LCNT_V = 0x02D0; LROLE = 0x02D4; LCNT_T = 0x02D8; LCNT_Q = 0x02DC; LCNT_W = 0x02E0
LH2 = 0x0300
LUS = 0x1000
LUP = 0x0C00
LAP = 0x0E00
LXXT = 0x1700; LOXX = 0x1C00; LOP = 0x2000
LDS_BYTES = 0x4000
sB = 2; sW = 3; sG = 4; sS = 5
PX, PK, PV, PWQ, PWO, PW1, PW2, PC, PWM, POUT, PDBG, PWS = 16, 18, 20, 22, 24, 28, 30, 32, 34, 36, 38, 40
sTAG = 42; sCNT = 43
SRD_WS = 44; SRD_A = 48; SRD_B = 52
sSCALE = 56; sLOG2E = 57; sF = 58; sSLOT = 59
SCALE = 0x3DB504F3
LOG2E = 0x3FB8AA3B
MAXSPIN = 200000
NT = ' nt'
ALL = (1 << 64) - 1

def f2u(x):
    return struct.unpack('<I', struct.pack('<f', x))[0]

class VM:
    def __init__(self, a):
        self.a = a; self.q = []; self.done = 0
    def issue(self, tag, text):
        self.a(text); self.q.append(tag)
    def wait(self, tag):
        i = self.q.index(tag)
        if i < self.done: return
        n = len(self.q) - 1 - i
        self.a(f's_waitcnt vmcnt({min(n, 63)})')
        self.done = i + 1

class Gen:
    def __init__(self, depth=3, diag=False, prefetch_code=True, sl_stream=16, sl_p1=4, sl_q0=32, sl_m0=8, sl_h2=16, nb1=16, extra=0, sl_hint=8, dk=3, early_wo=4, early_w2=4, hint=True, dt_wo=2, thr_wo=8, dt_ffn=2, thr_ffn=6, w2_first=False, pf1=False, pf2=False, pf_nt=True, pf1_wave=3, sl_ffn=0, early2=False, sl_q1=0, cks=(4, 7, 10, 13), wo_wait=False, ffn_first=True, tk=8, sl_stag=4):
        self.a = Asm(); self.depth = depth; self.diag = diag
        self.prefetch_code = prefetch_code; self.nb1 = nb1; self.extra = extra; self.sl_hint = sl_hint; self.dk = dk; self.early_wo = early_wo; self.early_w2 = early_w2; self.hint = hint; self.dt_wo = dt_wo; self.thr_wo = thr_wo; self.dt_ffn = dt_ffn; self.thr_ffn = thr_ffn; self.w2_first = w2_first; self.pf1 = pf1; self.pf2 = pf2; self.pf_policy = ' nt' if pf_nt else ''; self.pf1_wave = pf1_wave; self.sl_ffn = sl_ffn; self.early2 = early2; self.sl_q1 = sl_q1; self.cks = cks; self.wo_wait = wo_wait; self.ffn_first = ffn_first; self.tk = tk; self.sl_stag = sl_stag
        self.sl_stream = sl_stream; self.sl_p1 = sl_p1; self.sl_q0 = sl_q0; self.sl_m0 = sl_m0; self.sl_h2 = sl_h2

    def stamp(self, idx):
        if not self.diag: return
        self.a(f'''
        s_memrealtime s[92:93]
        s_waitcnt lgkmcnt(0)
        v_writelane_b32 v3, s92, {idx}
        ''')
    def exec_set(self, mask):
        a = self.a
        lo = mask & 0xffffffff; hi = mask >> 32
        if mask == ALL: a('s_mov_b64 exec, -1')
        elif hi == 0 and lo <= 0x7fffffff and False: a(f's_mov_b64 exec, {lo:#x}')
        else:
            a(f's_mov_b32 exec_lo, {lo:#x}'); a(f's_mov_b32 exec_hi, {hi:#x}')
    def exec_all(self): self.a('s_mov_b64 exec, -1')
    def rnd(self, regs, tmps):
        a = self.a
        regs = list(regs)
        if isinstance(tmps, int): tmps = [tmps]
        pairs = [(regs[i], regs[i + 1] if i + 1 < len(regs) else None) for i in range(0, len(regs), 2)]
        for c in range(0, len(pairs), len(tmps)):
            grp = pairs[c:c + len(tmps)]
            for (x, y), t in zip(grp, tmps): a(f'v_cvt_pk_bf16_f32 v{t}, v{x}, v{y if y is not None else x}')
            for (x, y), t in zip(grp, tmps):
                a(f'v_lshlrev_b32 v{x}, 16, v{t}')
                if y is not None: a(f'v_and_b32 v{y}, 0xffff0000, v{t}')
    def unpack(self, src, lo, hi):
        self.a(f'v_lshlrev_b32 v{lo}, 16, v{src}')
        self.a(f'v_and_b32 v{hi}, 0xffff0000, v{src}')
    def xstep(self, op, regs, tmps, st):
        a = self.a
        sw = 'v_permlane16_swap_b32' if st == 16 else 'v_permlane32_swap_b32'
        n = len(regs)
        for i, r in enumerate(regs): a(f'v_mov_b32 v{tmps[i]}, v{r}')
        for i, r in enumerate(regs): a(f'{sw} v{r}, v{tmps[i]}')
        for i, r in enumerate(regs): a(f'{op} v{r}, v{r}, v{tmps[i]}')
    def xgroup(self, op, regs, tmps, steps=(16, 32)):
        for st in steps: self.xstep(op, regs, tmps, st)
    def row_red(self, op, regs, rors=(8, 4, 2, 1)):
        a = self.a
        for n in rors:
            for r in regs:
                a(f'{op}_dpp v{r}, v{r}, v{r} row_ror:{n} row_mask:0xf bank_mask:0xf')
    def wave_red(self, op, regs, tmps):
        self.row_red(op, regs)
        self.xgroup(op, regs, tmps)
    def masks(self, m0, t):
        a = self.a
        a(f'''
        v_and_b32 v{t}, 1, v1
        v_lshlrev_b32 v{t}, 4, v{t}
        v_mov_b32 v{m0}, 0xffff
        v_lshlrev_b32 v{m0+3}, v{t}, v{m0}
        v_bfe_u32 v{t}, v1, 1, 2
        ''')
        for w in range(4):
            a(f'v_cmp_eq_u32 vcc, {w}, v{t}')
            a(f'v_cndmask_b32 v{m0+w}, 0, v{m0+3}, vcc')
    def abuild(self, dst, xx, m0=4):
        for w in range(4):
            self.a(f'v_and_b32 v{dst+w}, v{xx}, v{m0+w}')
    def poll_begin(self, name):
        self.a(f's_mov_b32 s{sCNT}, 0')
        self.a.label(name)
    def _poll_tail(self, name, sleep):
        a = self.a
        a(f'''
        s_cbranch_vccz {name}_done
        s_add_u32 s{sCNT}, s{sCNT}, 1
        s_cmp_lt_u32 s{sCNT}, {MAXSPIN}
        s_cbranch_scc0 {name}_done
        ''')
        if sleep: a(f's_sleep {sleep}')
        a(f'''
        s_branch {name}
        {name}_done:
        ''')
    def poll_end(self, name, chk, sleep=0):
        self.a(f'v_cmp_u_f32 vcc, v{chk}, v{chk}')
        self._poll_tail(name, sleep)
    def poll_end_nz(self, name, chk, sleep=1):
        self.a(f'v_cmp_ne_u32 vcc, 0, v{chk}')
        self._poll_tail(name, sleep)
    def sent_check(self, regs, t1, t2):
        a = self.a
        regs = list(regs)
        acc = [t1, t2]
        a(f'v_max3_u32 v{t1}, v{regs[0]}, v{regs[1]}, v{regs[2]}')
        a(f'v_max3_u32 v{t2}, v{regs[3]}, v{regs[4]}, v{regs[5]}')
        i = 6; k = 0
        while i < len(regs):
            r2 = regs[i + 1] if i + 1 < len(regs) else regs[i]
            a(f'v_max3_u32 v{acc[k]}, v{acc[k]}, v{regs[i]}, v{r2}')
            i += 2; k ^= 1
        a(f'v_max_u32 v{t1}, v{t1}, v{t2}')
        a(f'v_cmp_eq_u32 vcc, -1, v{t1}')
    def tag_check(self, tags, t1, t2):
        a = self.a
        tags = list(tags)
        a(f'v_min_u32 v{t1}, v{tags[0]}, v{tags[1]}')
        a(f'v_max_u32 v{t2}, v{tags[0]}, v{tags[1]}')
        for i in range(2, len(tags) - 1, 2):
            a(f'v_min3_u32 v{t1}, v{t1}, v{tags[i]}, v{tags[i+1]}')
            a(f'v_max3_u32 v{t2}, v{t2}, v{tags[i]}, v{tags[i+1]}')
        a(f'v_xor_b32 v{t1}, s{sTAG}, v{t1}')
        a(f'v_xor_b32 v{t2}, s{sTAG}, v{t2}')
        a(f'v_or_b32 v{t1}, v{t1}, v{t2}')
    def shint(self, name, base, offs, s0, sleep=None):
        a = self.a
        sleep = self.sl_hint if sleep is None else sleep
        a(f's_mov_b32 s{sCNT}, 0')
        a.label(name)
        for i, o in enumerate(offs): a(f's_load_dword s{s0+i}, {sr(base,2)}, {o} glc')
        a('s_waitcnt lgkmcnt(0)')
        a(f's_xor_b32 s6, s{s0}, s{sTAG}') if False else None
        a(f's_xor_b32 s15, s{s0}, s{sTAG}')
        for i in range(1, len(offs)):
            a(f's_xor_b32 s14, s{s0+i}, s{sTAG}')
            a(f's_or_b32 s15, s15, s14')
        a(f'''
        s_cmp_eq_u32 s15, 0
        s_cbranch_scc1 {name}_done
        s_add_u32 s{sCNT}, s{sCNT}, 1
        s_cmp_lt_u32 s{sCNT}, {MAXSPIN}
        s_cbranch_scc0 {name}_done
        s_sleep {sleep}
        s_branch {name}
        {name}_done:
        ''')
    def lds_wait_cnt(self, name, addr, n, vt):
        a = self.a
        a(f'''
        s_mov_b32 s{sCNT}, 0
        v_mov_b32 v{vt}, {addr}
        {name}:
        ds_read_b32 v{vt+1}, v{vt}
        s_add_u32 s{sCNT}, s{sCNT}, 1
        s_cmp_lt_u32 s{sCNT}, {MAXSPIN*8}
        s_cbranch_scc0 {name}_done
        s_waitcnt lgkmcnt(0)
        v_cmp_ne_u32 vcc, {n}, v{vt+1}
        s_cbranch_vccz {name}_done
        s_sleep 1
        s_branch {name}
        {name}_done:
        s_waitcnt lgkmcnt(0)
        ''')
    def lds_wait_flag(self, name, addr, vt):
        a = self.a
        a(f'''
        s_mov_b32 s{sCNT}, 0
        v_mov_b32 v{vt}, {addr}
        {name}:
        ds_read_b32 v{vt+1}, v{vt}
        s_waitcnt lgkmcnt(0)
        v_cmp_ne_u32 vcc, 1, v{vt+1}
        s_cbranch_vccz {name}_done
        s_add_u32 s{sCNT}, s{sCNT}, 1
        s_cmp_lt_u32 s{sCNT}, {MAXSPIN*8}
        s_cbranch_scc0 {name}_done
        s_sleep 1
        s_branch {name}
        {name}_done:
        ''')
    def flags_check(self, name, vo, vd, sleep=16):
        a = self.a
        a(f'''
        v_lshlrev_b32 v{vo}, 4, v1
        s_mov_b32 s{sCNT}, 0
        s_mov_b32 s6, {WS_FLAGS}
        {name}:
        buffer_load_dwordx4 {vr(vd,4)}, v{vo}, {sr(SRD_WS,4)}, s6 offen sc1
        s_waitcnt vmcnt(0)
        ''')
        self.tag_check([vd, vd + 1, vd + 2, vd + 3], vo + 1, vo + 2)
        self.a(f'v_cmp_ne_u32 vcc, 0, v{vo+1}')
        self._poll_tail(name, sleep)
    def srd(self, s, ptr, off_s, size):
        a = self.a
        a(f's_add_u32 s{s}, s{ptr}, s{off_s}')
        a(f's_addc_u32 s{s+1}, s{ptr+1}, 0')
        a(f's_mov_b32 s{s+2}, {size}')
        a(f's_mov_b32 s{s+3}, 0x20000')
    def srd_plain(self, s, ptr, size):
        a = self.a
        a(f's_mov_b32 s{s}, s{ptr}'); a(f's_mov_b32 s{s+1}, s{ptr+1}')
        a(f's_mov_b32 s{s+2}, {size}'); a(f's_mov_b32 s{s+3}, 0x20000')
    def setsum2(self, ds, outs):
        a = self.a
        for d in ds:
            a(f'v_permlane32_swap_b32 v{d}, v{d+2}')
            a(f'v_permlane32_swap_b32 v{d+1}, v{d+3}')
        for d, o in zip(ds, outs):
            a(f'v_add_f32_dpp v{o}, v{d+2}, v{d} row_ror:8 row_mask:0xf bank_mask:0xf')
            a(f'v_add_f32_dpp v{o+1}, v{d+3}, v{d+1} row_ror:8 row_mask:0xf bank_mask:0xf')
    def setsum4(self, ds, outs):
        a = self.a
        self.setsum2(ds, outs)
        for o in outs:
            a(f'v_mov_b32 v{o+2}, v{o}')
            a(f'v_mov_b32 v{o+3}, v{o+1}')
        for o in outs:
            a(f'v_permlane32_swap_b32 v{o}, v{o+2}')
            a(f'v_permlane32_swap_b32 v{o+1}, v{o+3}')
    def set_addr4(self, dst, t):
        a = self.a
        a(f'''
        v_and_b32 v{dst}, 7, v1
        v_lshlrev_b32 v{dst}, 5, v{dst}
        v_bfe_u32 v{t}, v1, 4, 1
        v_lshl_add_u32 v{dst}, v{t}, 4, v{dst}
        ''')
    def quad_gather(self, src, dst):
        for j in range(4):
            self.a(f'v_mov_b32_dpp v{dst+j}, v{src} quad_perm:[{j},{j},{j},{j}] row_mask:0xf bank_mask:0xf')
    def set_addr(self, dst, t):
        a = self.a
        a(f'''
        v_and_b32 v{dst}, 7, v1
        v_lshlrev_b32 v{dst}, 5, v{dst}
        v_bfe_u32 v{t}, v1, 4, 1
        v_lshl_add_u32 v{dst}, v{t}, 4, v{dst}
        v_lshrrev_b32 v{t}, 5, v1
        v_lshl_add_u32 v{dst}, v{t}, 3, v{dst}
        ''')
    SETMASK = 0x00FF00FF00FF00FF
    def silu(self, regs, tmps):
        a = self.a
        for r, t in zip(regs, tmps): a(f'v_mul_f32 v{t}, 0xbfb8aa3b, v{r}')
        for r, t in zip(regs, tmps): a(f'v_exp_f32 v{t}, v{t}')
        for r, t in zip(regs, tmps): a(f'v_add_f32 v{t}, 1.0, v{t}')
        for r, t in zip(regs, tmps): a(f'v_rcp_f32 v{t}, v{t}')
        for r, t in zip(regs, tmps): a(f'v_mul_f32 v{r}, v{r}, v{t}')
    def end_wave(self):
        a = self.a
        if self.diag:
            self.stamp(15)
            a(f'''
            s_memtime s[86:87]
            s_waitcnt lgkmcnt(0)
            s_sub_u32 s86, s86, s88
            v_writelane_b32 v3, s86, 14
            s_mov_b64 exec, -1
            s_lshl_b32 s6, s{sB}, 10
            s_lshl_b32 s7, s94, 6
            s_add_u32 s6, s6, s7
            s_add_u32 s6, s6, {WS_DIAG}
            v_lshlrev_b32 v2, 2, v1
            s_mov_b64 exec, 0xffff
            buffer_store_dword v3, v2, {sr(SRD_WS,4)}, s6 offen
            ''')
        a('s_endpgm')

    def prologue(self):
        a = self.a
        if self.diag: a('s_memrealtime s[90:91]'); a('s_memtime s[88:89]')
        a(f'''
        s_cmp_ge_u32 s{sB}, 256
        s_cbranch_scc1 L_exit
        s_load_dwordx16 s[16:31], s[0:1], 0
        s_load_dwordx8 s[32:39], s[0:1], 64
        s_load_dwordx2 s[40:41], s[0:1], 96
        ''')
        if self.prefetch_code:
            a(f'''
            s_getpc_b64 s[64:65]
            L_pc:
            s_sub_u32 s{SRD_A}, s64, (L_pc - {KNAME})
            s_subb_u32 s{SRD_A+1}, s65, 0
            s_mov_b32 s{SRD_A+2}, (L_code_end - {KNAME})
            s_mov_b32 s{SRD_A+3}, 0x20000
            v_lshlrev_b32 v2, 7, v0
            buffer_load_dword v167, v2, {sr(SRD_A,4)}, 0 offen
            ''')
        a(f'''
        v_lshrrev_b32 v2, 6, v0
        v_and_b32 v1, 63, v0
        v_readfirstlane_b32 s{sW}, v2
        s_and_b32 s6, s{sB}, 7
        s_mov_b32 s94, s{sW}
        s_lshr_b32 s7, s{sB}, 3
        s_lshl_b32 s{sG}, s6, 1
        s_lshr_b32 s8, s7, 4
        s_add_u32 s{sG}, s{sG}, s8
        s_and_b32 s{sS}, s7, 15
        s_lshl_b32 s{sSLOT}, s{sG}, 4
        s_add_u32 s{sSLOT}, s{sSLOT}, s{sS}
        s_mul_i32 s{sF}, s{sG}, 9
        s_add_u32 s{sF}, s{sF}, s{sS}
        s_sub_u32 s{sF}, s{sF}, 7
        s_mov_b32 s{sSCALE}, {SCALE:#x}
        s_mov_b32 s{sLOG2E}, {LOG2E:#x}
        v_mov_b32 v3, 0
        s_waitcnt lgkmcnt(0)
        s_mov_b32 s{SRD_WS}, s{PWS}
        s_mov_b32 s{SRD_WS+1}, s{PWS+1}
        s_mov_b32 s{SRD_WS+2}, {WS_SRD_SIZE}
        s_mov_b32 s{SRD_WS+3}, 0x20000
        ''')
        if self.diag: a('v_writelane_b32 v3, s90, 0')
        a(f'''
        s_cmp_ge_u32 s{sW}, 8
        s_cbranch_scc1 L_chain
        ''')

    def stream(self):
        a = self.a; DK = self.dk; DV = self.depth
        KB, VB = 40, 104
        SB = 20; PM = 28
        a(f"""
        s_load_dword s{sTAG}, {sr(PWS,2)}, {WS_EPOCH}
        s_lshl_b32 s6, s{sG}, 21
        s_lshl_b32 s7, s{sS}, 17
        s_add_u32 s6, s6, s7
        s_lshl_b32 s7, s{sW}, 14
        s_add_u32 s6, s6, s7
        """)
        self.srd(SRD_A, PK, 6, 16384)
        self.srd(SRD_B, PV, 6, 16384)
        a(f"""
        v_lshrrev_b32 v8, 4, v1
        v_bfe_u32 v9, v1, 2, 2
        v_and_b32 v10, 3, v1
        v_lshlrev_b32 v8, 6, v8
        v_lshlrev_b32 v9, 8, v9
        v_lshlrev_b32 v10, 4, v10
        v_add3_u32 v36, v8, v9, v10          ; K voffset
        v_lshlrev_b32 v37, 4, v1             ; V voffset
        s_mov_b32 s61, 4096
        s_mov_b32 s62, 8192
        s_mov_b32 s63, 12288
        s_mov_b32 s71, 0
        s_barrier                            ; B0
        """)
        vm = VM(a)
        def ld(kind, t):
            so = '0' if t < 4 else f's{60 + t // 4}'
            off = (t % 4) * 1024
            if kind == 'K':
                return f'buffer_load_dwordx4 {vr(KB+4*t,4)}, v36, {sr(SRD_A,4)}, {so} offen offset:{off}{NT}'
            return f'buffer_load_dwordx4 {vr(VB+4*t,4)}, v37, {sr(SRD_B,4)}, {so} offen offset:{off}{NT}'
        seq = [('K', t) for t in range(16)] + [('V', t) for t in range(16)]
        if self.sl_stream: a(f's_sleep {self.sl_stream}')
        st = {'pos': 0}
        def pump(depth):
            pos = st['pos']
            if pos >= 32: return
            if pos >= depth: vm.wait(seq[pos - depth])
            vm.issue(seq[pos], ld(*seq[pos]))
            st['pos'] = pos + 1
        for _ in range(DK): pump(DK)
        self.stamp(1)
        self.masks(4, 8)
        a(f"""
        v_bfe_u32 v16, v1, 3, 1              ; head
        v_lshlrev_b32 v38, 5, v16
        s_lshl_b32 s6, s{sW}, 2
        v_add_u32 v39, s6, v38               ; head*32 + w*4
        v_lshlrev_b32 v16, 8, v16
        v_lshrrev_b32 v17, 4, v1
        v_lshlrev_b32 v17, 6, v17
        v_and_b32 v18, 3, v1
        v_lshlrev_b32 v18, 4, v18
        v_add3_u32 v0, v16, v17, v18
        v_lshrrev_b32 v8, 5, v1
        v_lshlrev_b32 v8, 12, v8
        v_and_b32 v9, 31, v1
        v_lshlrev_b32 v9, 2, v9
        s_lshl_b32 s6, s{sW}, 7
        v_add3_u32 v2, v8, v9, s6
        s_lshl_b32 s8, s{sSLOT}, 10
        s_add_u32 s8, s8, {WS_OP}
        s_mov_b32 s66, 0xf0f0f0f0
        s_mov_b32 s67, 0xf0f0f0f0
        """)
        while st['pos'] < 16: pump(DK)
        a(f"""
        v_lshrrev_b32 v8, 5, v1
        v_lshlrev_b32 v8, 9, v8
        v_and_b32 v9, 15, v1
        v_lshl_add_u32 v8, v9, 5, v8
        v_bfe_u32 v9, v1, 4, 1
        v_lshl_add_u32 v8, v9, 4, v8
        s_lshl_b32 s6, s{sW}, 10
        v_add_u32 v36, s6, v8
        s_waitcnt lgkmcnt(0)
        s_add_u32 s{sTAG}, s{sTAG}, 1
        """)
        def check(k, blocking):
            lab = f'L_ck{k}'
            a(f"""
            s_cmp_lg_u32 s71, 0
            s_cbranch_scc1 {lab}_skip
            v_mov_b32 v16, {LF_Q}
            s_mov_b32 s{sCNT}, 0
            {lab}:
            ds_read_b32 v17, v16
            s_waitcnt lgkmcnt(0)
            v_readfirstlane_b32 s72, v17
            s_cmp_lg_u32 s72, 0
            s_cbranch_scc1 {lab}_go
            """)
            if blocking:
                a(f"""
                s_add_u32 s{sCNT}, s{sCNT}, 1
                s_cmp_lt_u32 s{sCNT}, {MAXSPIN*8}
                s_cbranch_scc0 {lab}_go
                s_sleep 1
                s_branch {lab}
                """)
            else:
                a(f's_branch {lab}_skip')
            a.label(f'{lab}_go')
            i = vm.q.index(('K', 15)); n = len(vm.q) - 1 - i
            a(f's_waitcnt vmcnt({n})')
            a(f's_call_b64 s[74:75], L_qk')
            a.label(f'{lab}_skip')
        cks = sorted(self.cks)
        while st['pos'] < 32:
            pump(DV)
            vpos = st['pos'] - 16
            if vpos == self.tk:
                a(f"""
                v_mov_b32 v16, {LCNT_T}
                v_mov_b32 v17, 1
                s_mov_b64 exec, 1
                ds_add_u32 v16, v17
                s_mov_b64 exec, -1
                """)
            if vpos in cks and vpos < 16: check(vpos, False)
        a(f"""
        v_mov_b32 v16, {LCNT_V}
        v_mov_b32 v17, 1
        s_mov_b64 exec, 1
        ds_add_u32 v16, v17
        s_mov_b64 exec, -1
        """)
        self.stamp(2)
        check(16, True)
        self.stamp(5)
        def pv(t):
            p, s_ = t // 2, t % 2
            A = 16 if t % 2 == 0 else 8
            for w in range(4):
                srcr = SB + p if (w >> 1) == s_ else PM + p
                a(f'v_and_b32 v{A+w}, v{srcr}, v{4+w}')
            vm.wait(('V', t))
            c = '0' if t == 0 else 'v[12:15]'
            a(f'v_mfma_f32_16x16x32_bf16 v[12:15], {vr(A,4)}, {vr(VB+4*t,4)}, {c}')
        for t in range(16): pv(t)
        a(f"""
        s_lshr_b32 s6, s{sW}, 2
        s_lshl_b32 s6, s6, 5
        v_lshrrev_b32 v0, 5, v1
        v_lshlrev_b32 v0, 4, v0
        v_add_u32 v0, s6, v0
        v_xor_b32 v37, 16, v0
        v_mov_b32 v16, {LCNT}
        v_mov_b32 v17, 1
        ds_write_b128 v36, v[12:15] offset:{LOP}
        s_mov_b64 exec, 1
        ds_add_u32 v16, v17
        s_mov_b64 exec, -1
        """)
        self.stamp(6)
        a(f"""
        s_mov_b32 s{sCNT}, 0
        L_sbar:
        ds_read_b32 v17, v16
        s_add_u32 s{sCNT}, s{sCNT}, 1
        s_cmp_lt_u32 s{sCNT}, {MAXSPIN*8}
        s_cbranch_scc0 L_sbar_done
        s_waitcnt lgkmcnt(0)
        v_cmp_ne_u32 vcc, 8, v17
        s_cbranch_vccnz L_sbar
        L_sbar_done:
        s_waitcnt lgkmcnt(0)
        ds_read_b128 v[8:11], v0 offset:{LMX}
        ds_read_b128 v[12:15], v37 offset:{LMX}
        """)
        for i in range(4): a(f'ds_read_b32 v{16+i}, v2 offset:{LOP + 1024*i}')
        a(f"""
        s_waitcnt lgkmcnt(4)
        v_max3_f32 v12, v12, v13, v14
        v_max3_f32 v20, v8, v9, v10
        v_max3_f32 v12, v12, v15, v11
        v_max_f32 v12, v12, v20
        """)
        for i in range(4): a(f'v_sub_f32 v{8+i}, v{8+i}, v12')
        for i in range(4): a(f'v_mul_f32 v{8+i}, s{sLOG2E}, v{8+i}')
        for i in range(4): a(f'v_exp_f32 v{8+i}, v{8+i}')
        a(f"""
        s_waitcnt lgkmcnt(0)
        v_mul_f32 v16, v16, v8
        v_mul_f32 v18, v18, v10
        v_fmac_f32 v16, v17, v9
        v_fmac_f32 v18, v19, v11
        v_add_f32 v16, v16, v18
        """)
        self.xstep('v_add_f32', [16], [17], 32)
        self.quad_gather(16, 20)
        a(f"""
        s_mov_b32 exec_lo, 0x11111111
        s_mov_b32 exec_hi, 0
        buffer_store_dwordx4 v[20:23], v2, {sr(SRD_WS,4)}, s8 offen sc1
        s_mov_b64 exec, -1
        """)
        self.stamp(8)
        a(f"""
        v_mov_b32 v16, {LROLE}
        s_mov_b32 s{sCNT}, 0
        L_s_role:
        ds_read_b32 v17, v16
        s_add_u32 s{sCNT}, s{sCNT}, 1
        s_cmp_lt_u32 s{sCNT}, {MAXSPIN*8}
        s_cbranch_scc0 L_s_role_done
        s_waitcnt lgkmcnt(0)
        v_readfirstlane_b32 s70, v17
        s_cmp_eq_u32 s70, 0
        s_cbranch_scc1 L_s_role
        L_s_role_done:
        s_waitcnt lgkmcnt(0)
        s_mov_b32 s71, 0
        s_sub_u32 s6, s70, 3
        s_cmp_ge_u32 s6, 9
        s_cbranch_scc1 L_s_sig
        s_cmp_ge_u32 s{sW}, 4
        s_cbranch_scc1 L_s_sig
        s_mov_b32 s71, 1
        """)
        self.ffn_consts_prep()
        self.exec_set((1 << 36) - 1)
        self.ffn_consts_issue()
        self.exec_all()
        a(f"""
        L_s_sig:
        v_mov_b32 v16, {LCNT2}
        v_mov_b32 v17, 1
        s_mov_b64 exec, 1
        ds_add_u32 v16, v17
        s_mov_b64 exec, -1
        """)
        self.stamp(7)
        a(f"""
        s_cmp_eq_u32 s71, 1
        s_cbranch_scc1 L_s_ffn
        """)
        self.end_wave()
        a.label('L_s_ffn')
        self.ffn_consts_finish()
        self.stamp(12)
        self.hop2()
        a.label('L_qk')
        self.stamp(3)
        a(f"""
        ds_read_b128 v[8:11], v0 offset:{LQ}
        s_waitcnt lgkmcnt(0)
        """)
        for r in range(4): a(f'v_cndmask_b32 v{12+r}, 0, v{8+r}, s[66:67]')
        for r in range(4): a(f'v_cndmask_b32 v{8+r}, v{8+r}, 0, s[66:67]')
        def dreg(p): return 16 if p == 0 else KB + 4 * (2 * p - 2)
        for p in range(8):
            a(f'v_mfma_f32_16x16x32_bf16 {vr(dreg(p),4)}, {vr(KB+8*p,4)}, v[8:11], 0')
            a(f'v_mfma_f32_16x16x32_bf16 {vr(dreg(p),4)}, {vr(KB+8*p+4,4)}, v[12:15], {vr(dreg(p),4)}')
        for p0 in range(0, 8, 4):
            for j, pat in enumerate(('[0,0,0,0]', '[1,1,1,1]', '[2,2,2,2]', '[3,3,3,3]')):
                for p in range(p0, p0 + 4):
                    d = dreg(p); s = SB + p
                    if j == 0: a(f'v_mov_b32_dpp v{s}, v{d} quad_perm:{pat} row_mask:0xf bank_mask:0xf')
                    else: a(f'v_add_f32_dpp v{s}, v{d+j}, v{s} quad_perm:{pat} row_mask:0xf bank_mask:0xf')
        sc = list(range(SB, SB + 8))
        T4 = [8, 9, 10, 11]
        self.rnd(sc, T4)
        for s in sc: a(f'v_mul_f32 v{s}, s{sSCALE}, v{s}')
        self.rnd(sc, T4)
        a(f'v_max3_f32 v16, v{SB}, v{SB+1}, v{SB+2}')
        a(f'v_max3_f32 v17, v{SB+3}, v{SB+4}, v{SB+5}')
        a(f'v_max3_f32 v16, v16, v{SB+6}, v{SB+7}')
        a(f'v_max_f32 v16, v16, v17')
        a(f'v_max_f32_dpp v16, v16, v16 row_half_mirror row_mask:0xf bank_mask:0xf')
        self.xgroup('v_max_f32', [16], [17])
        a(f"""
        s_mov_b64 exec, 0x101
        ds_write_b32 v39, v16 offset:{LMX}
        s_mov_b64 exec, -1
        v_mul_f32 v9, s{sLOG2E}, v16
        v_sub_f32 v9, 0, v9
        """)
        for s in sc: a(f'v_fma_f32 v{s}, v{s}, s{sLOG2E}, v9')
        for s in sc: a(f'v_exp_f32 v{s}, v{s}')
        a(f'v_add_f32 v8, v{SB}, v{SB+1}'); a(f'v_add_f32 v9, v{SB+2}, v{SB+3}')
        a(f'v_add_f32 v10, v{SB+4}, v{SB+5}'); a(f'v_add_f32 v11, v{SB+6}, v{SB+7}')
        for s in sc: a(f'v_cvt_pk_bf16_f32 v{s}, v{s}, v{s}')
        a('v_add_f32 v8, v8, v9'); a('v_add_f32 v10, v10, v11'); a('v_add_f32 v10, v10, v8')
        for p in range(8): a(f'v_mov_b32_dpp v{PM+p}, v{SB+p} row_half_mirror row_mask:0xf bank_mask:0xf')
        a(f'v_add_f32_dpp v10, v10, v10 row_half_mirror row_mask:0xf bank_mask:0xf')
        self.xgroup('v_add_f32', [10], [17])
        a(f"""
        s_mov_b64 exec, 0x101
        ds_write_b32 v39, v10 offset:{LLS}
        v_mov_b32 v16, {LCNT_Q}
        v_mov_b32 v17, 1
        s_mov_b64 exec, 1
        ds_add_u32 v16, v17
        s_mov_b64 exec, -1
        s_mov_b32 s71, 1
        """)
        self.stamp(4)
        a('s_setpc_b64 s[74:75]')

    def w2_loads(self, WB):
        a = self.a
        a(f'''
        s_mul_i32 s6, s{sF}, {32*1152}
        s_lshl_b32 s7, s{sW}, 7
        s_add_u32 s6, s6, s7
        ''')
        self.srd(SRD_B, PW2, 6, f'{4608*1152}')
        a(f'''
        s_sub_u32 s{SRD_B+2}, s{SRD_B+2}, s6
        v_lshrrev_b32 v8, 3, v1
        v_mul_u32_u24 v8, 1152, v8
        v_and_b32 v9, 7, v1
        v_lshl_add_u32 v45, v9, 4, v8
        s_mul_i32 s74, s{sF}, 2304
        s_lshl_b32 s7, s{sW}, 8
        s_add_u32 s74, s74, s7
        s_add_u32 s74, s74, {WS_YP}
        ''')
    def gemv1_prep(self):
        a = self.a
        a(f'''
        s_and_b32 s75, s{sF}, 1              ; kh
        s_mul_i32 s6, s75, {288*4}
        s_mul_i32 s7, s{sW}, {72*4}
        s_add_u32 s6, s6, s7
        v_lshrrev_b32 v39, 3, v1
        v_lshlrev_b32 v39, 2, v39            ; v39 = (l>>3)*4
        v_add_u32 v36, s6, v39
        v_add_u32 v36, {LH2}, v36
        ''')
        self.set_addr(40, 41)
        a(f'''
        s_lshl_b32 s6, s{sW}, 8
        v_add_u32 v37, s6, v40
        v_lshlrev_b32 v38, 2, v1             ; v38 = l*4
        s_lshl_b32 s76, s{sF}, 7
        s_add_u32 s76, s76, {WS_UX}
        s_xor_b32 s77, s{sF}, 1
        s_lshl_b32 s77, s77, 7
        s_add_u32 s77, s77, {WS_UX}
        v_and_b32 v41, 31, v1
        v_lshlrev_b32 v41, 2, v41            ; v41 = (l&31)*4
        ''')
        self.set_addr4(42, 43)
    def gemv1(self, KB, XB, extra_after):
        a = self.a
        N = 9
        for i in range(N): a(f'ds_read_b32 v{XB+i}, v36 offset:{32*i}')
        Areg = lambda i: (16, 20, 28)[i % 3]
        a(f's_waitcnt lgkmcnt({N-1})')
        self.abuild(Areg(0), XB)
        a(f's_waitcnt vmcnt({extra_after})')
        for i in range(N):
            if i < N - 1:
                a(f's_waitcnt lgkmcnt({N-2-i})')
                self.abuild(Areg(i + 1), XB + i + 1)
            c = '0' if i == 0 else 'v[12:15]'
            a(f'v_mfma_f32_16x16x32_bf16 v[12:15], {vr(Areg(i),4)}, {vr(KB+4*i,4)}, {c}')
        self.setsum2([12], [24])
        self.exec_set(self.SETMASK)
        a(f'ds_write_b64 v37, v[24:25] offset:{LUP}')
        self.exec_all()
        a('s_waitcnt lgkmcnt(0)')
        a('s_barrier')
        a(f'''
        s_cmp_lg_u32 s{sW}, 0
        s_cbranch_scc1 L_g1_skip
        ds_read_b32 v16, v38 offset:{LUP}
        ds_read_b32 v17, v38 offset:{LUP+256}
        ds_read_b32 v18, v38 offset:{LUP+512}
        ds_read_b32 v19, v38 offset:{LUP+768}
        s_mov_b32 s66, -1
        s_mov_b32 s67, 0                     ; s[66:67] = lanes 0..31
        s_cmp_eq_u32 s75, 0
        s_cbranch_scc1 L_g1_k0
        s_mov_b32 s66, 0
        s_mov_b32 s67, -1
        L_g1_k0:
        s_waitcnt lgkmcnt(0)
        v_add_f32 v16, v16, v17
        v_add_f32 v18, v18, v19
        v_add_f32 v16, v16, v18
        ''')
        self.quad_gather(16, 20)
        a(f'''
        s_not_b64 s[68:69], s[66:67]
        s_and_b32 s68, s68, 0x11111111
        s_and_b32 s69, s69, 0x11111111
        s_mov_b64 exec, s[68:69]
        buffer_store_dwordx4 v[20:23], v41, {sr(SRD_WS,4)}, s76 offen sc1
        s_mov_b64 exec, s[66:67]
        ''')
        self.poll_begin('L_ux')
        a(f'''
        buffer_load_dword v17, v41, {sr(SRD_WS,4)}, s77 offen sc1
        s_waitcnt vmcnt(0)
        ''')
        self.poll_end('L_ux', 17)
        a('v_add_f32 v16, v16, v17')
        self.rnd([16], [20])
        self.silu([16], [20])
        a(f'''
        v_cvt_pk_bf16_f32 v16, v16, v16
        ds_write_b32 v41, v16 offset:{LUS}
        s_mov_b64 exec, -1
        s_waitcnt lgkmcnt(0)
        L_g1_skip:
        ''')
        a('s_barrier')

    def gemv2(self, WB, TB):
        a = self.a
        for ro in range(4): a(f'ds_read_b32 v{16+ro}, v39 offset:{LUS + 32*ro}')
        DB = TB + 16
        for ro in range(4):
            a(f's_waitcnt lgkmcnt({3-ro})')
            self.abuild(TB + 4 * ro, 16 + ro)
        a('s_waitcnt vmcnt(0)')
        for ro in range(4):
            for k in range(2):
                c = '0' if ro == 0 else vr(DB + 4 * k, 4)
                a(f'v_mfma_f32_16x16x32_bf16 {vr(DB+4*k,4)}, {vr(TB+4*ro,4)}, {vr(WB+16*k+4*ro,4)}, {c}')
        a(f'''
        s_cmp_lg_u32 s{sW}, 0
        s_cbranch_scc1 L_g2_no3
        ''')
        for ro in range(4):
            c = '0' if ro == 0 else vr(DB + 8, 4)
            a(f'v_mfma_f32_16x16x32_bf16 {vr(DB+8,4)}, {vr(TB+4*ro,4)}, {vr(WB+32+4*ro,4)}, {c}')
        a('s_nop 7')
        self.setsum4([DB + 8], [DB + 20])
        self.exec_set(0x00FF00FF)
        a(f'buffer_store_dwordx4 {vr(DB+20,4)}, v42, {sr(SRD_WS,4)}, s74 offen offset:2048 sc1')
        self.exec_all()
        a.label('L_g2_no3')
        a('s_nop 7')
        self.setsum4([DB, DB + 4], [DB + 12, DB + 16])
        self.exec_set(0x00FF00FF)
        a(f'buffer_store_dwordx4 {vr(DB+12,4)}, v42, {sr(SRD_WS,4)}, s74 offen sc1')
        a(f'buffer_store_dwordx4 {vr(DB+16,4)}, v42, {sr(SRD_WS,4)}, s74 offen offset:1024 sc1')
        self.exec_all()

    def chain(self):
        a = self.a
        a.label('L_chain')
        a(f'''
        s_setprio 3
        s_load_dword s{sTAG}, {sr(PWS,2)}, {WS_EPOCH}
        s_sub_u32 s{sW}, s{sW}, 8
        s_mov_b32 s60, 1
        s_mov_b32 s6, s{sB}
        s_cmp_lt_u32 s{sB}, 108
        s_cbranch_scc1 L_p1role
        s_mov_b32 s60, 2
        s_sub_u32 s6, s{sB}, 108
        s_cmp_lt_u32 s{sB}, 236
        s_cbranch_scc1 L_p1role
        s_mov_b32 s60, 0
        L_p1role:
        s_lshr_b32 s61, s6, 1
        s_and_b32 s62, s6, 1
        s_cmp_eq_u32 s{sW}, 0
        s_cbranch_scc1 L_c0
        s_cmp_eq_u32 s{sW}, 1
        s_cbranch_scc1 L_c1
        s_cmp_eq_u32 s{sW}, 2
        s_cbranch_scc1 L_c2
        ''')
        self.c3(); self.c0(); self.c1(); self.c2(); self.ctail()

    def c3(self):
        a = self.a
        a(f'''
        s_barrier                            ; B0
        s_waitcnt lgkmcnt(0)
        s_add_u32 s{sTAG}, s{sTAG}, 1
        s_sleep 127
        ''')
        self.flags_check('L_c3_flags', 8, 12, sleep=32)
        self.stamp(1)
        a('s_branch L_ctail')
    code_kb4 = 6

    def c0(self):
        a = self.a
        a.label('L_c0')
        a(f"""
        s_cmp_eq_u32 s60, 0
        s_cbranch_scc1 L_c0_skip
        s_mov_b32 s63, 6912
        s_mov_b32 s64, s{PWM}
        s_mov_b32 s65, s{PWM+1}
        s_cmp_eq_u32 s60, 1
        s_cbranch_scc1 L_c0_sel
        s_mov_b32 s63, 8192
        s_mov_b32 s64, s{PWQ}
        s_mov_b32 s65, s{PWQ+1}
        L_c0_sel:
        s_mul_i32 s6, s62, 288
        s_mul_i32 s6, s6, s63                ; kh*288*pitch
        s_lshl_b32 s7, s61, 7
        s_add_u32 s6, s6, s7
        s_add_u32 s{SRD_A}, s64, s6
        s_addc_u32 s{SRD_A+1}, s65, 0
        s_mul_i32 s{SRD_A+2}, s63, 288
        s_mov_b32 s{SRD_A+3}, 0x20000
        v_lshrrev_b32 v8, 3, v1
        v_mul_lo_u32 v8, v8, s63
        v_and_b32 v9, 7, v1
        v_lshlrev_b32 v9, 4, v9
        v_add_u32 v8, v8, v9
        s_lshl_b32 s66, s63, 3               ; 8*pitch
        s_mov_b32 s67, 0
        """)
        TB = 24
        for i in range(36):
            a(f'buffer_load_dwordx4 {vr(TB+4*i,4)}, v8, {sr(SRD_A,4)}, s67 offen{NT}')
            if i < 35: a('s_add_u32 s67, s67, s66')
        a('s_barrier')
        self.masks(4, 9)
        a(f"""
        v_lshrrev_b32 v2, 3, v1
        v_mul_u32_u24 v2, 144, v2
        s_lshl_b32 s6, s61, 9                ; ct*512
        s_mul_i32 s7, s62, {MODP_P}
        s_add_u32 s7, s7, {WS_MODP}
        s_cmp_eq_u32 s60, 1
        s_cbranch_scc1 L_c0_pub
        s_mul_i32 s7, s62, {QP_P}
        s_add_u32 s7, s7, {WS_QP}
        L_c0_pub:
        s_add_u32 s68, s6, s7
        s_waitcnt lgkmcnt(0)
        s_add_u32 s{sTAG}, s{sTAG}, 1
        """)
        self.stamp(1)
        self.lds_wait_flag('L_c0_wxx', LF_XX, 8)
        self.stamp(2)
        a(f'ds_read_b128 v[8:11], v2 offset:{LXXT}')
        for n in range(9):
            xb = 8 if n == 0 else TB + 16 * (n - 1)
            a('s_waitcnt lgkmcnt(0)')
            for k in range(4):
                i = 4 * n + k
                A = 16 if i % 2 == 0 else 20
                self.abuild(A, xb + k)
                a(f's_waitcnt vmcnt({35 - i})')
                c = '0' if i == 0 else 'v[12:15]'
                a(f'v_mfma_f32_16x16x32_bf16 v[12:15], {vr(A,4)}, {vr(TB+4*i,4)}, {c}')
                if k == 0 and n < 8:
                    a(f'ds_read_b128 {vr(TB + 16*n, 4)}, v2 offset:{LXXT + 16*(n+1)}')
        self.stamp(3)
        self.set_addr(9, 10)
        a('v_lshlrev_b32 v9, 1, v9')
        self.setsum2([12], [16])
        a(f"""
        v_mov_b32 v18, v17
        v_mov_b32 v17, s{sTAG}
        v_mov_b32 v19, s{sTAG}
        """)
        self.exec_set(self.SETMASK)
        a(f'buffer_store_dwordx4 v[16:19], v9, {sr(SRD_WS,4)}, s68 offen sc1')
        self.exec_all()
        self.stamp(4)
        a('s_branch L_ctail')
        a.label('L_c0_skip')
        a(f"""
        s_barrier
        s_waitcnt lgkmcnt(0)
        s_add_u32 s{sTAG}, s{sTAG}, 1
        s_branch L_ctail
        """)

    def c1(self):
        a = self.a
        a.label('L_c1')
        a(f"""
        v_mov_b32 v8, -1
        v_mov_b32 v9, -1
        v_mov_b32 v10, -1
        v_mov_b32 v11, -1
        v_lshlrev_b32 v12, 4, v1             ; lane*16
        s_lshl_b32 s6, s{sSLOT}, 10
        s_add_u32 s6, s6, {WS_OP}
        buffer_store_dwordx4 v[8:11], v12, {sr(SRD_WS,4)}, s6 offen sc1
        s_cmp_lt_u32 s{sS}, 7
        s_cbranch_scc1 L_c1_ap
        s_mul_i32 s6, s{sF}, 2304
        s_add_u32 s6, s6, {WS_YP}
        buffer_store_dwordx4 v[8:11], v12, {sr(SRD_WS,4)}, s6 offen sc1
        buffer_store_dwordx4 v[8:11], v12, {sr(SRD_WS,4)}, s6 offen offset:1024 sc1
        s_mov_b64 exec, 0xffff
        buffer_store_dwordx4 v[8:11], v12, {sr(SRD_WS,4)}, s6 offen offset:2048 sc1
        s_mov_b64 exec, 0xff
        s_lshl_b32 s6, s{sF}, 7
        s_add_u32 s6, s6, {WS_UX}
        buffer_store_dwordx4 v[8:11], v12, {sr(SRD_WS,4)}, s6 offen sc1
        s_branch L_c1_st
        L_c1_ap:
        s_add_u32 s7, s{sS}, 2
        s_mov_b64 exec, 0xffff
        s_cmp_ge_u32 s{sS}, 2
        s_cbranch_scc1 L_c1_ap1
        s_lshl_b32 s7, s{sS}, 1
        s_mov_b32 exec_lo, -1
        L_c1_ap1:
        s_lshl_b32 s7, s7, 8
        s_mul_i32 s6, s{sG}, 2304
        s_add_u32 s6, s6, s7
        s_add_u32 s6, s6, {WS_AP}
        buffer_store_dwordx4 v[8:11], v12, {sr(SRD_WS,4)}, s6 offen sc1
        L_c1_st:
        s_mov_b64 exec, 1
        s_cmp_lg_u32 s{sS}, 0
        s_cbranch_scc1 L_c1_norc
        v_mov_b32 v13, 0
        s_lshl_b32 s6, s{sG}, 7
        s_add_u32 s6, s6, {WS_RC}
        buffer_store_dword v13, v12, {sr(SRD_WS,4)}, s6 offen sc1
        L_c1_norc:
        s_lshl_b32 s6, s{sSLOT}, 7
        s_add_u32 s6, s6, {WS_ST}
        buffer_store_dwordx4 v[8:11], v12, {sr(SRD_WS,4)}, s6 offen sc1
        s_mov_b64 exec, -1
        s_barrier                            ; B0
        s_waitcnt vmcnt(0) lgkmcnt(0)
        s_add_u32 s{sTAG}, s{sTAG}, 1
        v_mov_b32 v13, s{sTAG}
        s_lshl_b32 s6, s{sB}, 2
        s_add_u32 s6, s6, {WS_FLAGS}
        v_mov_b32 v15, 0
        s_mov_b64 exec, 1
        buffer_store_dword v13, v15, {sr(SRD_WS,4)}, s6 offen sc1
        s_mov_b64 exec, -1
        """)
        self.stamp(1)
        a(f"""
        v_lshlrev_b32 v8, 4, v1
        s_lshl_b32 s6, s{sG}, 11
        s_add_u32 s6, s6, {WS_QP}
        s_add_u32 s7, s6, {QP_P}
        s_add_u32 s64, s{PWS}, s6
        s_addc_u32 s65, s{PWS+1}, 0
        s_sleep {self.sl_q0}
        """)
        if self.sl_q1: a(f's_sleep {self.sl_q1}')
        if self.hint: self.shint('L_c1_hint', 64, [4 + kh * QP_P + j * 512 for kh in range(2) for j in range(4)], 66)
        self.stamp(2)
        self.poll_begin('L_c1_q')
        a(f"""
        buffer_load_dwordx4 v[112:115], v8, {sr(SRD_WS,4)}, s6 offen sc1
        buffer_load_dwordx4 v[116:119], v8, {sr(SRD_WS,4)}, s6 offen offset:1024 sc1
        buffer_load_dwordx4 v[120:123], v8, {sr(SRD_WS,4)}, s7 offen sc1
        buffer_load_dwordx4 v[124:127], v8, {sr(SRD_WS,4)}, s7 offen offset:1024 sc1
        s_waitcnt vmcnt(0)
        """)
        self.tag_check(list(range(113, 128, 2)), 128, 129)
        self.poll_end_nz('L_c1_q', 128, sleep=self.sl_p1)
        a(f"""
        v_add_f32 v112, v112, v120
        v_add_f32 v114, v114, v122
        v_add_f32 v116, v116, v124
        v_add_f32 v118, v118, v126
        v_cvt_pk_bf16_f32 v112, v112, v114
        v_cvt_pk_bf16_f32 v113, v116, v118
        v_lshlrev_b32 v8, 2, v1
        ds_write_b32 v8, v112 offset:{LQ}
        ds_write_b32 v8, v113 offset:{LQ+256}
        v_mov_b32 v8, {LF_Q}
        v_mov_b32 v9, 1
        s_waitcnt lgkmcnt(0)
        s_mov_b64 exec, 1
        ds_write_b32 v8, v9
        s_mov_b64 exec, -1
        """)
        self.stamp(3)
        self.lds_wait_cnt('L_c1_wq', LCNT_Q, 8, 46)
        self.stats_pub('c', 1)
        a('s_branch L_ctail')

    def c2(self):
        a = self.a
        a.label('L_c2')
        a(f"""
        v_mov_b32 v13, 0
        v_lshlrev_b32 v14, 2, v1
        s_mov_b64 exec, 0xffff
        ds_write_b32 v14, v13 offset:{LF_XX}
        s_mov_b64 exec, -1
        s_cmp_eq_u32 s60, 0
        s_cbranch_scc1 L_c2_skip
        s_cmp_eq_u32 s60, 2
        s_cbranch_scc1 L_c2_h
        s_mul_i32 s6, s62, 576
        s_add_u32 s{SRD_A}, s{PC}, s6
        s_addc_u32 s{SRD_A+1}, s{PC+1}, 0
        s_mov_b32 s{SRD_A+2}, 576
        s_mov_b32 s{SRD_A+3}, 0x20000
        v_lshlrev_b32 v8, 4, v1
        buffer_load_dwordx4 v[12:15], v8, {sr(SRD_A,4)}, 0 offen
        s_waitcnt lgkmcnt(0)
        s_barrier                            ; B0
        s_waitcnt vmcnt(0)
        s_add_u32 s{sTAG}, s{sTAG}, 1
        """)
        xs = list(range(16, 24))
        for i in range(4): self.unpack(12 + i, 16 + 2 * i, 17 + 2 * i)
        self.silu(xs, list(range(24, 32)))
        for i in range(8): a(f'v_cvt_pk_bf16_f32 v{16+i}, v{16+i}, v{16+i}')
        a(f'v_lshlrev_b32 v8, 2, v1')
        self.exec_set((1 << 36) - 1)
        for e in range(8): a(f'ds_write_b32 v8, v{16+e} offset:{LXXT + 144*e}')
        self.exec_all()
        a('s_branch L_c2_flag')
        a.label('L_c2_h')
        self.srd_plain(SRD_A, PX, 1152)
        a(f"""
        v_lshlrev_b32 v8, 5, v1
        buffer_load_dwordx4 v[12:15], v8, {sr(SRD_A,4)}, 0 offen
        buffer_load_dwordx4 v[16:19], v8, {sr(SRD_A,4)}, 0 offen offset:16
        s_mul_i32 s6, s62, 576
        v_lshlrev_b32 v9, 2, v1
        buffer_load_dword v20, v9, {sr(SRD_A,4)}, s6 offen
        buffer_load_dword v21, v9, {sr(SRD_A,4)}, s6 offen offset:256
        buffer_load_dword v22, v9, {sr(SRD_A,4)}, s6 offen offset:512
        s_waitcnt lgkmcnt(0)
        s_barrier                            ; B0
        s_waitcnt vmcnt(0)
        s_add_u32 s{sTAG}, s{sTAG}, 1
        """)
        xv = list(range(32, 48))
        for i in range(8): self.unpack(12 + i, 32 + 2 * i, 33 + 2 * i)
        a(f'v_add_f32 v26, v32, v33')
        for r in xv[2:]: a(f'v_add_f32 v26, v26, v{r}')
        self.wave_red('v_add_f32', [26], [27])
        a(f'v_mul_f32 v24, {f2u(1.0/576):#x}, v26')
        a('v_mov_b32 v26, 0')
        self.exec_set((1 << 36) - 1)
        for r in xv:
            a(f'v_sub_f32 v29, v{r}, v24')
            a(f'v_fmac_f32 v26, v29, v29')
        self.exec_all()
        self.wave_red('v_add_f32', [26], [27])
        a(f'v_mul_f32 v25, {f2u(1.0/576):#x}, v26')
        self.ln_finish(24, 25, 27)
        for i in range(3): self.unpack(20 + i, 32 + 2 * i, 33 + 2 * i)
        xr = list(range(32, 38))
        self.ln_apply(xr, mean=24, sd=25, tmps=[26, 27, 28])
        self.stamp(1)
        a(f"""
        s_mul_i32 s6, s62, {288*8}
        s_add_u32 s6, s6, {WS_MODP}
        s_add_u32 s7, s6, {MODP_P}
        s_add_u32 s8, s6, {576*8}
        s_add_u32 s9, s7, {576*8}
        v_lshlrev_b32 v8, 4, v1
        s_sleep {self.sl_m0}
        """)
        self.poll_begin('L_c2_mod')
        for base, so in ((64, 's6'), (76, 's8'), (88, 's7'), (100, 's9')):
            a(f'buffer_load_dwordx4 {vr(base,4)}, v8, {sr(SRD_WS,4)}, {so} offen sc1')
            a(f'buffer_load_dwordx4 {vr(base+4,4)}, v8, {sr(SRD_WS,4)}, {so} offen offset:1024 sc1')
        for base in (64, 76, 88, 100):
            a(f'v_mov_b32 v{base+9}, s{sTAG}'); a(f'v_mov_b32 v{base+11}, s{sTAG}')
            a(f'v_mov_b32 v{base+8}, 0'); a(f'v_mov_b32 v{base+10}, 0')
        a('s_mov_b64 exec, 0xffff')
        for base, so in ((64, 's6'), (76, 's8'), (88, 's7'), (100, 's9')):
            a(f'buffer_load_dwordx4 {vr(base+8,4)}, v8, {sr(SRD_WS,4)}, {so} offen offset:2048 sc1')
        a('s_mov_b64 exec, -1')
        a('s_waitcnt vmcnt(0)')
        self.tag_check(list(range(65, 112, 2)), 48, 49)
        self.poll_end_nz('L_c2_mod', 48, sleep=self.sl_p1)
        self.stamp(2)
        for e in range(6):
            a(f'v_add_f32 v{48+e}, v{64+2*e}, v{88+2*e}')
            a(f'v_add_f32 v{56+e}, v{76+2*e}, v{100+2*e}')
        sa = list(range(48, 54)); ca = list(range(56, 62))
        T = list(range(64, 70))
        self.rnd(sa + ca, T)
        for r in ca: a(f'v_add_f32 v{r}, 1.0, v{r}')
        self.rnd(ca, T)
        for x, c in zip(xr, ca): a(f'v_mul_f32 v{x}, v{x}, v{c}')
        self.rnd(xr, T)
        for x, s, d in zip(xr, sa, range(16, 22)): a(f'v_add_f32 v{d}, v{x}, v{s}')
        for i in range(6): a(f'v_cvt_pk_bf16_f32 v{16+i}, v{16+i}, v{16+i}')
        a(f"""
        v_and_b32 v8, 3, v1
        v_mul_u32_u24 v8, 288, v8
        v_lshrrev_b32 v9, 2, v1
        v_lshlrev_b32 v9, 2, v9
        v_add_u32 v8, v8, v9
        ds_write_b32 v8, v16 offset:{LXXT}
        ds_write_b32 v8, v17 offset:{LXXT+144}
        ds_write_b32 v8, v18 offset:{LXXT+64}
        ds_write_b32 v8, v19 offset:{LXXT+64+144}
        s_mov_b64 exec, 0xffff
        ds_write_b32 v8, v20 offset:{LXXT+128}
        ds_write_b32 v8, v21 offset:{LXXT+128+144}
        s_mov_b64 exec, -1
        """)
        a.label('L_c2_flag')
        a(f"""
        v_mov_b32 v13, 1
        v_mov_b32 v14, {LF_XX}
        s_waitcnt lgkmcnt(0)
        s_mov_b64 exec, 1
        ds_write_b32 v14, v13
        s_mov_b64 exec, -1
        """)
        self.stamp(3)
        a('s_branch L_ctail')
        a.label('L_c2_skip')
        a(f"""
        s_waitcnt lgkmcnt(0)
        s_barrier
        s_add_u32 s{sTAG}, s{sTAG}, 1
        """)

    def ln_finish(self, mean, var, t):
        a = self.a
        self.rnd([mean, var], [t])
        a(f'v_add_f32 v{var}, {f2u(1e-5):#x}, v{var}')
        self.rnd([var], [t])
        a(f'v_sqrt_f32 v{var}, v{var}')
        self.rnd([var], [t])
        a(f'v_rcp_f32 v{var}, v{var}')

    def ln_apply(self, xr, mean, sd, tmps):
        a = self.a
        for r in xr: a(f'v_sub_f32 v{r}, v{r}, v{mean}')
        self.rnd(xr, tmps)
        for r in xr: a(f'v_mul_f32 v{r}, v{r}, v{sd}')
        self.rnd(xr, tmps)

    def ffn_consts_issue(self):
        a = self.a
        for p, so in ((0, 8), (1, 9)):
            for arr in range(3):
                if arr: a(f's_add_u32 s10, s{so}, {576*8*arr}')
                sreg = f's{so}' if arr == 0 else 's10'
                b = 64 + 24 * p + 8 * arr
                a(f'buffer_load_dwordx4 {vr(b,4)}, v9, {sr(SRD_WS,4)}, {sreg} offen sc1')
                a(f'buffer_load_dwordx4 {vr(b+4,4)}, v9, {sr(SRD_WS,4)}, {sreg} offen offset:16 sc1')
    def ffn_consts_prep(self):
        a = self.a
        self.srd_plain(SRD_B, PX, 1152)
        a(f"""
        s_mul_i32 s6, s{sW}, 288
        v_lshlrev_b32 v8, 3, v1
        s_mul_i32 s7, s{sW}, {144*8}
        s_add_u32 s8, s7, {WS_MODP + 1152*8}
        s_add_u32 s9, s8, {MODP_P}
        v_lshlrev_b32 v9, 5, v1
        """)
        self.exec_set((1 << 36) - 1)
        a(f'buffer_load_dwordx2 v[40:41], v8, {sr(SRD_B,4)}, s6 offen')
        self.exec_all()
    def ffn_consts_finish(self):
        a = self.a
        self.exec_set((1 << 36) - 1)
        a(f's_mov_b32 s{sCNT}, 0')
        a('s_branch L_ct_mod_chk')
        a.label('L_ct_mod')
        self.ffn_consts_issue()
        a.label('L_ct_mod_chk')
        a('s_waitcnt vmcnt(0)')
        self.tag_check(list(range(65, 112, 2)), 44, 45)
        self.poll_end_nz('L_ct_mod', 44, sleep=4)
        for i in range(12): a(f'v_add_f32 v{24+i}, v{64+2*i}, v{88+2*i}')
        T = list(range(42, 48))
        self.rnd(list(range(24, 36)), T)
        for i in range(4): a(f'v_add_f32 v{32+i}, 1.0, v{32+i}')
        self.rnd(list(range(32, 36)), T)
        self.unpack(40, 36, 37); self.unpack(41, 38, 39)
        self.exec_all()

    def red_consts(self):
        a = self.a
        self.srd_plain(SRD_B, PX, 1152)
        a(f"""
        v_and_b32 v8, 3, v1
        v_lshlrev_b32 v9, 5, v8
        v_lshlrev_b32 v8, 3, v8
        s_lshl_b32 s6, s69, 5
        buffer_load_dwordx2 v[40:41], v8, {sr(SRD_B,4)}, s6 offen
        s_lshl_b32 s7, s69, 7
        s_add_u32 s8, s7, {WS_MODP + 1152*8}
        s_add_u32 s9, s8, {MODP_P}
        s_add_u32 s10, s8, {1728*8}
        s_add_u32 s11, s9, {1728*8}
        """)
        self.poll_begin('L_ct_red')
        for b, so in ((128, 's8'), (136, 's10'), (144, 's9'), (152, 's11')):
            a(f'buffer_load_dwordx4 {vr(b,4)}, v9, {sr(SRD_WS,4)}, {so} offen sc1')
            a(f'buffer_load_dwordx4 {vr(b+4,4)}, v9, {sr(SRD_WS,4)}, {so} offen offset:16 sc1')
        a('s_waitcnt vmcnt(0)')
        self.tag_check(list(range(129, 160, 2)), 44, 45)
        self.poll_end_nz('L_ct_red', 44, sleep=4)
        for i in range(8): a(f'v_add_f32 v{24+i}, v{128+2*i}, v{144+2*i}')
        self.rnd(list(range(24, 32)), list(range(44, 48)))
        self.unpack(40, 36, 37); self.unpack(41, 38, 39)

    def ctail(self):
        a = self.a
        a.label('L_ctail')
        self.stamp(5)
        WB = 64
        self.masks(4, 8)
        a(f"""
        s_cmp_lg_u32 s{sW}, 3
        s_cbranch_scc1 L_ct_norole
        """)
        self.lds_wait_cnt('L_ct_wv', LCNT_T, 8, 46)
        a(f"""
        v_mov_b32 v46, 1
        v_mov_b32 v47, 0
        s_lshl_b32 s6, s{sG}, 7
        s_add_u32 s6, s6, {WS_RC}
        s_mov_b64 exec, 1
        buffer_atomic_add v46, v47, {sr(SRD_WS,4)}, s6 offen sc0 sc1
        s_waitcnt vmcnt(0)
        v_and_b32 v46, 15, v46
        v_add_u32 v46, 1, v46
        v_mov_b32 v47, {LROLE}
        ds_write_b32 v47, v46
        s_mov_b64 exec, -1
        L_ct_norole:
        v_mov_b32 v46, {LROLE}
        s_mov_b32 s{sCNT}, 0
        L_ct_role:
        ds_read_b32 v47, v46
        s_add_u32 s{sCNT}, s{sCNT}, 1
        s_cmp_lt_u32 s{sCNT}, {MAXSPIN*8}
        s_cbranch_scc0 L_ct_role_done
        s_waitcnt lgkmcnt(0)
        v_readfirstlane_b32 s70, v47
        s_cmp_lg_u32 s70, 0
        s_cbranch_scc1 L_ct_role_done
        s_sleep 1
        s_branch L_ct_role
        L_ct_role_done:
        s_waitcnt lgkmcnt(0)
        s_sub_u32 s70, s70, 1                ; rank
        """)
        a('''
        s_cmp_lt_u32 s70, 2
        s_cbranch_scc1 L_ct_wor
        s_sub_u32 s6, s70, 2
        s_cmp_lt_u32 s6, 9
        s_cbranch_scc1 L_ct_ffn2
        s_sub_u32 s70, s70, 9
        L_ct_wor:
        ''')
        a(f"""
        s_add_u32 s71, s70, 2                ; ct0
        s_mov_b32 s72, 1                     ; ntiles
        s_cmp_ge_u32 s70, 2
        s_cbranch_scc1 L_ct_wo1
        s_lshl_b32 s71, s70, 1
        s_mov_b32 s72, 2
        L_ct_wo1:
        s_lshl_b32 s6, s{sG}, 8
        s_lshl_b32 s7, s{sW}, 6
        s_add_u32 s6, s6, s7
        s_mul_i32 s6, s6, 1152
        s_lshl_b32 s7, s71, 7
        s_add_u32 s6, s6, s7
        """)
        self.srd(SRD_A, PWO, 6, f'{4096*1152}')
        a(f"""
        s_sub_u32 s{SRD_A+2}, s{SRD_A+2}, s6
        v_lshrrev_b32 v8, 3, v1
        v_mul_u32_u24 v8, 1152, v8
        v_and_b32 v9, 7, v1
        v_lshl_add_u32 v42, v9, 4, v8
        """)
        if self.wo_wait: self.lds_wait_cnt('L_wo_wp', LCNT2, 8, 46)
        else: self.lds_wait_cnt('L_wo_wv', LCNT_V, 8, 46)
        self.stamp(12)
        for i in range(8):
            a(f's_mov_b32 s7, {9216*i}')
            a(f'buffer_load_dwordx4 {vr(WB+4*i,4)}, v42, {sr(SRD_A,4)}, s7 offen{NT}')
        a(f"""
        s_cmp_eq_u32 s72, 1
        s_cbranch_scc1 L_ct_wo2
        """)
        for i in range(8):
            a(f's_mov_b32 s7, {9216*i}')
            a(f'buffer_load_dwordx4 {vr(WB+32+4*i,4)}, v42, {sr(SRD_A,4)}, s7 offen offset:128{NT}')
        a.label('L_ct_wo2')
        self.stamp(6)
        a(f"""
        s_mov_b32 s68, 0
        s_sub_u32 s6, s70, 2
        s_cmp_ge_u32 s6, 3
        s_cbranch_scc1 L_ct_nored
        s_cmp_ge_u32 s{sG}, 12
        s_cbranch_scc1 L_ct_nored
        s_cmp_lg_u32 s{sW}, 3
        s_cbranch_scc1 L_ct_nored
        s_mov_b32 s68, 1
        s_mul_i32 s69, s{sG}, 3
        s_add_u32 s69, s69, s6               ; r
        """)
        self.red_consts()
        a.label('L_ct_nored')
        self.hop1_prep()
        self.hop1_stats()
        if not self.wo_wait: self.lds_wait_cnt('L_wo_wp', LCNT2, 8, 46)
        self.hop1(WB)
        a(f"""
        s_cmp_eq_u32 s68, 1
        s_cbranch_scc1 L_ct_red_go
        """)
        self.end_wave()
        a.label('L_ct_red_go')
        self.reducer()
        a.label('L_ct_ffn2')
        a('s_sub_u32 s70, s70, 2')
        a.label('L_ct_ffn')
        W1B, W2B = 64, 100
        a(f"""
        s_mul_i32 s{sF}, s{sG}, 9
        s_add_u32 s{sF}, s{sF}, s70
        s_and_b32 s6, s{sF}, 1
        s_mul_i32 s6, s6, 288
        s_mul_i32 s7, s{sW}, 72
        s_add_u32 s6, s6, s7
        s_mul_i32 s6, s6, 9216
        s_lshr_b32 s7, s{sF}, 1
        s_lshl_b32 s7, s7, 7
        s_add_u32 s6, s6, s7
        """)
        self.srd(SRD_A, PW1, 6, f'{576*9216}')
        a(f"""
        s_sub_u32 s{SRD_A+2}, s{SRD_A+2}, s6
        v_lshrrev_b32 v8, 3, v1
        v_mul_u32_u24 v8, 9216, v8
        v_and_b32 v9, 7, v1
        v_lshl_add_u32 v44, v9, 4, v8        ; v44 = w1 voffset
        """)
        self.w2_loads(W2B)
        vm = VM(a)
        lst = [('w1', i) for i in range(9)] + [('w2', n) for n in range(8)]
        if self.thr_ffn > 0: self.lds_wait_cnt('L_ffn_wv', LCNT_V, 8, 46)
        for idx, (k, i) in enumerate(lst):
            if idx == self.thr_ffn:
                self.lds_wait_cnt('L_ffn_wp', LCNT2, 8, 46)
                if self.sl_ffn: a(f's_sleep {self.sl_ffn}')
            if k == 'w1':
                a(f's_mov_b32 s64, {73728*i}')
                vm.issue((k, i), f'buffer_load_dwordx4 {vr(W1B+4*i,4)}, v44, {sr(SRD_A,4)}, s64 offen{NT}')
            else:
                ro, kk = i // 2, i % 2
                a(f's_mov_b32 s64, {9216*ro}')
                vm.issue((k, i), f'buffer_load_dwordx4 {vr(W2B+16*kk+4*ro,4)}, v45, {sr(SRD_B,4)}, s64 offen offset:{512*kk}{NT}')
        a(f"""
        s_cmp_lg_u32 s{sW}, 0
        s_cbranch_scc1 L_w2_no3
        """)
        for ro in range(4):
            a(f's_mov_b32 s64, {9216*ro}')
            a(f'buffer_load_dwordx4 {vr(W2B+32+4*ro,4)}, v45, {sr(SRD_B,4)}, s64 offen offset:1024{NT}')
        a.label('L_w2_no3')
        a(f"""
        v_mov_b32 v46, {LCNT_W}
        v_mov_b32 v47, 1
        s_mov_b64 exec, 1
        ds_add_u32 v46, v47
        s_mov_b64 exec, -1
        """)
        self.gemv1_prep()
        self.stamp(6)
        a('s_barrier')
        a('s_barrier')
        self.stamp(8)
        self.gemv1(W1B, 148, 8)
        self.stamp(9)
        self.gemv2(W2B, 64)
        self.stamp(13)
        self.end_wave()

    def stats_pub(self, tag, who):
        a = self.a
        a(f"""
        s_cmp_lg_u32 s{sW}, {who}
        s_cbranch_scc1 L_nostat{tag}
        v_bfe_u32 v12, v1, 3, 1
        v_lshlrev_b32 v12, 5, v12
        ds_read_b128 v[16:19], v12 offset:{LMX}
        ds_read_b128 v[20:23], v12 offset:{LMX+16}
        ds_read_b128 v[152:155], v12 offset:{LLS}
        ds_read_b128 v[156:159], v12 offset:{LLS+16}
        s_lshl_b32 s12, s{sSLOT}, 7
        s_add_u32 s12, s12, {WS_ST}
        v_lshrrev_b32 v12, 2, v12            ; head*8
        s_waitcnt lgkmcnt(0)
        v_max3_f32 v160, v16, v17, v18
        v_max3_f32 v161, v20, v21, v22
        v_max3_f32 v160, v160, v19, v23
        v_max_f32 v160, v160, v161
        """)
        for i in range(8): a(f'v_sub_f32 v{16+i}, v{16+i}, v160')
        for i in range(8): a(f'v_mul_f32 v{16+i}, s{sLOG2E}, v{16+i}')
        for i in range(8): a(f'v_exp_f32 v{16+i}, v{16+i}')
        a('v_mul_f32 v161, v16, v152')
        for i in range(1, 8): a(f'v_fmac_f32 v161, v{16+i}, v{152+i}')
        a(f"""
        s_mov_b64 exec, 0x101
        buffer_store_dwordx2 v[160:161], v12, {sr(SRD_WS,4)}, s12 offen sc1
        s_mov_b64 exec, -1
        L_nostat{tag}:
        """)

    def l2_prefetch(self, ptr, base_expr_lines, nbytes, total, tag, lanes_stride=128):
        a = self.a
        PF = self.pf_policy
        a(base_expr_lines)
        self.srd_plain(80, ptr, total)
        a(f'v_lshlrev_b32 v47, 7, v1')
        nl = nbytes // 128
        k = 0
        while nl > 0:
            n = min(nl, 64)
            if n < 64: self.exec_set((1 << n) - 1)
            a(f'buffer_load_dword v43, v47, s[80:83], s14 offen{PF}')
            if n < 64: self.exec_all()
            nl -= n; k += 1
            if nl > 0: a('s_add_u32 s14, s14, 8192')

    def pf_wo(self, tag):
        a = self.a
        if not self.pf1: return
        a(f'''
        s_cmp_lg_u32 s{sW}, {self.pf1_wave}
        s_cbranch_scc1 L_pfwo{tag}
        ''')
        self.l2_prefetch(PWO, f'''
        s_mul_i32 s14, s{sG}, {256*1152}
        s_mul_i32 s15, s{sS}, 18432
        s_add_u32 s14, s14, s15
        ''', 18432, 4096*1152, tag)
        a.label(f'L_pfwo{tag}')

    def pf_w2(self):
        a = self.a
        if not self.pf2: return
        self.l2_prefetch(PW2, f'''
        s_mul_i32 s14, s{sG}, {288*1152}
        s_lshl_b32 s15, s{sS}, 2
        s_add_u32 s15, s15, s{sW}
        s_mul_i32 s15, s15, {96*128}
        s_add_u32 s14, s14, s15
        ''', 96*128, 4608*1152, 'w2')

    def hop1_prep(self):
        a = self.a
        a(f"""
        v_lshrrev_b32 v8, 4, v1
        v_lshlrev_b32 v9, 10, v8             ; pp*1024
        v_and_b32 v10, 15, v1
        v_lshl_add_u32 v9, v10, 4, v9
        v_lshlrev_b32 v8, 7, v8
        s_lshl_b32 s6, s{sG}, 14
        s_lshl_b32 s7, s{sW}, 8
        s_add_u32 s6, s6, s7
        s_add_u32 s6, s6, {WS_OP}
        s_lshl_b32 s8, s{sG}, 11
        s_lshr_b32 s7, s{sW}, 1
        s_lshl_b32 s7, s7, 3
        s_add_u32 s8, s8, s7
        s_add_u32 s8, s8, {WS_ST}
        s_add_u32 s9, s6, 4096
        s_add_u32 s10, s6, 8192
        s_add_u32 s11, s6, 12288
        s_lshl_b32 s7, s{sW}, 8
        v_lshlrev_b32 v10, 4, v10
        v_add_u32 v10, s7, v10
        v_lshrrev_b32 v11, 3, v1
        v_lshlrev_b32 v11, 2, v11
        v_add_u32 v11, s7, v11
        s_mul_i32 s73, s{sG}, 2304
        s_lshl_b32 s7, s71, 8
        s_add_u32 s73, s73, s7
        s_add_u32 s73, s73, {WS_AP}
        """)
        self.set_addr(2, 40)
        a(f"""
        s_lshl_b32 s7, s{sW}, 9
        v_add_u32 v2, s7, v2
        v_lshlrev_b32 v41, 4, v1             ; v41 = l*16
        """)

    def hop1_stats(self):
        a = self.a
        self.poll_begin('L_h1s')
        for i in range(4):
            a(f'buffer_load_dwordx2 {vr(128+2*i,2)}, v8, {sr(SRD_WS,4)}, s8 offen offset:{512*i} sc1')
        a('s_waitcnt vmcnt(0)')
        self.sent_check(list(range(128, 136)), 136, 137)
        self._poll_tail('L_h1s', 4)
        a(f"""
        v_max3_f32 v136, v128, v130, v132
        v_max_f32 v136, v136, v134
        """)
        self.xgroup('v_max_f32', [136], [137])
        for i in range(4): a(f'v_sub_f32 v{144+i}, v{128+2*i}, v136')
        for i in range(4): a(f'v_mul_f32 v{144+i}, s{sLOG2E}, v{144+i}')
        for i in range(4): a(f'v_exp_f32 v{144+i}, v{144+i}')
        a('v_mul_f32 v164, v144, v129')
        for i in range(1, 4): a(f'v_fmac_f32 v164, v{144+i}, v{129+2*i}')
        self.xgroup('v_add_f32', [164], [137])
        a('v_rcp_f32 v164, v164')
        for i in range(4): a(f'v_mul_f32 v{144+i}, v{144+i}, v164')

    def hop1(self, WB):
        a = self.a
        SA, SB_ = 128, 148
        def issue(base):
            for i, so in enumerate(('s6', 's9', 's10', 's11')):
                a(f'buffer_load_dwordx4 {vr(base+4*i,4)}, v9, {sr(SRD_WS,4)}, {so} offen sc1')
        def combine(base):
            for r in range(4): a(f'v_mul_f32 v{52+r}, v144, v{base+r}')
            for i in range(1, 4):
                for r in range(4): a(f'v_fmac_f32 v{52+r}, v{144+i}, v{base+4*i+r}')
        issue(SA)
        a(f's_sleep {self.sl_stag}')
        a(f's_mov_b32 s{sCNT}, 0')
        a.label('L_h1')
        issue(SB_)
        a('s_waitcnt vmcnt(4)')
        self.sent_check(list(range(SA, SA + 16)), 56, 57)
        a('s_cbranch_vccz L_h1_useA')
        issue(SA)
        a('s_waitcnt vmcnt(4)')
        self.sent_check(list(range(SB_, SB_ + 16)), 56, 57)
        a(f"""
        s_cbranch_vccz L_h1_useB
        s_add_u32 s{sCNT}, s{sCNT}, 1
        s_cmp_lt_u32 s{sCNT}, {MAXSPIN}
        s_cbranch_scc1 L_h1
        L_h1_useB:
        """)
        combine(SB_)
        a('s_branch L_h1_done')
        a.label('L_h1_useA')
        combine(SA)
        a.label('L_h1_done')
        if self.diag: a(f'v_writelane_b32 v3, s{sCNT}, 13')
        self.xgroup('v_add_f32', [52, 53, 54, 55], [56, 57, 58, 59])
        self.stamp(8)
        for r in range(4): a(f'v_cvt_pk_bf16_f32 v{52+r}, v{52+r}, v{52+r}')
        a(f"""
        s_mov_b64 exec, 0xffff
        ds_write_b128 v10, v[52:55] offset:{LOXX}
        s_mov_b64 exec, -1
        s_waitcnt lgkmcnt(0)
        """)
        for i in range(8): a(f'ds_read_b32 v{44+i}, v11 offset:{LOXX + 32*i}')
        def mf(two):
            Areg = lambda i: (12, 16, 20)[i % 3]
            a('s_waitcnt lgkmcnt(7)')
            self.abuild(Areg(0), 44)
            for i in range(8):
                if i < 7:
                    a(f's_waitcnt lgkmcnt({6-i})')
                    self.abuild(Areg(i + 1), 44 + i + 1)
                c = '0' if i == 0 else 'v[52:55]'
                a(f'v_mfma_f32_16x16x32_bf16 v[52:55], {vr(Areg(i),4)}, {vr(WB+4*i,4)}, {c}')
                if two:
                    c = '0' if i == 0 else 'v[56:59]'
                    a(f'v_mfma_f32_16x16x32_bf16 v[56:59], {vr(Areg(i),4)}, {vr(WB+32+4*i,4)}, {c}')
        a(f"""
        s_cmp_eq_u32 s72, 1
        s_cbranch_scc1 L_h1_one
        """)
        mf(True)
        a('s_branch L_h1_mm')
        a.label('L_h1_one')
        mf(False)
        a.label('L_h1_mm')
        a('s_nop 7')
        self.setsum2([52, 56], [60, 62])
        self.exec_set(self.SETMASK)
        a(f'ds_write_b64 v2, v[60:61] offset:{LAP}')
        a(f'ds_write_b64 v2, v[62:63] offset:{LAP+256}')
        self.exec_all()
        a(f"""
        s_waitcnt lgkmcnt(0)
        s_barrier
        s_cmp_lg_u32 s{sW}, 0
        s_cbranch_scc1 L_h1_nopub
        s_mov_b64 exec, 0xffff
        s_cmp_eq_u32 s72, 1
        s_cbranch_scc1 L_h1_p1
        s_mov_b32 exec_lo, -1
        L_h1_p1:
        ds_read_b128 v[12:15], v41 offset:{LAP}
        ds_read_b128 v[16:19], v41 offset:{LAP+512}
        ds_read_b128 v[20:23], v41 offset:{LAP+1024}
        ds_read_b128 v[44:47], v41 offset:{LAP+1536}
        s_waitcnt lgkmcnt(0)
        """)
        for r in range(4):
            a(f'v_add_f32 v{12+r}, v{12+r}, v{16+r}')
            a(f'v_add_f32 v{20+r}, v{20+r}, v{44+r}')
        for r in range(4): a(f'v_add_f32 v{12+r}, v{12+r}, v{20+r}')
        a(f"""
        buffer_store_dwordx4 v[12:15], v41, {sr(SRD_WS,4)}, s73 offen sc1
        s_mov_b64 exec, -1
        L_h1_nopub:
        """)
        self.stamp(9)

    def hop2(self):
        a = self.a
        GB = 104
        a(f"""
        v_lshlrev_b32 v9, 4, v1
        s_mul_i32 s7, s{sW}, 576
        v_add_u32 v8, s7, v9
        s_add_u32 s7, s7, {WS_AP}
        s_lshl_b32 s6, s{sW}, 4
        v_mov_b32 v10, s6
        v_mov_b32 v11, 0
        """)
        self.lds_wait_cnt('L_h2_ww', LCNT_W, 4, 14)
        if self.sl_h2: a(f's_sleep {self.sl_h2}')
        self.exec_set((1 << 36) - 1)
        self.poll_begin('L_h2')
        a('s_mov_b32 s6, s7')
        for p in range(16):
            a(f'buffer_load_dwordx4 {vr(GB+4*p,4)}, v9, {sr(SRD_WS,4)}, s6 offen sc1')
            if p < 15: a('s_add_u32 s6, s6, 2304')
        a('s_waitcnt vmcnt(0)')
        for st in (8, 4, 2, 1):
            for p in range(st):
                for r in range(4): a(f'v_add_f32 v{GB+4*p+r}, v{GB+4*p+r}, v{GB+4*(p+st)+r}')
        a(f"""
        v_add_f32 v12, v{GB}, v{GB+1}
        v_add_f32 v13, v{GB+2}, v{GB+3}
        v_add_f32 v12, v12, v13
        """)
        self.poll_end('L_h2', 12)
        self.stamp(10)
        av = [GB, GB + 1, GB + 2, GB + 3]
        T = [12, 13]
        self.rnd(av, T)
        for r in range(4): a(f'v_mul_f32 v{GB+r}, v{GB+r}, v{24+r}')
        self.rnd(av, T)
        for r in range(4): a(f'v_add_f32 v{GB+r}, v{GB+r}, v{36+r}')
        self.rnd(av, T)
        a(f'v_readfirstlane_b32 s64, v{GB}')
        self.exec_all()
        a('v_mov_b32 v16, 0'); a('v_mov_b32 v17, 0')
        self.exec_set((1 << 36) - 1)
        for r in range(4): a(f'v_subrev_f32 v{112+r}, s64, v{GB+r}')
        a('v_add_f32 v16, v112, v113'); a('v_mul_f32 v17, v112, v112')
        a('v_add_f32 v18, v114, v115'); a('v_fmac_f32 v17, v113, v113')
        a('v_add_f32 v16, v16, v18'); a('v_fmac_f32 v17, v114, v114')
        a('v_fmac_f32 v17, v115, v115')
        self.exec_all()
        self.wave_red('v_add_f32', [16, 17], [18, 19])
        a(f"""
        v_mov_b32 v18, v17
        v_mov_b32 v17, v16
        v_mov_b32 v16, s64
        v_mov_b32 v19, 0
        s_mov_b64 exec, 1
        ds_write_b128 v10, v[16:19] offset:{LST2}
        s_mov_b64 exec, -1
        s_waitcnt lgkmcnt(0)
        s_barrier                            ; Bh1
        ds_read_b128 v[116:119], v11 offset:{LST2}
        ds_read_b128 v[120:123], v11 offset:{LST2+16}
        ds_read_b128 v[124:127], v11 offset:{LST2+32}
        ds_read_b128 v[128:131], v11 offset:{LST2+48}
        s_waitcnt lgkmcnt(0)
        v_add_f32 v16, v116, v120
        v_add_f32 v17, v124, v128
        v_add_f32 v18, v117, v121
        v_add_f32 v19, v125, v129
        v_add_f32 v16, v16, v17
        v_add_f32 v18, v18, v19
        v_mul_f32 v16, 0x43100000, v16       ; *144
        v_add_f32 v16, v16, v18
        v_mul_f32 v16, {f2u(1.0/576):#x}, v16   ; mean (f32)
        """)
        for w in range(4): a(f'v_sub_f32 v{116+4*w}, v{116+4*w}, v16')
        for w in range(4): a(f'v_add_f32 v{117+4*w}, v{117+4*w}, v{117+4*w}')
        for w in range(4): a(f'v_fmac_f32 v{117+4*w}, 0x43100000, v{116+4*w}')
        for w in range(4): a(f'v_fmac_f32 v{118+4*w}, v{116+4*w}, v{117+4*w}')
        a(f"""
        v_add_f32 v17, v118, v122
        v_add_f32 v18, v126, v130
        v_add_f32 v17, v17, v18
        v_mul_f32 v17, {f2u(1.0/576):#x}, v17
        """)
        self.ln_finish(16, 17, 18)
        self.ln_apply(av, mean=16, sd=17, tmps=T)
        for r in range(4): a(f'v_mul_f32 v{GB+r}, v{GB+r}, v{32+r}')
        self.rnd(av, T)
        for r in range(4): a(f'v_add_f32 v{GB+r}, v{GB+r}, v{28+r}')
        for r in range(4): a(f'v_cvt_pk_bf16_f32 v{GB+r}, v{GB+r}, v{GB+r}')
        self.exec_set((1 << 36) - 1)
        a(f'ds_write_b128 v8, {vr(GB,4)} offset:{LH2}')
        self.exec_all()
        a('s_waitcnt lgkmcnt(0)')
        self.stamp(11)
        a('s_barrier')
        self.end_wave()

    def reducer(self):
        a = self.a
        GB = 96
        a(f"""
        v_lshrrev_b32 v8, 2, v1
        v_mul_u32_u24 v8, 2304, v8
        v_and_b32 v9, 3, v1
        v_lshl_add_u32 v8, v9, 4, v8
        s_lshl_b32 s7, s69, 6
        s_add_u32 s6, s7, {WS_AP}
        """)
        self.srd_plain(SRD_A, POUT, 1152)
        self.poll_begin('L_r1')
        a(f"""
        buffer_load_dwordx4 v[12:15], v8, {sr(SRD_WS,4)}, s6 offen sc1
        s_waitcnt vmcnt(0)
        """)
        av = [12, 13, 14, 15]
        self.row_red('v_add_f32', av, rors=(8, 4))
        self.xgroup('v_add_f32', av, [16, 17, 18, 19])
        a(f"""
        v_add_f32 v16, v12, v13
        v_add_f32 v17, v14, v15
        v_add_f32 v16, v16, v17
        """)
        self.poll_end('L_r1', 16, sleep=2)
        self.rnd(av, [16, 17])
        for r in range(4): a(f'v_mul_f32 v{12+r}, v{12+r}, v{24+r}')
        self.rnd(av, [16, 17])
        for r in range(4): a(f'v_add_f32 v{32+r}, v{12+r}, v{36+r}')
        self.rnd([32, 33, 34, 35], [16, 17])
        a(f"""
        v_lshlrev_b32 v10, 3, v1
        s_lshl_b32 s10, s69, 5
        v_mov_b32 v14, s{sTAG}
        v_mov_b32 v15, {WS_EPOCH}
        """)
        self.stamp(10)
        a(f's_add_u32 s7, s7, {WS_YP}')
        a(f's_sleep {self.sl_h2}')
        RA, RB = 96, 132
        def rissue(base):
            a('s_mov_b32 s6, s7')
            for i in range(9):
                a(f'buffer_load_dwordx4 {vr(base+4*i,4)}, v8, {sr(SRD_WS,4)}, s6 offen sc1')
                if i < 8: a(f's_add_u32 s6, s6, {16*2304}')
        def rsum(base):
            for (x, y) in ((0, 1), (2, 3), (4, 5), (6, 7), (0, 2), (4, 6), (0, 8)):
                for r in range(4): a(f'v_add_f32 v{base+4*x+r}, v{base+4*x+r}, v{base+4*y+r}')
            for r in range(4): a(f'v_add_f32 v{44+r}, v{base+r}, v{base+16+r}')
        rissue(RA)
        a(f's_sleep {self.sl_stag}')
        a(f's_mov_b32 s{sCNT}, 0')
        a.label('L_r2')
        rissue(RB)
        a('s_waitcnt vmcnt(9)')
        self.sent_check(list(range(RA, RA + 36)), 16, 17)
        a('s_cbranch_vccz L_r2_useA')
        rissue(RA)
        a('s_waitcnt vmcnt(9)')
        self.sent_check(list(range(RB, RB + 36)), 16, 17)
        a(f"""
        s_cbranch_vccz L_r2_useB
        s_add_u32 s{sCNT}, s{sCNT}, 1
        s_cmp_lt_u32 s{sCNT}, {MAXSPIN}
        s_cbranch_scc1 L_r2
        L_r2_useB:
        """)
        rsum(RB)
        a('s_branch L_r2_done')
        a.label('L_r2_useA')
        rsum(RA)
        a.label('L_r2_done')
        GB = 44
        yv = [GB, GB + 1, GB + 2, GB + 3]
        self.row_red('v_add_f32', yv, rors=(8, 4))
        self.xgroup('v_add_f32', yv, [16, 17, 18, 19])
        self.stamp(11)
        self.rnd(yv, [16, 17])
        for r in range(4): a(f'v_mul_f32 v{GB+r}, v{GB+r}, v{28+r}')
        self.rnd(yv, [16, 17])
        for r in range(4): a(f'v_add_f32 v{GB+r}, v{GB+r}, v{32+r}')
        a(f"""
        v_cvt_pk_bf16_f32 v12, v{GB}, v{GB+1}
        v_cvt_pk_bf16_f32 v13, v{GB+2}, v{GB+3}
        s_mov_b64 exec, 0xf
        buffer_store_dwordx2 v[12:13], v10, {sr(SRD_A,4)}, s10 offen
        s_mov_b64 exec, 1
        s_cmp_lg_u32 s69, 0
        s_cbranch_scc1 L_r_noepoch
        buffer_store_dword v14, v15, {sr(SRD_WS,4)}, 0 offen sc1
        L_r_noepoch:
        s_mov_b64 exec, -1
        """)
        self.end_wave()

    def build(self):
        self.prologue()
        self.stream()
        self.chain()
        self.a.label('L_exit')
        self.a('s_endpgm')
        self.a.label('L_code_end')
        body = self.a.text()
        return wrap(body, 256, 768, LDS_BYTES, 168)

if __name__ == '__main__':
    import argparse
    ap = argparse.ArgumentParser()
    ap.add_argument('-o', default='k.s'); ap.add_argument('--diag', action='store_true')
    ap.add_argument('--depth', type=int, default=3)
    for n, d in (('sl_stream', 16), ('sl_p1', 4), ('sl_q0', 32), ('sl_m0', 8), ('sl_h2', 16)):
        ap.add_argument('--' + n, type=int, default=d)
    ap.add_argument('--nopf', action='store_true')
    ap.add_argument('--nb1', type=int, default=16); ap.add_argument('--extra', type=int, default=0); ap.add_argument('--dk', type=int, default=3); ap.add_argument('--early_wo', type=int, default=4); ap.add_argument('--early_w2', type=int, default=4); ap.add_argument('--nohint', action='store_true')
    for n, d in (('dt_wo', 2), ('thr_wo', 8), ('dt_ffn', 2), ('thr_ffn', 6)): ap.add_argument('--' + n, type=int, default=d)
    ap.add_argument('--w2_first', action='store_true'); ap.add_argument('--pf1', action='store_true'); ap.add_argument('--pf2', action='store_true'); ap.add_argument('--pf_nont', action='store_true'); ap.add_argument('--sl_ffn', type=int, default=0); ap.add_argument('--early2', action='store_true'); ap.add_argument('--sl_q1', type=int, default=0); ap.add_argument('--cks', default='4,7,10,13'); ap.add_argument('--wo_wait', action='store_true'); ap.add_argument('--wo_first', action='store_true'); ap.add_argument('--tk', type=int, default=8); ap.add_argument('--sl_stag', type=int, default=4); ap.add_argument('--sl_hint', type=int, default=8)
    args = ap.parse_args()
    g = Gen(depth=args.depth, diag=args.diag, sl_stream=args.sl_stream, sl_p1=args.sl_p1, sl_q0=args.sl_q0, sl_m0=args.sl_m0, sl_h2=args.sl_h2, prefetch_code=not args.nopf, nb1=args.nb1, extra=args.extra, sl_hint=args.sl_hint, dk=args.dk, early_wo=args.early_wo, early_w2=args.early_w2, hint=not args.nohint, dt_wo=args.dt_wo, thr_wo=args.thr_wo, dt_ffn=args.dt_ffn, thr_ffn=args.thr_ffn, w2_first=args.w2_first, pf1=args.pf1, pf2=args.pf2, pf_nt=not args.pf_nont, sl_ffn=args.sl_ffn, early2=args.early2, sl_q1=args.sl_q1, cks=tuple(int(x) for x in args.cks.split(',')), wo_wait=args.wo_wait, ffn_first=not args.wo_first, tk=args.tk, sl_stag=args.sl_stag)
    s = g.build()
    open(args.o, 'w').write(s)
    print('hazard pads inserted:', g.a.ninsert, 'lines', s.count('\n'))
```

```python
import sys, struct
from asmgen import *

WS_EPOCH = 0x0
WS_FLAGS = 0x1000
WS_MODP = 0x2000
MODP_P = 3456 * 8
WS_QP = 0x10000
QP_P = 4096 * 8
WS_OP = 0x20000
WS_ST = 0x60000
WS_AP = 0x70000
WS_YP = 0x80000
WS_XG = 0x7E800
WS_RC = 0x7F000
WS_UX = 0x7A000
WS_DIAG = 0x800000
WS_SRD_SIZE = 0x1000000
LQ = 0x0000; LMX = 0x0200; LLS = 0x0240; LST2 = 0x0280; LF_XX = 0x02C0; LF_Q = 0x02C4; LCNT = 0x02C8; LCNT2 = 0x02CC; LCNT_V = 0x02D0; LROLE = 0x02D4; LCNT_T = 0x02D8; LCNT_Q = 0x02DC; LCNT_W = 0x02E0; LCNT_C = 0x02E4; LFAST = 0x02E8; LCNT_H2 = 0x02EC
LH2 = 0x0300
LUS = 0x1000
LUP = 0x0C00
LAP = 0x0E00
LXXT = 0x1700; LOXX = 0x1C00; LOP = 0x2000
LCON = 0x4000
LDS_BYTES = 0x6000
sB = 2; sW = 3; sG = 4; sS = 5
PX, PK, PV, PWQ, PWO, PW1, PW2, PC, PWM, POUT, PDBG, PWS = 16, 18, 20, 22, 24, 28, 30, 32, 34, 36, 38, 40
sTAG = 42; sCNT = 43
SRD_WS = 44; SRD_A = 48; SRD_B = 52
sSCALE = 56; sLOG2E = 57; sF = 58; sSLOT = 59
SCALE = 0x3DB504F3
LOG2E = 0x3FB8AA3B
MAXSPIN = 200000
NT = ' nt'
ALL = (1 << 64) - 1

def f2u(x):
    return struct.unpack('<I', struct.pack('<f', x))[0]

class VM:
    def __init__(self, a):
        self.a = a; self.q = []; self.done = 0
    def issue(self, tag, text):
        self.a(text); self.q.append(tag)
    def wait(self, tag):
        i = self.q.index(tag)
        if i < self.done: return
        n = len(self.q) - 1 - i
        self.a(f's_waitcnt vmcnt({min(n, 63)})')
        self.done = i + 1

class Gen:
    def __init__(self, depth=3, diag=False, prefetch_code=True, sl_stream=16, sl_p1=4, sl_q0=32, sl_m0=8, sl_h2=16, nb1=16, extra=0, sl_hint=8, dk=3, early_wo=4, early_w2=4, hint=True, dt_wo=2, thr_wo=8, dt_ffn=2, thr_ffn=6, w2_first=False, pf1=False, pf2=False, pf_nt=True, pf1_wave=3, sl_ffn=0, early2=False, sl_q1=0, cks=(4, 7, 10, 13), wo_wait=False, ffn_first=True, tk=8, sl_stag=4):
        self.a = Asm(); self.depth = depth; self.diag = diag
        self.prefetch_code = prefetch_code; self.nb1 = nb1; self.extra = extra; self.sl_hint = sl_hint; self.dk = dk; self.early_wo = early_wo; self.early_w2 = early_w2; self.hint = hint; self.dt_wo = dt_wo; self.thr_wo = thr_wo; self.dt_ffn = dt_ffn; self.thr_ffn = thr_ffn; self.w2_first = w2_first; self.pf1 = pf1; self.pf2 = pf2; self.pf_policy = ' nt' if pf_nt else ''; self.pf1_wave = pf1_wave; self.sl_ffn = sl_ffn; self.early2 = early2; self.sl_q1 = sl_q1; self.cks = cks; self.wo_wait = wo_wait; self.ffn_first = ffn_first; self.tk = tk; self.sl_stag = sl_stag
        self.sl_stream = sl_stream; self.sl_p1 = sl_p1; self.sl_q0 = sl_q0; self.sl_m0 = sl_m0; self.sl_h2 = sl_h2

    def stamp(self, idx):
        if not self.diag: return
        self.a(f'''
        s_memrealtime s[92:93]
        s_waitcnt lgkmcnt(0)
        v_writelane_b32 v3, s92, {idx}
        ''')
    def exec_set(self, mask):
        a = self.a
        lo = mask & 0xffffffff; hi = mask >> 32
        if mask == ALL: a('s_mov_b64 exec, -1')
        elif hi == 0 and lo <= 0x7fffffff and False: a(f's_mov_b64 exec, {lo:#x}')
        else:
            a(f's_mov_b32 exec_lo, {lo:#x}'); a(f's_mov_b32 exec_hi, {hi:#x}')
    def exec_all(self): self.a('s_mov_b64 exec, -1')
    def rnd(self, regs, tmps):
        a = self.a
        regs = list(regs)
        if isinstance(tmps, int): tmps = [tmps]
        pairs = [(regs[i], regs[i + 1] if i + 1 < len(regs) else None) for i in range(0, len(regs), 2)]
        for c in range(0, len(pairs), len(tmps)):
            grp = pairs[c:c + len(tmps)]
            for (x, y), t in zip(grp, tmps): a(f'v_cvt_pk_bf16_f32 v{t}, v{x}, v{y if y is not None else x}')
            for (x, y), t in zip(grp, tmps):
                a(f'v_lshlrev_b32 v{x}, 16, v{t}')
                if y is not None: a(f'v_and_b32 v{y}, 0xffff0000, v{t}')
    def unpack(self, src, lo, hi):
        self.a(f'v_lshlrev_b32 v{lo}, 16, v{src}')
        self.a(f'v_and_b32 v{hi}, 0xffff0000, v{src}')
    def xstep(self, op, regs, tmps, st):
        a = self.a
        sw = 'v_permlane16_swap_b32' if st == 16 else 'v_permlane32_swap_b32'
        n = len(regs)
        for i, r in enumerate(regs): a(f'v_mov_b32 v{tmps[i]}, v{r}')
        for i, r in enumerate(regs): a(f'{sw} v{r}, v{tmps[i]}')
        for i, r in enumerate(regs): a(f'{op} v{r}, v{r}, v{tmps[i]}')
    def xgroup(self, op, regs, tmps, steps=(16, 32)):
        for st in steps: self.xstep(op, regs, tmps, st)
    def row_red(self, op, regs, rors=(8, 4, 2, 1)):
        a = self.a
        for n in rors:
            for r in regs:
                a(f'{op}_dpp v{r}, v{r}, v{r} row_ror:{n} row_mask:0xf bank_mask:0xf')
    def wave_red(self, op, regs, tmps):
        self.row_red(op, regs)
        self.xgroup(op, regs, tmps)
    def masks(self, m0, t):
        a = self.a
        a(f'''
        v_and_b32 v{t}, 1, v1
        v_lshlrev_b32 v{t}, 4, v{t}
        v_mov_b32 v{m0}, 0xffff
        v_lshlrev_b32 v{m0+3}, v{t}, v{m0}
        v_bfe_u32 v{t}, v1, 1, 2
        ''')
        for w in range(4):
            a(f'v_cmp_eq_u32 vcc, {w}, v{t}')
            a(f'v_cndmask_b32 v{m0+w}, 0, v{m0+3}, vcc')
    def abuild(self, dst, xx, m0=4):
        for w in range(4):
            self.a(f'v_and_b32 v{dst+w}, v{xx}, v{m0+w}')
    def poll_begin(self, name):
        self.a(f's_mov_b32 s{sCNT}, 0')
        self.a.label(name)
    def _poll_tail(self, name, sleep):
        a = self.a
        a(f'''
        s_cbranch_vccz {name}_done
        s_add_u32 s{sCNT}, s{sCNT}, 1
        s_cmp_lt_u32 s{sCNT}, {MAXSPIN}
        s_cbranch_scc0 {name}_done
        ''')
        if sleep: a(f's_sleep {sleep}')
        a(f'''
        s_branch {name}
        {name}_done:
        ''')
    def poll_end(self, name, chk, sleep=0):
        self.a(f'v_cmp_u_f32 vcc, v{chk}, v{chk}')
        self._poll_tail(name, sleep)
    def poll_end_nz(self, name, chk, sleep=1):
        self.a(f'v_cmp_ne_u32 vcc, 0, v{chk}')
        self._poll_tail(name, sleep)
    def sent_check(self, regs, t1, t2):
        a = self.a
        regs = list(regs)
        acc = [t1, t2]
        a(f'v_max3_u32 v{t1}, v{regs[0]}, v{regs[1]}, v{regs[2]}')
        a(f'v_max3_u32 v{t2}, v{regs[3]}, v{regs[4]}, v{regs[5]}')
        i = 6; k = 0
        while i < len(regs):
            r2 = regs[i + 1] if i + 1 < len(regs) else regs[i]
            a(f'v_max3_u32 v{acc[k]}, v{acc[k]}, v{regs[i]}, v{r2}')
            i += 2; k ^= 1
        a(f'v_max_u32 v{t1}, v{t1}, v{t2}')
        a(f'v_cmp_eq_u32 vcc, -1, v{t1}')
    def tag_check(self, tags, t1, t2):
        a = self.a
        tags = list(tags)
        a(f'v_min_u32 v{t1}, v{tags[0]}, v{tags[1]}')
        a(f'v_max_u32 v{t2}, v{tags[0]}, v{tags[1]}')
        for i in range(2, len(tags) - 1, 2):
            a(f'v_min3_u32 v{t1}, v{t1}, v{tags[i]}, v{tags[i+1]}')
            a(f'v_max3_u32 v{t2}, v{t2}, v{tags[i]}, v{tags[i+1]}')
        a(f'v_xor_b32 v{t1}, s{sTAG}, v{t1}')
        a(f'v_xor_b32 v{t2}, s{sTAG}, v{t2}')
        a(f'v_or_b32 v{t1}, v{t1}, v{t2}')
    def shint(self, name, base, offs, s0, sleep=None):
        a = self.a
        sleep = self.sl_hint if sleep is None else sleep
        a(f's_mov_b32 s{sCNT}, 0')
        a.label(name)
        for i, o in enumerate(offs): a(f's_load_dword s{s0+i}, {sr(base,2)}, {o} glc')
        a('s_waitcnt lgkmcnt(0)')
        a(f's_xor_b32 s6, s{s0}, s{sTAG}') if False else None
        a(f's_xor_b32 s15, s{s0}, s{sTAG}')
        for i in range(1, len(offs)):
            a(f's_xor_b32 s14, s{s0+i}, s{sTAG}')
            a(f's_or_b32 s15, s15, s14')
        a(f'''
        s_cmp_eq_u32 s15, 0
        s_cbranch_scc1 {name}_done
        s_add_u32 s{sCNT}, s{sCNT}, 1
        s_cmp_lt_u32 s{sCNT}, {MAXSPIN}
        s_cbranch_scc0 {name}_done
        s_sleep {sleep}
        s_branch {name}
        {name}_done:
        ''')
    def lds_wait_cnt(self, name, addr, n, vt):
        a = self.a
        a(f'''
        s_mov_b32 s{sCNT}, 0
        v_mov_b32 v{vt}, {addr}
        {name}:
        ds_read_b32 v{vt+1}, v{vt}
        s_add_u32 s{sCNT}, s{sCNT}, 1
        s_cmp_lt_u32 s{sCNT}, {MAXSPIN*8}
        s_cbranch_scc0 {name}_done
        s_waitcnt lgkmcnt(0)
        v_cmp_ne_u32 vcc, {n}, v{vt+1}
        s_cbranch_vccz {name}_done
        s_sleep 1
        s_branch {name}
        {name}_done:
        s_waitcnt lgkmcnt(0)
        ''')
    def lds_wait_flag(self, name, addr, vt):
        a = self.a
        a(f'''
        s_mov_b32 s{sCNT}, 0
        v_mov_b32 v{vt}, {addr}
        {name}:
        ds_read_b32 v{vt+1}, v{vt}
        s_waitcnt lgkmcnt(0)
        v_cmp_ne_u32 vcc, 1, v{vt+1}
        s_cbranch_vccz {name}_done
        s_add_u32 s{sCNT}, s{sCNT}, 1
        s_cmp_lt_u32 s{sCNT}, {MAXSPIN*8}
        s_cbranch_scc0 {name}_done
        s_sleep 1
        s_branch {name}
        {name}_done:
        ''')
    def flags_check(self, name, vo, vd, sleep=16):
        a = self.a
        a(f'''
        v_lshlrev_b32 v{vo}, 4, v1
        s_mov_b32 s{sCNT}, 0
        s_mov_b32 s6, {WS_FLAGS}
        {name}:
        buffer_load_dwordx4 {vr(vd,4)}, v{vo}, {sr(SRD_WS,4)}, s6 offen sc1
        s_waitcnt vmcnt(0)
        ''')
        self.tag_check([vd, vd + 1, vd + 2, vd + 3], vo + 1, vo + 2)
        self.a(f'v_cmp_ne_u32 vcc, 0, v{vo+1}')
        self._poll_tail(name, sleep)
    def srd(self, s, ptr, off_s, size):
        a = self.a
        a(f's_add_u32 s{s}, s{ptr}, s{off_s}')
        a(f's_addc_u32 s{s+1}, s{ptr+1}, 0')
        a(f's_mov_b32 s{s+2}, {size}')
        a(f's_mov_b32 s{s+3}, 0x20000')
    def srd_plain(self, s, ptr, size):
        a = self.a
        a(f's_mov_b32 s{s}, s{ptr}'); a(f's_mov_b32 s{s+1}, s{ptr+1}')
        a(f's_mov_b32 s{s+2}, {size}'); a(f's_mov_b32 s{s+3}, 0x20000')
    def setsum2(self, ds, outs):
        a = self.a
        for d in ds:
            a(f'v_permlane32_swap_b32 v{d}, v{d+2}')
            a(f'v_permlane32_swap_b32 v{d+1}, v{d+3}')
        for d, o in zip(ds, outs):
            a(f'v_add_f32_dpp v{o}, v{d+2}, v{d} row_ror:8 row_mask:0xf bank_mask:0xf')
            a(f'v_add_f32_dpp v{o+1}, v{d+3}, v{d+1} row_ror:8 row_mask:0xf bank_mask:0xf')
    def setsum4(self, ds, outs):
        a = self.a
        self.setsum2(ds, outs)
        for o in outs:
            a(f'v_mov_b32 v{o+2}, v{o}')
            a(f'v_mov_b32 v{o+3}, v{o+1}')
        for o in outs:
            a(f'v_permlane32_swap_b32 v{o}, v{o+2}')
            a(f'v_permlane32_swap_b32 v{o+1}, v{o+3}')
    def set_addr4(self, dst, t):
        a = self.a
        a(f'''
        v_and_b32 v{dst}, 7, v1
        v_lshlrev_b32 v{dst}, 5, v{dst}
        v_bfe_u32 v{t}, v1, 4, 1
        v_lshl_add_u32 v{dst}, v{t}, 4, v{dst}
        ''')
    def quad_gather(self, src, dst):
        for j in range(4):
            self.a(f'v_mov_b32_dpp v{dst+j}, v{src} quad_perm:[{j},{j},{j},{j}] row_mask:0xf bank_mask:0xf')
    def set_addr(self, dst, t):
        a = self.a
        a(f'''
        v_and_b32 v{dst}, 7, v1
        v_lshlrev_b32 v{dst}, 5, v{dst}
        v_bfe_u32 v{t}, v1, 4, 1
        v_lshl_add_u32 v{dst}, v{t}, 4, v{dst}
        v_lshrrev_b32 v{t}, 5, v1
        v_lshl_add_u32 v{dst}, v{t}, 3, v{dst}
        ''')
    SETMASK = 0x00FF00FF00FF00FF
    def silu(self, regs, tmps):
        a = self.a
        for r, t in zip(regs, tmps): a(f'v_mul_f32 v{t}, 0xbfb8aa3b, v{r}')
        for r, t in zip(regs, tmps): a(f'v_exp_f32 v{t}, v{t}')
        for r, t in zip(regs, tmps): a(f'v_add_f32 v{t}, 1.0, v{t}')
        for r, t in zip(regs, tmps): a(f'v_rcp_f32 v{t}, v{t}')
        for r, t in zip(regs, tmps): a(f'v_mul_f32 v{r}, v{r}, v{t}')
    def end_wave(self):
        a = self.a
        if self.diag:
            self.stamp(15)
            a(f'''
            s_memtime s[86:87]
            s_waitcnt lgkmcnt(0)
            s_sub_u32 s86, s86, s88
            v_writelane_b32 v3, s86, 14
            s_mov_b64 exec, -1
            s_lshl_b32 s6, s{sB}, 10
            s_lshl_b32 s7, s94, 6
            s_add_u32 s6, s6, s7
            s_add_u32 s6, s6, {WS_DIAG}
            v_lshlrev_b32 v2, 2, v1
            s_mov_b64 exec, 0xffff
            buffer_store_dword v3, v2, {sr(SRD_WS,4)}, s6 offen
            ''')
        a('s_endpgm')

    def prologue(self):
        a = self.a
        if self.diag: a('s_memrealtime s[90:91]'); a('s_memtime s[88:89]')
        a(f'''
        s_cmp_ge_u32 s{sB}, 256
        s_cbranch_scc1 L_exit
        s_load_dwordx16 s[16:31], s[0:1], 0
        s_load_dwordx8 s[32:39], s[0:1], 64
        s_load_dwordx2 s[40:41], s[0:1], 96
        ''')
        if self.prefetch_code:
            a(f'''
            s_getpc_b64 s[64:65]
            L_pc:
            s_sub_u32 s{SRD_A}, s64, (L_pc - {KNAME})
            s_subb_u32 s{SRD_A+1}, s65, 0
            s_mov_b32 s{SRD_A+2}, (L_code_end - {KNAME})
            s_mov_b32 s{SRD_A+3}, 0x20000
            v_lshlrev_b32 v2, 7, v0
            buffer_load_dword v167, v2, {sr(SRD_A,4)}, 0 offen
            ''')
        a(f'''
        v_lshrrev_b32 v2, 6, v0
        v_and_b32 v1, 63, v0
        v_readfirstlane_b32 s{sW}, v2
        s_and_b32 s6, s{sB}, 7
        s_mov_b32 s94, s{sW}
        s_lshr_b32 s7, s{sB}, 3
        s_lshl_b32 s{sG}, s6, 1
        s_lshr_b32 s8, s7, 4
        s_add_u32 s{sG}, s{sG}, s8
        s_and_b32 s{sS}, s7, 15
        s_lshl_b32 s{sSLOT}, s{sG}, 4
        s_add_u32 s{sSLOT}, s{sSLOT}, s{sS}
        s_mul_i32 s{sF}, s{sG}, 9
        s_add_u32 s{sF}, s{sF}, s{sS}
        s_sub_u32 s{sF}, s{sF}, 7
        s_mov_b32 s{sSCALE}, {SCALE:#x}
        s_mov_b32 s{sLOG2E}, {LOG2E:#x}
        v_mov_b32 v3, 0
        s_waitcnt lgkmcnt(0)
        s_mov_b32 s{SRD_WS}, s{PWS}
        s_mov_b32 s{SRD_WS+1}, s{PWS+1}
        s_mov_b32 s{SRD_WS+2}, {WS_SRD_SIZE}
        s_mov_b32 s{SRD_WS+3}, 0x20000
        ''')
        if self.diag: a('v_writelane_b32 v3, s90, 0')
        a(f'''
        s_cmp_ge_u32 s{sW}, 8
        s_cbranch_scc1 L_chain
        ''')

    def stream(self):
        a = self.a; DK = self.dk; DV = self.depth
        KB, VB = 40, 104
        SB = 20; PM = 28
        a(f"""
        s_load_dword s{sTAG}, {sr(PWS,2)}, {WS_EPOCH}
        s_lshl_b32 s6, s{sG}, 21
        s_lshl_b32 s7, s{sS}, 17
        s_add_u32 s6, s6, s7
        s_lshl_b32 s7, s{sW}, 14
        s_add_u32 s6, s6, s7
        """)
        self.srd(SRD_A, PK, 6, 16384)
        self.srd(SRD_B, PV, 6, 16384)
        a(f"""
        v_lshrrev_b32 v8, 4, v1
        v_bfe_u32 v9, v1, 2, 2
        v_and_b32 v10, 3, v1
        v_lshlrev_b32 v8, 6, v8
        v_lshlrev_b32 v9, 8, v9
        v_lshlrev_b32 v10, 4, v10
        v_add3_u32 v36, v8, v9, v10          ; K voffset
        v_lshlrev_b32 v37, 4, v1             ; V voffset
        s_mov_b32 s61, 4096
        s_mov_b32 s62, 8192
        s_mov_b32 s63, 12288
        s_mov_b32 s71, 0
        """)
        if self.prio47:
            a(f"""
            s_cmp_lt_u32 s{sW}, 4
            s_cbranch_scc1 L_noprio
            s_setprio {self.prio47}
            L_noprio:
            """)
        a('s_barrier')
        vm = VM(a)
        def ld(kind, t):
            so = '0' if t < 4 else f's{60 + t // 4}'
            off = (t % 4) * 1024
            if kind == 'K':
                return f'buffer_load_dwordx4 {vr(KB+4*t,4)}, v36, {sr(SRD_A,4)}, {so} offen offset:{off}{NT}'
            return f'buffer_load_dwordx4 {vr(VB+4*t,4)}, v37, {sr(SRD_B,4)}, {so} offen offset:{off}{NT}'
        seq = [('K', t) for t in range(16)] + [('V', t) for t in range(16)]
        if self.sl_stream: a(f's_sleep {self.sl_stream}')
        st = {'pos': 0}
        def pump(depth):
            pos = st['pos']
            if pos >= 32: return
            if pos >= depth: vm.wait(seq[pos - depth])
            vm.issue(seq[pos], ld(*seq[pos]))
            st['pos'] = pos + 1
            if self.prio47 and pos + 1 == self.prio_off: a('s_setprio 0')
        for _ in range(DK): pump(DK)
        self.stamp(1)
        self.masks(4, 8)
        a(f"""
        v_bfe_u32 v16, v1, 3, 1              ; head
        v_lshlrev_b32 v38, 5, v16
        s_lshl_b32 s6, s{sW}, 2
        v_add_u32 v39, s6, v38               ; head*32 + w*4
        v_lshlrev_b32 v16, 8, v16
        v_lshrrev_b32 v17, 4, v1
        v_lshlrev_b32 v17, 6, v17
        v_and_b32 v18, 3, v1
        v_lshlrev_b32 v18, 4, v18
        v_add3_u32 v0, v16, v17, v18
        v_lshrrev_b32 v8, 5, v1
        v_lshlrev_b32 v8, 12, v8
        v_and_b32 v9, 31, v1
        v_lshlrev_b32 v9, 2, v9
        s_lshl_b32 s6, s{sW}, 7
        v_add3_u32 v2, v8, v9, s6
        s_lshl_b32 s8, s{sSLOT}, 10
        s_add_u32 s8, s8, {WS_OP}
        s_mov_b32 s66, 0xf0f0f0f0
        s_mov_b32 s67, 0xf0f0f0f0
        """)
        while st['pos'] < 16: pump(DK)
        a(f"""
        v_lshrrev_b32 v8, 5, v1
        v_lshlrev_b32 v8, 9, v8
        v_and_b32 v9, 15, v1
        v_lshl_add_u32 v8, v9, 5, v8
        v_bfe_u32 v9, v1, 4, 1
        v_lshl_add_u32 v8, v9, 4, v8
        s_lshl_b32 s6, s{sW}, 10
        v_add_u32 v36, s6, v8
        s_waitcnt lgkmcnt(0)
        s_add_u32 s{sTAG}, s{sTAG}, 1
        """)
        def check(k, blocking):
            lab = f'L_ck{k}'
            a(f"""
            s_cmp_lg_u32 s71, 0
            s_cbranch_scc1 {lab}_skip
            v_mov_b32 v16, {LF_Q}
            s_mov_b32 s{sCNT}, 0
            {lab}:
            ds_read_b32 v17, v16
            s_waitcnt lgkmcnt(0)
            v_readfirstlane_b32 s72, v17
            s_cmp_lg_u32 s72, 0
            s_cbranch_scc1 {lab}_go
            """)
            if blocking:
                a(f"""
                s_add_u32 s{sCNT}, s{sCNT}, 1
                s_cmp_lt_u32 s{sCNT}, {MAXSPIN*8}
                s_cbranch_scc0 {lab}_go
                s_sleep 1
                s_branch {lab}
                """)
            else:
                a(f's_branch {lab}_skip')
            a.label(f'{lab}_go')
            i = vm.q.index(('K', 15)); n = len(vm.q) - 1 - i
            a(f's_waitcnt vmcnt({n})')
            a(f's_call_b64 s[74:75], L_qk')
            a.label(f'{lab}_skip')
        cks = sorted(self.cks)
        while st['pos'] < 32:
            pump(DV)
            vpos = st['pos'] - 16
            if vpos == self.tk:
                a(f"""
                v_mov_b32 v16, {LCNT_T}
                v_mov_b32 v17, 1
                s_mov_b64 exec, 1
                ds_add_u32 v16, v17
                s_mov_b64 exec, -1
                """)
            if vpos in cks and vpos < 16: check(vpos, False)
        a(f"""
        v_mov_b32 v16, {LCNT_V}
        v_mov_b32 v17, 1
        s_mov_b64 exec, 1
        ds_add_u32 v16, v17
        s_mov_b64 exec, -1
        """)
        self.stamp(2)
        check(16, True)
        self.stamp(5)
        def pv(t):
            p, s_ = t // 2, t % 2
            A = 16 if t % 2 == 0 else 8
            for w in range(4):
                srcr = SB + p if (w >> 1) == s_ else PM + p
                a(f'v_and_b32 v{A+w}, v{srcr}, v{4+w}')
            vm.wait(('V', t))
            c = '0' if t == 0 else 'v[12:15]'
            a(f'v_mfma_f32_16x16x32_bf16 v[12:15], {vr(A,4)}, {vr(VB+4*t,4)}, {c}')
        for t in range(16): pv(t)
        a(f"""
        s_lshr_b32 s6, s{sW}, 2
        s_lshl_b32 s6, s6, 5
        v_lshrrev_b32 v0, 5, v1
        v_lshlrev_b32 v0, 4, v0
        v_add_u32 v0, s6, v0
        v_xor_b32 v37, 16, v0
        v_mov_b32 v16, {LCNT}
        v_mov_b32 v17, 1
        ds_write_b128 v36, v[12:15] offset:{LOP}
        s_mov_b64 exec, 1
        ds_add_u32 v16, v17
        s_mov_b64 exec, -1
        """)
        self.stamp(6)
        a(f"""
        s_mov_b32 s{sCNT}, 0
        L_sbar:
        ds_read_b32 v17, v16
        s_add_u32 s{sCNT}, s{sCNT}, 1
        s_cmp_lt_u32 s{sCNT}, {MAXSPIN*8}
        s_cbranch_scc0 L_sbar_done
        s_waitcnt lgkmcnt(0)
        v_cmp_ne_u32 vcc, 8, v17
        s_cbranch_vccnz L_sbar
        L_sbar_done:
        s_waitcnt lgkmcnt(0)
        v_mov_b32 v21, {LFAST}
        ds_read_b32 v22, v21
        ds_read_b128 v[8:11], v0 offset:{LMX}
        ds_read_b128 v[12:15], v37 offset:{LMX}
        """)
        for i in range(4): a(f'ds_read_b32 v{16+i}, v2 offset:{LOP + 1024*i}')
        a(f"""
        s_waitcnt lgkmcnt(4)
        v_readfirstlane_b32 s70, v22
        v_max3_f32 v12, v12, v13, v14
        v_max3_f32 v20, v8, v9, v10
        v_max3_f32 v12, v12, v15, v11
        v_max_f32 v12, v12, v20
        """)
        for i in range(4): a(f'v_sub_f32 v{8+i}, v{8+i}, v12')
        for i in range(4): a(f'v_mul_f32 v{8+i}, s{sLOG2E}, v{8+i}')
        for i in range(4): a(f'v_exp_f32 v{8+i}, v{8+i}')
        a(f"""
        s_waitcnt lgkmcnt(0)
        v_mul_f32 v16, v16, v8
        v_mul_f32 v18, v18, v10
        v_fmac_f32 v16, v17, v9
        v_fmac_f32 v18, v19, v11
        v_add_f32 v16, v16, v18
        """)
        self.xstep('v_add_f32', [16], [17], 32)
        self.quad_gather(16, 20)
        a(f"""
        s_mov_b32 exec_lo, 0x11111111
        s_mov_b32 exec_hi, 0
        s_cmp_eq_u32 s70, 1
        s_cbranch_scc1 L_s_fast
        buffer_store_dwordx4 v[20:23], v2, {sr(SRD_WS,4)}, s8 offen sc1
        s_branch L_s_stored
        L_s_fast:
        buffer_store_dwordx4 v[20:23], v2, {sr(SRD_WS,4)}, s8 offen
        L_s_stored:
        s_mov_b64 exec, -1
        """)
        self.stamp(8)
        a(f"""
        v_mov_b32 v16, {LROLE}
        s_mov_b32 s{sCNT}, 0
        L_s_role:
        ds_read_b32 v17, v16
        s_add_u32 s{sCNT}, s{sCNT}, 1
        s_cmp_lt_u32 s{sCNT}, {MAXSPIN*8}
        s_cbranch_scc0 L_s_role_done
        s_waitcnt lgkmcnt(0)
        v_readfirstlane_b32 s70, v17
        s_cmp_eq_u32 s70, 0
        s_cbranch_scc1 L_s_role
        L_s_role_done:
        s_waitcnt lgkmcnt(0)
        s_mov_b32 s71, 0
        s_sub_u32 s6, s70, 3
        s_cmp_ge_u32 s6, 9
        s_cbranch_scc1 L_s_sig
        s_cmp_ge_u32 s{sW}, 4
        s_cbranch_scc1 L_s_sig
        s_mov_b32 s71, 1
        """)
        self.stream_consts()
        a(f"""
        L_s_sig:
        v_mov_b32 v16, {LCNT2}
        v_mov_b32 v17, 1
        s_mov_b64 exec, 1
        ds_add_u32 v16, v17
        s_mov_b64 exec, -1
        """)
        self.stamp(7)
        a(f"""
        s_cmp_eq_u32 s71, 1
        s_cbranch_scc1 L_s_ffn
        """)
        self.end_wave()
        a.label('L_s_ffn')
        self.stream_consts_finish()
        self.stamp(12)
        self.hop2()
        a.label('L_qk')
        self.stamp(3)
        a(f"""
        ds_read_b128 v[8:11], v0 offset:{LQ}
        s_waitcnt lgkmcnt(0)
        """)
        for r in range(4): a(f'v_cndmask_b32 v{12+r}, 0, v{8+r}, s[66:67]')
        for r in range(4): a(f'v_cndmask_b32 v{8+r}, v{8+r}, 0, s[66:67]')
        def dreg(p): return 16 if p == 0 else KB + 4 * (2 * p - 2)
        for p in range(8):
            a(f'v_mfma_f32_16x16x32_bf16 {vr(dreg(p),4)}, {vr(KB+8*p,4)}, v[8:11], 0')
            a(f'v_mfma_f32_16x16x32_bf16 {vr(dreg(p),4)}, {vr(KB+8*p+4,4)}, v[12:15], {vr(dreg(p),4)}')
        for p0 in range(0, 8, 4):
            for j, pat in enumerate(('[0,0,0,0]', '[1,1,1,1]', '[2,2,2,2]', '[3,3,3,3]')):
                for p in range(p0, p0 + 4):
                    d = dreg(p); s = SB + p
                    if j == 0: a(f'v_mov_b32_dpp v{s}, v{d} quad_perm:{pat} row_mask:0xf bank_mask:0xf')
                    else: a(f'v_add_f32_dpp v{s}, v{d+j}, v{s} quad_perm:{pat} row_mask:0xf bank_mask:0xf')
        sc = list(range(SB, SB + 8))
        T4 = [8, 9, 10, 11]
        self.rnd(sc, T4)
        for s in sc: a(f'v_mul_f32 v{s}, s{sSCALE}, v{s}')
        self.rnd(sc, T4)
        a(f'v_max3_f32 v16, v{SB}, v{SB+1}, v{SB+2}')
        a(f'v_max3_f32 v17, v{SB+3}, v{SB+4}, v{SB+5}')
        a(f'v_max3_f32 v16, v16, v{SB+6}, v{SB+7}')
        a(f'v_max_f32 v16, v16, v17')
        a(f'v_max_f32_dpp v16, v16, v16 row_half_mirror row_mask:0xf bank_mask:0xf')
        self.xgroup('v_max_f32', [16], [17])
        a(f"""
        s_mov_b64 exec, 0x101
        ds_write_b32 v39, v16 offset:{LMX}
        s_mov_b64 exec, -1
        v_mul_f32 v9, s{sLOG2E}, v16
        v_sub_f32 v9, 0, v9
        """)
        for s in sc: a(f'v_fma_f32 v{s}, v{s}, s{sLOG2E}, v9')
        for s in sc: a(f'v_exp_f32 v{s}, v{s}')
        a(f'v_add_f32 v8, v{SB}, v{SB+1}'); a(f'v_add_f32 v9, v{SB+2}, v{SB+3}')
        a(f'v_add_f32 v10, v{SB+4}, v{SB+5}'); a(f'v_add_f32 v11, v{SB+6}, v{SB+7}')
        for s in sc: a(f'v_cvt_pk_bf16_f32 v{s}, v{s}, v{s}')
        a('v_add_f32 v8, v8, v9'); a('v_add_f32 v10, v10, v11'); a('v_add_f32 v10, v10, v8')
        for p in range(8): a(f'v_mov_b32_dpp v{PM+p}, v{SB+p} row_half_mirror row_mask:0xf bank_mask:0xf')
        a(f'v_add_f32_dpp v10, v10, v10 row_half_mirror row_mask:0xf bank_mask:0xf')
        self.xgroup('v_add_f32', [10], [17])
        a(f"""
        s_mov_b64 exec, 0x101
        ds_write_b32 v39, v10 offset:{LLS}
        v_mov_b32 v16, {LCNT_Q}
        v_mov_b32 v17, 1
        s_mov_b64 exec, 1
        ds_add_u32 v16, v17
        s_mov_b64 exec, -1
        s_mov_b32 s71, 1
        """)
        self.stamp(4)
        a('s_setpc_b64 s[74:75]')

    def w2_loads(self, WB):
        a = self.a
        a(f'''
        s_mul_i32 s6, s{sF}, {32*1152}
        s_lshl_b32 s7, s{sW}, 7
        s_add_u32 s6, s6, s7
        ''')
        self.srd(SRD_B, PW2, 6, f'{4608*1152}')
        a(f'''
        s_sub_u32 s{SRD_B+2}, s{SRD_B+2}, s6
        v_lshrrev_b32 v8, 3, v1
        v_mul_u32_u24 v8, 1152, v8
        v_and_b32 v9, 7, v1
        v_lshl_add_u32 v45, v9, 4, v8
        s_mul_i32 s74, s{sF}, 2304
        s_lshl_b32 s7, s{sW}, 8
        s_add_u32 s74, s74, s7
        s_add_u32 s74, s74, {WS_YP}
        ''')
    def gemv1_prep(self):
        a = self.a
        a(f'''
        s_and_b32 s75, s{sF}, 1              ; kh
        s_mul_i32 s6, s75, {288*4}
        s_mul_i32 s7, s{sW}, {72*4}
        s_add_u32 s6, s6, s7
        v_lshrrev_b32 v39, 3, v1
        v_lshlrev_b32 v39, 2, v39            ; v39 = (l>>3)*4
        v_add_u32 v36, s6, v39
        v_add_u32 v36, {LH2}, v36
        ''')
        self.set_addr(40, 41)
        a(f'''
        s_lshl_b32 s6, s{sW}, 8
        v_add_u32 v37, s6, v40
        v_lshlrev_b32 v38, 2, v1             ; v38 = l*4
        s_lshl_b32 s76, s{sF}, 7
        s_add_u32 s76, s76, {WS_UX}
        s_xor_b32 s77, s{sF}, 1
        s_lshl_b32 s77, s77, 7
        s_add_u32 s77, s77, {WS_UX}
        v_and_b32 v41, 31, v1
        v_lshlrev_b32 v41, 2, v41            ; v41 = (l&31)*4
        ''')
        self.set_addr4(42, 43)
        a(f"""
        v_mov_b32 v43, {LFAST}
        ds_read_b32 v43, v43
        s_waitcnt lgkmcnt(0)
        v_readfirstlane_b32 s78, v43
        """)
    def gemv1(self, KB, XB, extra_after):
        a = self.a
        N = 9
        for i in range(N): a(f'ds_read_b32 v{XB+i}, v36 offset:{32*i}')
        Areg = lambda i: (16, 20, 28)[i % 3]
        a(f's_waitcnt lgkmcnt({N-1})')
        self.abuild(Areg(0), XB)
        a(f's_waitcnt vmcnt({extra_after})')
        for i in range(N):
            if i < N - 1:
                a(f's_waitcnt lgkmcnt({N-2-i})')
                self.abuild(Areg(i + 1), XB + i + 1)
            c = '0' if i == 0 else 'v[12:15]'
            a(f'v_mfma_f32_16x16x32_bf16 v[12:15], {vr(Areg(i),4)}, {vr(KB+4*i,4)}, {c}')
        self.setsum2([12], [24])
        self.exec_set(self.SETMASK)
        a(f'ds_write_b64 v37, v[24:25] offset:{LUP}')
        self.exec_all()
        a('s_waitcnt lgkmcnt(0)')
        a('s_barrier')
        a(f'''
        s_cmp_lg_u32 s{sW}, 0
        s_cbranch_scc1 L_g1_skip
        ds_read_b32 v16, v38 offset:{LUP}
        ds_read_b32 v17, v38 offset:{LUP+256}
        ds_read_b32 v18, v38 offset:{LUP+512}
        ds_read_b32 v19, v38 offset:{LUP+768}
        s_mov_b32 s66, -1
        s_mov_b32 s67, 0                     ; s[66:67] = lanes 0..31
        s_cmp_eq_u32 s75, 0
        s_cbranch_scc1 L_g1_k0
        s_mov_b32 s66, 0
        s_mov_b32 s67, -1
        L_g1_k0:
        s_waitcnt lgkmcnt(0)
        v_add_f32 v16, v16, v17
        v_add_f32 v18, v18, v19
        v_add_f32 v16, v16, v18
        ''')
        self.quad_gather(16, 20)
        a(f'''
        s_not_b64 s[68:69], s[66:67]
        s_and_b32 s68, s68, 0x11111111
        s_and_b32 s69, s69, 0x11111111
        s_mov_b64 exec, s[68:69]
        s_cmp_eq_u32 s78, 1
        s_cbranch_scc1 L_ux_fast
        buffer_store_dwordx4 v[20:23], v41, {sr(SRD_WS,4)}, s76 offen sc1
        s_branch L_ux_stored
        L_ux_fast:
        buffer_store_dwordx4 v[20:23], v41, {sr(SRD_WS,4)}, s76 offen
        L_ux_stored:
        s_mov_b64 exec, s[66:67]
        ''')
        self.poll_begin('L_ux')
        a(f'''
        buffer_load_dword v17, v41, {sr(SRD_WS,4)}, s77 offen sc1
        s_waitcnt vmcnt(0)
        ''')
        self.poll_end('L_ux', 17)
        a('v_add_f32 v16, v16, v17')
        self.rnd([16], [20])
        self.silu([16], [20])
        a(f'''
        v_cvt_pk_bf16_f32 v16, v16, v16
        ds_write_b32 v41, v16 offset:{LUS}
        s_mov_b64 exec, -1
        s_waitcnt lgkmcnt(0)
        L_g1_skip:
        ''')
        a('s_barrier')

    def gemv2(self, WB, TB):
        a = self.a
        for ro in range(4): a(f'ds_read_b32 v{16+ro}, v39 offset:{LUS + 32*ro}')
        DB = TB + 16
        for ro in range(4):
            a(f's_waitcnt lgkmcnt({3-ro})')
            self.abuild(TB + 4 * ro, 16 + ro)
        a('s_waitcnt vmcnt(0)')
        for ro in range(4):
            for k in range(2):
                c = '0' if ro == 0 else vr(DB + 4 * k, 4)
                a(f'v_mfma_f32_16x16x32_bf16 {vr(DB+4*k,4)}, {vr(TB+4*ro,4)}, {vr(WB+16*k+4*ro,4)}, {c}')
        a(f'''
        s_cmp_lg_u32 s{sW}, 0
        s_cbranch_scc1 L_g2_no3
        ''')
        for ro in range(4):
            c = '0' if ro == 0 else vr(DB + 8, 4)
            a(f'v_mfma_f32_16x16x32_bf16 {vr(DB+8,4)}, {vr(TB+4*ro,4)}, {vr(WB+32+4*ro,4)}, {c}')
        a('s_nop 7')
        self.setsum4([DB + 8], [DB + 20])
        self.exec_set(0x00FF00FF)
        a(f'buffer_store_dwordx4 {vr(DB+20,4)}, v42, {sr(SRD_WS,4)}, s74 offen offset:2048 sc1')
        self.exec_all()
        a.label('L_g2_no3')
        a('s_nop 7')
        self.setsum4([DB, DB + 4], [DB + 12, DB + 16])
        self.exec_set(0x00FF00FF)
        a(f'buffer_store_dwordx4 {vr(DB+12,4)}, v42, {sr(SRD_WS,4)}, s74 offen sc1')
        a(f'buffer_store_dwordx4 {vr(DB+16,4)}, v42, {sr(SRD_WS,4)}, s74 offen offset:1024 sc1')
        self.exec_all()

    def chain(self):
        a = self.a
        a.label('L_chain')
        a(f'''
        s_setprio 3
        s_load_dword s{sTAG}, {sr(PWS,2)}, {WS_EPOCH}
        s_sub_u32 s{sW}, s{sW}, 8
        s_mov_b32 s60, 1
        s_mov_b32 s6, s{sB}
        s_cmp_lt_u32 s{sB}, 108
        s_cbranch_scc1 L_p1role
        s_mov_b32 s60, 2
        s_sub_u32 s6, s{sB}, 108
        s_cmp_lt_u32 s{sB}, 236
        s_cbranch_scc1 L_p1role
        s_mov_b32 s60, 0
        L_p1role:
        s_lshr_b32 s61, s6, 1
        s_and_b32 s62, s6, 1
        s_cmp_eq_u32 s{sW}, 0
        s_cbranch_scc1 L_c0
        s_cmp_eq_u32 s{sW}, 1
        s_cbranch_scc1 L_c1
        s_cmp_eq_u32 s{sW}, 2
        s_cbranch_scc1 L_c2
        ''')
        self.c3(); self.c0(); self.c1(); self.c2(); self.ctail()

    def c3(self):
        a = self.a
        a(f'''
        s_barrier                            ; B0
        s_waitcnt lgkmcnt(0)
        s_add_u32 s{sTAG}, s{sTAG}, 1
        s_sleep 127
        ''')
        self.flags_check('L_c3_flags', 8, 12, sleep=32)
        if self.fast:
            a(f"""
            s_lshr_b32 s6, s{sG}, 1
            s_lshl_b32 s6, s6, 8                 ; (g>>1)*32*8
            s_add_u32 s6, s6, {WS_XG}
            v_lshlrev_b32 v8, 3, v1
            s_getreg_b32 s7, hwreg(HW_REG_XCC_ID)
            s_and_b32 s7, s7, 15
            s_mov_b32 exec_hi, 0
            s_mov_b32 s{sCNT}, 0
            L_c3_xg:
            buffer_load_dwordx2 v[12:13], v8, {sr(SRD_WS,4)}, s6 offen sc1
            s_waitcnt vmcnt(0)
            v_cmp_ne_u32 vcc, s{sTAG}, v13
            s_cbranch_vccz L_c3_xg_ok
            s_add_u32 s{sCNT}, s{sCNT}, 1
            s_cmp_lt_u32 s{sCNT}, 64
            s_cbranch_scc0 L_c3_xg_no
            s_sleep 16
            s_branch L_c3_xg
            L_c3_xg_ok:
            v_cmp_ne_u32 vcc, s7, v12
            s_cbranch_vccnz L_c3_xg_no
            v_mov_b32 v12, 1
            v_mov_b32 v13, {LFAST}
            s_mov_b64 exec, 1
            ds_write_b32 v13, v12
            L_c3_xg_no:
            s_mov_b64 exec, -1
            """)
        self.stamp(1)
        a('s_branch L_ctail')
    code_kb4 = 6

    def c0(self):
        a = self.a
        a.label('L_c0')
        a(f"""
        s_cmp_eq_u32 s60, 0
        s_cbranch_scc1 L_c0_skip
        s_mov_b32 s63, 6912
        s_mov_b32 s64, s{PWM}
        s_mov_b32 s65, s{PWM+1}
        s_cmp_eq_u32 s60, 1
        s_cbranch_scc1 L_c0_sel
        s_mov_b32 s63, 8192
        s_mov_b32 s64, s{PWQ}
        s_mov_b32 s65, s{PWQ+1}
        L_c0_sel:
        s_mul_i32 s6, s62, 288
        s_mul_i32 s6, s6, s63                ; kh*288*pitch
        s_lshl_b32 s7, s61, 7
        s_add_u32 s6, s6, s7
        s_add_u32 s{SRD_A}, s64, s6
        s_addc_u32 s{SRD_A+1}, s65, 0
        s_mul_i32 s{SRD_A+2}, s63, 288
        s_mov_b32 s{SRD_A+3}, 0x20000
        v_lshrrev_b32 v8, 3, v1
        v_mul_lo_u32 v8, v8, s63
        v_and_b32 v9, 7, v1
        v_lshlrev_b32 v9, 4, v9
        v_add_u32 v8, v8, v9
        s_lshl_b32 s66, s63, 3               ; 8*pitch
        s_mov_b32 s67, 0
        """)
        TB = 24
        for i in range(36):
            a(f'buffer_load_dwordx4 {vr(TB+4*i,4)}, v8, {sr(SRD_A,4)}, s67 offen{NT}')
            if i < 35: a('s_add_u32 s67, s67, s66')
        a('s_barrier')
        self.masks(4, 9)
        a(f"""
        v_lshrrev_b32 v2, 3, v1
        v_mul_u32_u24 v2, 144, v2
        s_lshl_b32 s6, s61, 9                ; ct*512
        s_mul_i32 s7, s62, {MODP_P}
        s_add_u32 s7, s7, {WS_MODP}
        s_cmp_eq_u32 s60, 1
        s_cbranch_scc1 L_c0_pub
        s_mul_i32 s7, s62, {QP_P}
        s_add_u32 s7, s7, {WS_QP}
        L_c0_pub:
        s_add_u32 s68, s6, s7
        s_waitcnt lgkmcnt(0)
        s_add_u32 s{sTAG}, s{sTAG}, 1
        """)
        self.stamp(1)
        self.lds_wait_flag('L_c0_wxx', LF_XX, 8)
        self.stamp(2)
        a(f'ds_read_b128 v[8:11], v2 offset:{LXXT}')
        for n in range(9):
            xb = 8 if n == 0 else TB + 16 * (n - 1)
            a('s_waitcnt lgkmcnt(0)')
            for k in range(4):
                i = 4 * n + k
                A = 16 if i % 2 == 0 else 20
                self.abuild(A, xb + k)
                a(f's_waitcnt vmcnt({35 - i})')
                c = '0' if i == 0 else 'v[12:15]'
                a(f'v_mfma_f32_16x16x32_bf16 v[12:15], {vr(A,4)}, {vr(TB+4*i,4)}, {c}')
                if k == 0 and n < 8:
                    a(f'ds_read_b128 {vr(TB + 16*n, 4)}, v2 offset:{LXXT + 16*(n+1)}')
        self.stamp(3)
        self.set_addr(9, 10)
        a('v_lshlrev_b32 v9, 1, v9')
        self.setsum2([12], [16])
        a(f"""
        v_mov_b32 v18, v17
        v_mov_b32 v17, s{sTAG}
        v_mov_b32 v19, s{sTAG}
        """)
        self.exec_set(self.SETMASK)
        a(f'buffer_store_dwordx4 v[16:19], v9, {sr(SRD_WS,4)}, s68 offen sc1')
        self.exec_all()
        self.stamp(4)
        a('s_branch L_ctail')
        a.label('L_c0_skip')
        a(f"""
        s_barrier
        s_waitcnt lgkmcnt(0)
        s_add_u32 s{sTAG}, s{sTAG}, 1
        s_branch L_ctail
        """)

    def c1(self):
        a = self.a
        a.label('L_c1')
        a(f"""
        v_mov_b32 v8, -1
        v_mov_b32 v9, -1
        v_mov_b32 v10, -1
        v_mov_b32 v11, -1
        v_lshlrev_b32 v12, 4, v1             ; lane*16
        s_lshl_b32 s6, s{sSLOT}, 10
        s_add_u32 s6, s6, {WS_OP}
        buffer_store_dwordx4 v[8:11], v12, {sr(SRD_WS,4)}, s6 offen sc1
        s_cmp_lt_u32 s{sS}, 7
        s_cbranch_scc1 L_c1_ap
        s_mul_i32 s6, s{sF}, 2304
        s_add_u32 s6, s6, {WS_YP}
        buffer_store_dwordx4 v[8:11], v12, {sr(SRD_WS,4)}, s6 offen sc1
        buffer_store_dwordx4 v[8:11], v12, {sr(SRD_WS,4)}, s6 offen offset:1024 sc1
        s_mov_b64 exec, 0xffff
        buffer_store_dwordx4 v[8:11], v12, {sr(SRD_WS,4)}, s6 offen offset:2048 sc1
        s_mov_b64 exec, 0xff
        s_lshl_b32 s6, s{sF}, 7
        s_add_u32 s6, s6, {WS_UX}
        buffer_store_dwordx4 v[8:11], v12, {sr(SRD_WS,4)}, s6 offen sc1
        s_branch L_c1_st
        L_c1_ap:
        s_add_u32 s7, s{sS}, 2
        s_mov_b64 exec, 0xffff
        s_cmp_ge_u32 s{sS}, 2
        s_cbranch_scc1 L_c1_ap1
        s_lshl_b32 s7, s{sS}, 1
        s_mov_b32 exec_lo, -1
        L_c1_ap1:
        s_lshl_b32 s7, s7, 8
        s_mul_i32 s6, s{sG}, 2304
        s_add_u32 s6, s6, s7
        s_add_u32 s6, s6, {WS_AP}
        buffer_store_dwordx4 v[8:11], v12, {sr(SRD_WS,4)}, s6 offen sc1
        L_c1_st:
        s_mov_b64 exec, 1
        s_cmp_lg_u32 s{sS}, 0
        s_cbranch_scc1 L_c1_norc
        v_mov_b32 v13, 0
        s_lshl_b32 s6, s{sG}, 7
        s_add_u32 s6, s6, {WS_RC}
        buffer_store_dword v13, v12, {sr(SRD_WS,4)}, s6 offen sc1
        L_c1_norc:
        s_lshl_b32 s6, s{sSLOT}, 7
        s_add_u32 s6, s6, {WS_ST}
        buffer_store_dwordx4 v[8:11], v12, {sr(SRD_WS,4)}, s6 offen sc1
        s_mov_b64 exec, -1
        s_barrier                            ; B0
        s_waitcnt vmcnt(0) lgkmcnt(0)
        s_add_u32 s{sTAG}, s{sTAG}, 1
        v_mov_b32 v13, s{sTAG}
        s_lshl_b32 s6, s{sB}, 2
        s_add_u32 s6, s6, {WS_FLAGS}
        v_mov_b32 v15, 0
        s_mov_b64 exec, 1
        buffer_store_dword v13, v15, {sr(SRD_WS,4)}, s6 offen sc1
        s_getreg_b32 s7, hwreg(HW_REG_XCC_ID)
        s_and_b32 s7, s7, 15
        v_mov_b32 v16, s7
        v_mov_b32 v17, s{sTAG}
        s_lshl_b32 s6, s{sSLOT}, 3
        s_add_u32 s6, s6, {WS_XG}
        buffer_store_dwordx2 v[16:17], v15, {sr(SRD_WS,4)}, s6 offen sc1
        s_mov_b64 exec, -1
        """)
        self.stamp(1)
        a(f"""
        v_lshlrev_b32 v8, 4, v1
        s_lshl_b32 s6, s{sG}, 11
        s_add_u32 s6, s6, {WS_QP}
        s_add_u32 s7, s6, {QP_P}
        s_add_u32 s64, s{PWS}, s6
        s_addc_u32 s65, s{PWS+1}, 0
        s_sleep {self.sl_q0}
        """)
        if self.sl_q1: a(f's_sleep {self.sl_q1}')
        if self.hint: self.shint('L_c1_hint', 64, [4 + kh * QP_P + j * 512 for kh in range(2) for j in range(4)], 66)
        self.stamp(2)
        self.poll_begin('L_c1_q')
        a(f"""
        buffer_load_dwordx4 v[112:115], v8, {sr(SRD_WS,4)}, s6 offen sc1
        buffer_load_dwordx4 v[116:119], v8, {sr(SRD_WS,4)}, s6 offen offset:1024 sc1
        buffer_load_dwordx4 v[120:123], v8, {sr(SRD_WS,4)}, s7 offen sc1
        buffer_load_dwordx4 v[124:127], v8, {sr(SRD_WS,4)}, s7 offen offset:1024 sc1
        s_waitcnt vmcnt(0)
        """)
        self.tag_check(list(range(113, 128, 2)), 128, 129)
        self.poll_end_nz('L_c1_q', 128, sleep=self.sl_p1)
        a(f"""
        v_add_f32 v112, v112, v120
        v_add_f32 v114, v114, v122
        v_add_f32 v116, v116, v124
        v_add_f32 v118, v118, v126
        v_cvt_pk_bf16_f32 v112, v112, v114
        v_cvt_pk_bf16_f32 v113, v116, v118
        v_lshlrev_b32 v8, 2, v1
        ds_write_b32 v8, v112 offset:{LQ}
        ds_write_b32 v8, v113 offset:{LQ+256}
        v_mov_b32 v8, {LF_Q}
        v_mov_b32 v9, 1
        s_waitcnt lgkmcnt(0)
        s_mov_b64 exec, 1
        ds_write_b32 v8, v9
        s_mov_b64 exec, -1
        """)
        self.stamp(3)
        self.lds_wait_cnt('L_c1_wq', LCNT_Q, 8, 46)
        self.stats_pub('c', 1)
        a('s_branch L_ctail')

    def c2(self):
        a = self.a
        a.label('L_c2')
        a(f"""
        v_mov_b32 v13, 0
        v_lshlrev_b32 v14, 2, v1
        s_mov_b64 exec, 0xffff
        ds_write_b32 v14, v13 offset:{LF_XX}
        s_mov_b64 exec, -1
        s_cmp_eq_u32 s60, 0
        s_cbranch_scc1 L_c2_skip
        s_cmp_eq_u32 s60, 2
        s_cbranch_scc1 L_c2_h
        s_mul_i32 s6, s62, 576
        s_add_u32 s{SRD_A}, s{PC}, s6
        s_addc_u32 s{SRD_A+1}, s{PC+1}, 0
        s_mov_b32 s{SRD_A+2}, 576
        s_mov_b32 s{SRD_A+3}, 0x20000
        v_lshlrev_b32 v8, 4, v1
        buffer_load_dwordx4 v[12:15], v8, {sr(SRD_A,4)}, 0 offen
        s_waitcnt lgkmcnt(0)
        s_barrier                            ; B0
        s_waitcnt vmcnt(0)
        s_add_u32 s{sTAG}, s{sTAG}, 1
        """)
        xs = list(range(16, 24))
        for i in range(4): self.unpack(12 + i, 16 + 2 * i, 17 + 2 * i)
        self.silu(xs, list(range(24, 32)))
        for i in range(8): a(f'v_cvt_pk_bf16_f32 v{16+i}, v{16+i}, v{16+i}')
        a(f'v_lshlrev_b32 v8, 2, v1')
        self.exec_set((1 << 36) - 1)
        for e in range(8): a(f'ds_write_b32 v8, v{16+e} offset:{LXXT + 144*e}')
        self.exec_all()
        a('s_branch L_c2_flag')
        a.label('L_c2_h')
        self.srd_plain(SRD_A, PX, 1152)
        a(f"""
        v_lshlrev_b32 v8, 5, v1
        buffer_load_dwordx4 v[12:15], v8, {sr(SRD_A,4)}, 0 offen
        buffer_load_dwordx4 v[16:19], v8, {sr(SRD_A,4)}, 0 offen offset:16
        s_mul_i32 s6, s62, 576
        v_lshlrev_b32 v9, 2, v1
        buffer_load_dword v20, v9, {sr(SRD_A,4)}, s6 offen
        buffer_load_dword v21, v9, {sr(SRD_A,4)}, s6 offen offset:256
        buffer_load_dword v22, v9, {sr(SRD_A,4)}, s6 offen offset:512
        s_waitcnt lgkmcnt(0)
        s_barrier                            ; B0
        s_waitcnt vmcnt(0)
        s_add_u32 s{sTAG}, s{sTAG}, 1
        """)
        xv = list(range(32, 48))
        for i in range(8): self.unpack(12 + i, 32 + 2 * i, 33 + 2 * i)
        a(f'v_add_f32 v26, v32, v33')
        for r in xv[2:]: a(f'v_add_f32 v26, v26, v{r}')
        self.wave_red('v_add_f32', [26], [27])
        a(f'v_mul_f32 v24, {f2u(1.0/576):#x}, v26')
        a('v_mov_b32 v26, 0')
        self.exec_set((1 << 36) - 1)
        for r in xv:
            a(f'v_sub_f32 v29, v{r}, v24')
            a(f'v_fmac_f32 v26, v29, v29')
        self.exec_all()
        self.wave_red('v_add_f32', [26], [27])
        a(f'v_mul_f32 v25, {f2u(1.0/576):#x}, v26')
        self.ln_finish(24, 25, 27)
        for i in range(3): self.unpack(20 + i, 32 + 2 * i, 33 + 2 * i)
        xr = list(range(32, 38))
        self.ln_apply(xr, mean=24, sd=25, tmps=[26, 27, 28])
        self.stamp(1)
        a(f"""
        s_mul_i32 s6, s62, {288*8}
        s_add_u32 s6, s6, {WS_MODP}
        s_add_u32 s7, s6, {MODP_P}
        s_add_u32 s8, s6, {576*8}
        s_add_u32 s9, s7, {576*8}
        v_lshlrev_b32 v8, 4, v1
        s_sleep {self.sl_m0}
        """)
        self.poll_begin('L_c2_mod')
        for base, so in ((64, 's6'), (76, 's8'), (88, 's7'), (100, 's9')):
            a(f'buffer_load_dwordx4 {vr(base,4)}, v8, {sr(SRD_WS,4)}, {so} offen sc1')
            a(f'buffer_load_dwordx4 {vr(base+4,4)}, v8, {sr(SRD_WS,4)}, {so} offen offset:1024 sc1')
        for base in (64, 76, 88, 100):
            a(f'v_mov_b32 v{base+9}, s{sTAG}'); a(f'v_mov_b32 v{base+11}, s{sTAG}')
            a(f'v_mov_b32 v{base+8}, 0'); a(f'v_mov_b32 v{base+10}, 0')
        a('s_mov_b64 exec, 0xffff')
        for base, so in ((64, 's6'), (76, 's8'), (88, 's7'), (100, 's9')):
            a(f'buffer_load_dwordx4 {vr(base+8,4)}, v8, {sr(SRD_WS,4)}, {so} offen offset:2048 sc1')
        a('s_mov_b64 exec, -1')
        a('s_waitcnt vmcnt(0)')
        self.tag_check(list(range(65, 112, 2)), 48, 49)
        self.poll_end_nz('L_c2_mod', 48, sleep=self.sl_p1)
        self.stamp(2)
        for e in range(6):
            a(f'v_add_f32 v{48+e}, v{64+2*e}, v{88+2*e}')
            a(f'v_add_f32 v{56+e}, v{76+2*e}, v{100+2*e}')
        sa = list(range(48, 54)); ca = list(range(56, 62))
        T = list(range(64, 70))
        self.rnd(sa + ca, T)
        for r in ca: a(f'v_add_f32 v{r}, 1.0, v{r}')
        self.rnd(ca, T)
        for x, c in zip(xr, ca): a(f'v_mul_f32 v{x}, v{x}, v{c}')
        self.rnd(xr, T)
        for x, s, d in zip(xr, sa, range(16, 22)): a(f'v_add_f32 v{d}, v{x}, v{s}')
        for i in range(6): a(f'v_cvt_pk_bf16_f32 v{16+i}, v{16+i}, v{16+i}')
        a(f"""
        v_and_b32 v8, 3, v1
        v_mul_u32_u24 v8, 288, v8
        v_lshrrev_b32 v9, 2, v1
        v_lshlrev_b32 v9, 2, v9
        v_add_u32 v8, v8, v9
        ds_write_b32 v8, v16 offset:{LXXT}
        ds_write_b32 v8, v17 offset:{LXXT+144}
        ds_write_b32 v8, v18 offset:{LXXT+64}
        ds_write_b32 v8, v19 offset:{LXXT+64+144}
        s_mov_b64 exec, 0xffff
        ds_write_b32 v8, v20 offset:{LXXT+128}
        ds_write_b32 v8, v21 offset:{LXXT+128+144}
        s_mov_b64 exec, -1
        """)
        a.label('L_c2_flag')
        a(f"""
        v_mov_b32 v13, 1
        v_mov_b32 v14, {LF_XX}
        s_waitcnt lgkmcnt(0)
        s_mov_b64 exec, 1
        ds_write_b32 v14, v13
        s_mov_b64 exec, -1
        """)
        self.stamp(3)
        a('s_branch L_ctail')
        a.label('L_c2_skip')
        a(f"""
        s_waitcnt lgkmcnt(0)
        s_barrier
        s_add_u32 s{sTAG}, s{sTAG}, 1
        """)

    def ln_finish(self, mean, var, t):
        a = self.a
        self.rnd([mean, var], [t])
        a(f'v_add_f32 v{var}, {f2u(1e-5):#x}, v{var}')
        self.rnd([var], [t])
        a(f'v_sqrt_f32 v{var}, v{var}')
        self.rnd([var], [t])
        a(f'v_rcp_f32 v{var}, v{var}')

    def ln_apply(self, xr, mean, sd, tmps):
        a = self.a
        for r in xr: a(f'v_sub_f32 v{r}, v{r}, v{mean}')
        self.rnd(xr, tmps)
        for r in xr: a(f'v_mul_f32 v{r}, v{r}, v{sd}')
        self.rnd(xr, tmps)

    def ffn_consts_issue(self):
        a = self.a
        for p, so in ((0, 8), (1, 9)):
            for arr in range(3):
                if arr: a(f's_add_u32 s10, s{so}, {576*8*arr}')
                sreg = f's{so}' if arr == 0 else 's10'
                b = 64 + 24 * p + 8 * arr
                a(f'buffer_load_dwordx4 {vr(b,4)}, v9, {sr(SRD_WS,4)}, {sreg} offen sc1')
                a(f'buffer_load_dwordx4 {vr(b+4,4)}, v9, {sr(SRD_WS,4)}, {sreg} offen offset:16 sc1')
    def ffn_consts_prep(self):
        a = self.a
        self.srd_plain(SRD_B, PX, 1152)
        a(f"""
        s_mul_i32 s6, s{sW}, 288
        v_lshlrev_b32 v8, 3, v1
        s_mul_i32 s7, s{sW}, {144*8}
        s_add_u32 s8, s7, {WS_MODP + 1152*8}
        s_add_u32 s9, s8, {MODP_P}
        v_lshlrev_b32 v9, 5, v1
        """)
        self.exec_set((1 << 36) - 1)
        a(f'buffer_load_dwordx2 v[40:41], v8, {sr(SRD_B,4)}, s6 offen')
        self.exec_all()
    def ffn_consts_finish(self):
        a = self.a
        self.exec_set((1 << 36) - 1)
        a(f's_mov_b32 s{sCNT}, 0')
        a('s_branch L_ct_mod_chk')
        a.label('L_ct_mod')
        self.ffn_consts_issue()
        a.label('L_ct_mod_chk')
        a('s_waitcnt vmcnt(0)')
        self.tag_check(list(range(65, 112, 2)), 44, 45)
        self.poll_end_nz('L_ct_mod', 44, sleep=4)
        for i in range(12): a(f'v_add_f32 v{24+i}, v{64+2*i}, v{88+2*i}')
        T = list(range(42, 48))
        self.rnd(list(range(24, 36)), T)
        for i in range(4): a(f'v_add_f32 v{32+i}, 1.0, v{32+i}')
        self.rnd(list(range(32, 36)), T)
        self.unpack(40, 36, 37); self.unpack(41, 38, 39)
        self.exec_all()

    def red_consts(self):
        a = self.a
        self.srd_plain(SRD_B, PX, 1152)
        a(f"""
        v_and_b32 v8, 3, v1
        v_lshlrev_b32 v9, 5, v8
        v_lshlrev_b32 v8, 3, v8
        s_lshl_b32 s6, s69, 5
        buffer_load_dwordx2 v[40:41], v8, {sr(SRD_B,4)}, s6 offen
        s_lshl_b32 s7, s69, 7
        s_add_u32 s8, s7, {WS_MODP + 1152*8}
        s_add_u32 s9, s8, {MODP_P}
        s_add_u32 s10, s8, {1728*8}
        s_add_u32 s11, s9, {1728*8}
        """)
        self.poll_begin('L_ct_red')
        for b, so in ((128, 's8'), (136, 's10'), (144, 's9'), (152, 's11')):
            a(f'buffer_load_dwordx4 {vr(b,4)}, v9, {sr(SRD_WS,4)}, {so} offen sc1')
            a(f'buffer_load_dwordx4 {vr(b+4,4)}, v9, {sr(SRD_WS,4)}, {so} offen offset:16 sc1')
        a('s_waitcnt vmcnt(0)')
        self.tag_check(list(range(129, 160, 2)), 44, 45)
        self.poll_end_nz('L_ct_red', 44, sleep=4)
        for i in range(8): a(f'v_add_f32 v{24+i}, v{128+2*i}, v{144+2*i}')
        self.rnd(list(range(24, 32)), list(range(44, 48)))
        self.unpack(40, 36, 37); self.unpack(41, 38, 39)

    def ctail(self):
        a = self.a
        a.label('L_ctail')
        self.stamp(5)
        WB = 64
        self.masks(4, 8)
        a(f"""
        s_cmp_lg_u32 s{sW}, 3
        s_cbranch_scc1 L_ct_norole
        """)
        self.lds_wait_cnt('L_ct_wv', LCNT_T, 8, 46)
        a(f"""
        v_mov_b32 v46, 1
        v_mov_b32 v47, 0
        s_lshl_b32 s6, s{sG}, 7
        s_add_u32 s6, s6, {WS_RC}
        s_mov_b64 exec, 1
        buffer_atomic_add v46, v47, {sr(SRD_WS,4)}, s6 offen sc0 sc1
        s_waitcnt vmcnt(0)
        v_and_b32 v46, 15, v46
        v_add_u32 v46, 1, v46
        v_mov_b32 v47, {LROLE}
        ds_write_b32 v47, v46
        s_mov_b64 exec, -1
        L_ct_norole:
        v_mov_b32 v46, {LROLE}
        s_mov_b32 s{sCNT}, 0
        L_ct_role:
        ds_read_b32 v47, v46
        s_add_u32 s{sCNT}, s{sCNT}, 1
        s_cmp_lt_u32 s{sCNT}, {MAXSPIN*8}
        s_cbranch_scc0 L_ct_role_done
        s_waitcnt lgkmcnt(0)
        v_readfirstlane_b32 s70, v47
        s_cmp_lg_u32 s70, 0
        s_cbranch_scc1 L_ct_role_done
        s_sleep 1
        s_branch L_ct_role
        L_ct_role_done:
        s_waitcnt lgkmcnt(0)
        s_sub_u32 s70, s70, 1                ; rank
        """)
        a('''
        s_cmp_lt_u32 s70, 2
        s_cbranch_scc1 L_ct_wor
        s_sub_u32 s6, s70, 2
        s_cmp_lt_u32 s6, 9
        s_cbranch_scc1 L_ct_ffn2
        s_sub_u32 s70, s70, 9
        L_ct_wor:
        ''')
        a(f"""
        s_add_u32 s71, s70, 2                ; ct0
        s_mov_b32 s72, 1                     ; ntiles
        s_cmp_ge_u32 s70, 2
        s_cbranch_scc1 L_ct_wo1
        s_lshl_b32 s71, s70, 1
        s_mov_b32 s72, 2
        L_ct_wo1:
        s_lshl_b32 s6, s{sG}, 8
        s_lshl_b32 s7, s{sW}, 6
        s_add_u32 s6, s6, s7
        s_mul_i32 s6, s6, 1152
        s_lshl_b32 s7, s71, 7
        s_add_u32 s6, s6, s7
        """)
        self.srd(SRD_A, PWO, 6, f'{4096*1152}')
        a(f"""
        s_sub_u32 s{SRD_A+2}, s{SRD_A+2}, s6
        v_lshrrev_b32 v8, 3, v1
        v_mul_u32_u24 v8, 1152, v8
        v_and_b32 v9, 7, v1
        v_lshl_add_u32 v42, v9, 4, v8
        """)
        if self.wo_wait: self.lds_wait_cnt('L_wo_wp', LCNT2, 8, 46)
        else: self.lds_wait_cnt('L_wo_wv', LCNT_V, 8, 46)
        self.stamp(12)
        for i in range(8):
            a(f's_mov_b32 s7, {9216*i}')
            a(f'buffer_load_dwordx4 {vr(WB+4*i,4)}, v42, {sr(SRD_A,4)}, s7 offen{NT}')
        a(f"""
        s_cmp_eq_u32 s72, 1
        s_cbranch_scc1 L_ct_wo2
        """)
        for i in range(8):
            a(f's_mov_b32 s7, {9216*i}')
            a(f'buffer_load_dwordx4 {vr(WB+32+4*i,4)}, v42, {sr(SRD_A,4)}, s7 offen offset:128{NT}')
        a.label('L_ct_wo2')
        self.stamp(6)
        a(f"""
        s_mov_b32 s68, 0
        s_sub_u32 s6, s70, 2
        s_cmp_ge_u32 s6, 3
        s_cbranch_scc1 L_ct_nored
        s_cmp_ge_u32 s{sG}, 12
        s_cbranch_scc1 L_ct_nored
        s_cmp_lg_u32 s{sW}, 3
        s_cbranch_scc1 L_ct_nored
        s_mov_b32 s68, 1
        s_mul_i32 s69, s{sG}, 3
        s_add_u32 s69, s69, s6               ; r
        """)
        self.red_consts()
        a.label('L_ct_nored')
        self.hop1_prep()
        self.hop1_stats()
        if not self.wo_wait: self.lds_wait_cnt('L_wo_wp', LCNT2, 8, 46)
        self.hop1(WB)
        a(f"""
        s_cmp_eq_u32 s68, 1
        s_cbranch_scc1 L_ct_red_go
        """)
        self.end_wave()
        a.label('L_ct_red_go')
        self.reducer()
        a.label('L_ct_ffn2')
        a('s_sub_u32 s70, s70, 2')
        a.label('L_ct_ffn')
        W1B, W2B = 64, 100
        a(f"""
        s_mul_i32 s{sF}, s{sG}, 9
        s_add_u32 s{sF}, s{sF}, s70
        s_and_b32 s6, s{sF}, 1
        s_mul_i32 s6, s6, 288
        s_mul_i32 s7, s{sW}, 72
        s_add_u32 s6, s6, s7
        s_mul_i32 s6, s6, 9216
        s_lshr_b32 s7, s{sF}, 1
        s_lshl_b32 s7, s7, 7
        s_add_u32 s6, s6, s7
        """)
        self.srd(SRD_A, PW1, 6, f'{576*9216}')
        a(f"""
        s_sub_u32 s{SRD_A+2}, s{SRD_A+2}, s6
        v_lshrrev_b32 v8, 3, v1
        v_mul_u32_u24 v8, 9216, v8
        v_and_b32 v9, 7, v1
        v_lshl_add_u32 v44, v9, 4, v8        ; v44 = w1 voffset
        """)
        self.w2_loads(W2B)
        self.chain_consts()
        vm = VM(a)
        lst = [('w1', i) for i in range(9)] + [('w2', n) for n in range(8)]
        if self.ffn_mode == 1:
            self.lds_wait_cnt('L_ffn_wv', LCNT_V, 8, 46)
            for _ in range(self.sl_ffn // 100): a('s_sleep 100')
            if self.sl_ffn % 100: a(f's_sleep {self.sl_ffn % 100}')
            self.stamp(10)
        elif self.thr_ffn > 0: self.lds_wait_cnt('L_ffn_wv', LCNT_V, 8, 46)
        def sig_w():
            a(f"""
            v_mov_b32 v46, {LCNT_W}
            v_mov_b32 v47, 1
            s_mov_b64 exec, 1
            ds_add_u32 v46, v47
            s_mov_b64 exec, -1
            """)
        split = 9 + self.w2_pre if self.w2_late else 99
        for idx, (k, i) in enumerate(lst):
            if idx == split:
                sig_w()
                self.gemv1_prep()
                self.stamp(6)
                self.lds_wait_cnt('L_ffn_wh', LCNT_H2, 4, 46)
            if self.ffn_mode == 1:
                if idx >= self.dt_ffn: vm.wait(lst[idx - self.dt_ffn])
            elif idx == self.thr_ffn:
                self.lds_wait_cnt('L_ffn_wp', LCNT2, 8, 46)
                if self.sl_ffn: a(f's_sleep {self.sl_ffn}')
                self.stamp(10)
            if idx == 9: self.stamp(11)
            if k == 'w1':
                a(f's_mov_b32 s64, {73728*i}')
                vm.issue((k, i), f'buffer_load_dwordx4 {vr(W1B+4*i,4)}, v44, {sr(SRD_A,4)}, s64 offen{NT}')
            else:
                ro, kk = i // 2, i % 2
                a(f's_mov_b32 s64, {9216*ro}')
                vm.issue((k, i), f'buffer_load_dwordx4 {vr(W2B+16*kk+4*ro,4)}, v45, {sr(SRD_B,4)}, s64 offen offset:{512*kk}{NT}')
        a(f"""
        s_cmp_lg_u32 s{sW}, 0
        s_cbranch_scc1 L_w2_no3
        """)
        for ro in range(4):
            a(f's_mov_b32 s64, {9216*ro}')
            a(f'buffer_load_dwordx4 {vr(W2B+32+4*ro,4)}, v45, {sr(SRD_B,4)}, s64 offen offset:1024{NT}')
        a.label('L_w2_no3')
        if not self.w2_late: sig_w()
        if not self.w2_late:
            self.gemv1_prep()
            self.stamp(6)
        a('s_barrier')
        a('s_barrier')
        self.stamp(8)
        self.gemv1(W1B, 148, 8)
        self.stamp(9)
        self.gemv2(W2B, 64)
        self.stamp(13)
        self.end_wave()

    def stats_pub(self, tag, who):
        a = self.a
        a(f"""
        s_cmp_lg_u32 s{sW}, {who}
        s_cbranch_scc1 L_nostat{tag}
        v_bfe_u32 v12, v1, 3, 1
        v_lshlrev_b32 v12, 5, v12
        ds_read_b128 v[16:19], v12 offset:{LMX}
        ds_read_b128 v[20:23], v12 offset:{LMX+16}
        ds_read_b128 v[152:155], v12 offset:{LLS}
        ds_read_b128 v[156:159], v12 offset:{LLS+16}
        s_lshl_b32 s12, s{sSLOT}, 7
        s_add_u32 s12, s12, {WS_ST}
        v_lshrrev_b32 v12, 2, v12            ; head*8
        s_waitcnt lgkmcnt(0)
        v_max3_f32 v160, v16, v17, v18
        v_max3_f32 v161, v20, v21, v22
        v_max3_f32 v160, v160, v19, v23
        v_max_f32 v160, v160, v161
        """)
        for i in range(8): a(f'v_sub_f32 v{16+i}, v{16+i}, v160')
        for i in range(8): a(f'v_mul_f32 v{16+i}, s{sLOG2E}, v{16+i}')
        for i in range(8): a(f'v_exp_f32 v{16+i}, v{16+i}')
        a('v_mul_f32 v161, v16, v152')
        for i in range(1, 8): a(f'v_fmac_f32 v161, v{16+i}, v{152+i}')
        a(f"""
        s_mov_b64 exec, 0x101
        buffer_store_dwordx2 v[160:161], v12, {sr(SRD_WS,4)}, s12 offen sc1
        s_mov_b64 exec, -1
        L_nostat{tag}:
        """)

    def l2_prefetch(self, ptr, base_expr_lines, nbytes, total, tag, lanes_stride=128):
        a = self.a
        PF = self.pf_policy
        a(base_expr_lines)
        self.srd_plain(80, ptr, total)
        a(f'v_lshlrev_b32 v47, 7, v1')
        nl = nbytes // 128
        k = 0
        while nl > 0:
            n = min(nl, 64)
            if n < 64: self.exec_set((1 << n) - 1)
            a(f'buffer_load_dword v43, v47, s[80:83], s14 offen{PF}')
            if n < 64: self.exec_all()
            nl -= n; k += 1
            if nl > 0: a('s_add_u32 s14, s14, 8192')

    def pf_wo(self, tag):
        a = self.a
        if not self.pf1: return
        a(f'''
        s_cmp_lg_u32 s{sW}, {self.pf1_wave}
        s_cbranch_scc1 L_pfwo{tag}
        ''')
        self.l2_prefetch(PWO, f'''
        s_mul_i32 s14, s{sG}, {256*1152}
        s_mul_i32 s15, s{sS}, 18432
        s_add_u32 s14, s14, s15
        ''', 18432, 4096*1152, tag)
        a.label(f'L_pfwo{tag}')

    def pf_w2(self):
        a = self.a
        if not self.pf2: return
        self.l2_prefetch(PW2, f'''
        s_mul_i32 s14, s{sG}, {288*1152}
        s_lshl_b32 s15, s{sS}, 2
        s_add_u32 s15, s15, s{sW}
        s_mul_i32 s15, s15, {96*128}
        s_add_u32 s14, s14, s15
        ''', 96*128, 4608*1152, 'w2')

    def chain_consts(self):
        a = self.a
        B = 64
        a(f"""
        s_mul_i32 s7, s{sW}, {144*8}
        s_add_u32 s8, s7, {WS_MODP + 1152*8}
        v_lshlrev_b32 v46, 4, v1
        s_mov_b32 s{sCNT}, 0
        L_cc:
        """)
        for arr in range(3):
            for p in range(2):
                b = B + (arr * 2 + p) * 8
                a(f's_add_u32 s9, s8, {576*8*arr + MODP_P*p}')
                a(f'buffer_load_dwordx4 {vr(b,4)}, v46, {sr(SRD_WS,4)}, s9 offen sc1')
                a(f'v_mov_b32 v{b+4}, 0'); a(f'v_mov_b32 v{b+5}, s{sTAG}'); a(f'v_mov_b32 v{b+6}, 0'); a(f'v_mov_b32 v{b+7}, s{sTAG}')
        a('s_mov_b64 exec, 0xff')
        for arr in range(3):
            for p in range(2):
                b = B + (arr * 2 + p) * 8
                a(f's_add_u32 s9, s8, {576*8*arr + MODP_P*p}')
                a(f'buffer_load_dwordx4 {vr(b+4,4)}, v46, {sr(SRD_WS,4)}, s9 offen offset:1024 sc1')
        a('s_mov_b64 exec, -1')
        a('s_waitcnt vmcnt(0)')
        self.tag_check(list(range(B + 1, B + 48, 2)), 112, 113)
        self.poll_end_nz('L_cc', 112, sleep=4)
        for arr in range(3):
            b0 = B + arr * 16; b1 = b0 + 8
            for j, off in enumerate((0, 2, 4, 6)):
                a(f'v_add_f32 v{112+4*arr+j}, v{b0+off}, v{b1+off}')
        allr = list(range(112, 124))
        T = list(range(124, 130))
        self.rnd(allr, T)
        for j in range(4): a(f'v_add_f32 v{120+j}, 1.0, v{120+j}')
        self.rnd(list(range(120, 124)), T)
        a(f"""
        s_mul_i32 s7, s{sW}, 576
        v_lshlrev_b32 v46, 3, v1
        v_add_u32 v46, s7, v46
        """)
        for arr in range(3):
            a(f'ds_write_b64 v46, {vr(112+4*arr,2)} offset:{LCON + 2304*arr}')
        a('s_mov_b64 exec, 0xff')
        for arr in range(3):
            a(f'ds_write_b64 v46, {vr(114+4*arr,2)} offset:{LCON + 2304*arr + 512}')
        a(f"""
        v_mov_b32 v46, {LCNT_C}
        v_mov_b32 v47, 1
        s_mov_b64 exec, 1
        ds_add_u32 v46, v47
        s_mov_b64 exec, -1
        """)

    def stream_consts(self):
        a = self.a
        self.srd_plain(SRD_B, PX, 1152)
        a(f"""
        s_mul_i32 s6, s{sW}, 288
        v_lshlrev_b32 v8, 3, v1
        buffer_load_dwordx2 v[40:41], v8, {sr(SRD_B,4)}, s6 offen
        """)
    def stream_consts_finish(self):
        a = self.a
        self.lds_wait_cnt('L_sc_w', LCNT_C, 4, 14)
        a(f"""
        s_mul_i32 s6, s{sW}, 576
        v_lshlrev_b32 v8, 4, v1
        v_add_u32 v8, s6, v8
        ds_read_b128 v[24:27], v8 offset:{LCON}
        ds_read_b128 v[28:31], v8 offset:{LCON+2304}
        ds_read_b128 v[32:35], v8 offset:{LCON+4608}
        s_waitcnt vmcnt(0) lgkmcnt(0)
        """)
        self.unpack(40, 36, 37); self.unpack(41, 38, 39)

    def hop1_prep(self):
        a = self.a
        a(f"""
        v_lshrrev_b32 v8, 4, v1
        v_lshlrev_b32 v9, 10, v8             ; pp*1024
        v_and_b32 v10, 15, v1
        v_lshl_add_u32 v9, v10, 4, v9
        v_lshlrev_b32 v8, 7, v8
        s_lshl_b32 s6, s{sG}, 14
        s_lshl_b32 s7, s{sW}, 8
        s_add_u32 s6, s6, s7
        s_add_u32 s6, s6, {WS_OP}
        s_lshl_b32 s8, s{sG}, 11
        s_lshr_b32 s7, s{sW}, 1
        s_lshl_b32 s7, s7, 3
        s_add_u32 s8, s8, s7
        s_add_u32 s8, s8, {WS_ST}
        s_add_u32 s9, s6, 4096
        s_add_u32 s10, s6, 8192
        s_add_u32 s11, s6, 12288
        s_lshl_b32 s7, s{sW}, 8
        v_lshlrev_b32 v10, 4, v10
        v_add_u32 v10, s7, v10
        v_lshrrev_b32 v11, 3, v1
        v_lshlrev_b32 v11, 2, v11
        v_add_u32 v11, s7, v11
        s_mul_i32 s73, s{sG}, 2304
        s_lshl_b32 s7, s71, 8
        s_add_u32 s73, s73, s7
        s_add_u32 s73, s73, {WS_AP}
        """)
        self.set_addr(2, 40)
        a(f"""
        s_lshl_b32 s7, s{sW}, 9
        v_add_u32 v2, s7, v2
        v_lshlrev_b32 v41, 4, v1             ; v41 = l*16
        """)

    def hop1_stats(self):
        a = self.a
        self.poll_begin('L_h1s')
        for i in range(4):
            a(f'buffer_load_dwordx2 {vr(128+2*i,2)}, v8, {sr(SRD_WS,4)}, s8 offen offset:{512*i} sc1')
        a('s_waitcnt vmcnt(0)')
        self.sent_check(list(range(128, 136)), 136, 137)
        self._poll_tail('L_h1s', 4)
        a(f"""
        v_max3_f32 v136, v128, v130, v132
        v_max_f32 v136, v136, v134
        """)
        self.xgroup('v_max_f32', [136], [137])
        for i in range(4): a(f'v_sub_f32 v{144+i}, v{128+2*i}, v136')
        for i in range(4): a(f'v_mul_f32 v{144+i}, s{sLOG2E}, v{144+i}')
        for i in range(4): a(f'v_exp_f32 v{144+i}, v{144+i}')
        a('v_mul_f32 v164, v144, v129')
        for i in range(1, 4): a(f'v_fmac_f32 v164, v{144+i}, v{129+2*i}')
        self.xgroup('v_add_f32', [164], [137])
        a('v_rcp_f32 v164, v164')
        for i in range(4): a(f'v_mul_f32 v{144+i}, v{144+i}, v164')

    def hop1(self, WB):
        a = self.a
        SA, SB_ = 128, 148
        def issue(base):
            for i, so in enumerate(('s6', 's9', 's10', 's11')):
                a(f'buffer_load_dwordx4 {vr(base+4*i,4)}, v9, {sr(SRD_WS,4)}, {so} offen sc1')
        def combine(base):
            for r in range(4): a(f'v_mul_f32 v{52+r}, v144, v{base+r}')
            for i in range(1, 4):
                for r in range(4): a(f'v_fmac_f32 v{52+r}, v{144+i}, v{base+4*i+r}')
        issue(SA)
        a(f's_sleep {self.sl_stag}')
        a(f's_mov_b32 s{sCNT}, 0')
        a.label('L_h1')
        issue(SB_)
        a('s_waitcnt vmcnt(4)')
        self.sent_check(list(range(SA, SA + 16)), 56, 57)
        a('s_cbranch_vccz L_h1_useA')
        issue(SA)
        a('s_waitcnt vmcnt(4)')
        self.sent_check(list(range(SB_, SB_ + 16)), 56, 57)
        a(f"""
        s_cbranch_vccz L_h1_useB
        s_add_u32 s{sCNT}, s{sCNT}, 1
        s_cmp_lt_u32 s{sCNT}, {MAXSPIN}
        s_cbranch_scc1 L_h1
        L_h1_useB:
        """)
        combine(SB_)
        a('s_branch L_h1_done')
        a.label('L_h1_useA')
        combine(SA)
        a.label('L_h1_done')
        if self.diag: a(f'v_writelane_b32 v3, s{sCNT}, 13')
        self.xgroup('v_add_f32', [52, 53, 54, 55], [56, 57, 58, 59])
        self.stamp(8)
        for r in range(4): a(f'v_cvt_pk_bf16_f32 v{52+r}, v{52+r}, v{52+r}')
        a(f"""
        s_mov_b64 exec, 0xffff
        ds_write_b128 v10, v[52:55] offset:{LOXX}
        s_mov_b64 exec, -1
        s_waitcnt lgkmcnt(0)
        """)
        for i in range(8): a(f'ds_read_b32 v{44+i}, v11 offset:{LOXX + 32*i}')
        def mf(two):
            Areg = lambda i: (12, 16, 20)[i % 3]
            a('s_waitcnt lgkmcnt(7)')
            self.abuild(Areg(0), 44)
            for i in range(8):
                if i < 7:
                    a(f's_waitcnt lgkmcnt({6-i})')
                    self.abuild(Areg(i + 1), 44 + i + 1)
                c = '0' if i == 0 else 'v[52:55]'
                a(f'v_mfma_f32_16x16x32_bf16 v[52:55], {vr(Areg(i),4)}, {vr(WB+4*i,4)}, {c}')
                if two:
                    c = '0' if i == 0 else 'v[56:59]'
                    a(f'v_mfma_f32_16x16x32_bf16 v[56:59], {vr(Areg(i),4)}, {vr(WB+32+4*i,4)}, {c}')
        a(f"""
        s_cmp_eq_u32 s72, 1
        s_cbranch_scc1 L_h1_one
        """)
        mf(True)
        a('s_branch L_h1_mm')
        a.label('L_h1_one')
        mf(False)
        a.label('L_h1_mm')
        a('s_nop 7')
        self.setsum2([52, 56], [60, 62])
        self.exec_set(self.SETMASK)
        a(f'ds_write_b64 v2, v[60:61] offset:{LAP}')
        a(f'ds_write_b64 v2, v[62:63] offset:{LAP+256}')
        self.exec_all()
        a(f"""
        s_waitcnt lgkmcnt(0)
        s_barrier
        s_cmp_lg_u32 s{sW}, 0
        s_cbranch_scc1 L_h1_nopub
        s_mov_b64 exec, 0xffff
        s_cmp_eq_u32 s72, 1
        s_cbranch_scc1 L_h1_p1
        s_mov_b32 exec_lo, -1
        L_h1_p1:
        ds_read_b128 v[12:15], v41 offset:{LAP}
        ds_read_b128 v[16:19], v41 offset:{LAP+512}
        ds_read_b128 v[20:23], v41 offset:{LAP+1024}
        ds_read_b128 v[44:47], v41 offset:{LAP+1536}
        s_waitcnt lgkmcnt(0)
        """)
        for r in range(4):
            a(f'v_add_f32 v{12+r}, v{12+r}, v{16+r}')
            a(f'v_add_f32 v{20+r}, v{20+r}, v{44+r}')
        for r in range(4): a(f'v_add_f32 v{12+r}, v{12+r}, v{20+r}')
        a(f"""
        buffer_store_dwordx4 v[12:15], v41, {sr(SRD_WS,4)}, s73 offen sc1
        s_mov_b64 exec, -1
        L_h1_nopub:
        """)
        self.stamp(9)

    def hop2(self):
        a = self.a
        GB = 104
        a(f"""
        v_lshlrev_b32 v9, 4, v1
        s_mul_i32 s7, s{sW}, 576
        v_add_u32 v8, s7, v9
        s_add_u32 s7, s7, {WS_AP}
        s_lshl_b32 s6, s{sW}, 4
        v_mov_b32 v10, s6
        v_mov_b32 v11, 0
        """)
        self.lds_wait_cnt('L_h2_ww', LCNT_W, 4, 14)
        if self.sl_h2: a(f's_sleep {self.sl_h2}')
        self.exec_set((1 << 36) - 1)
        HA, HB = 40, 104
        def hissue(base):
            a('s_mov_b32 s6, s7')
            for p in range(16):
                a(f'buffer_load_dwordx4 {vr(base+4*p,4)}, v9, {sr(SRD_WS,4)}, s6 offen sc1')
                if p < 15: a('s_add_u32 s6, s6, 2304')
        def hsum(base):
            for st in (8, 4, 2):
                for p in range(st):
                    for r in range(4): a(f'v_add_f32 v{base+4*p+r}, v{base+4*p+r}, v{base+4*(p+st)+r}')
            for r in range(4): a(f'v_add_f32 v{20+r}, v{base+r}, v{base+4+r}')
            a(f"""
            v_add_f32 v12, v20, v21
            v_add_f32 v13, v22, v23
            v_add_f32 v12, v12, v13
            v_cmp_u_f32 vcc, v12, v12
            """)
        if self.h2_db:
            hissue(HA)
            a(f's_sleep {self.sl_stag}')
            a(f's_mov_b32 s{sCNT}, 0')
            a.label('L_h2')
            hissue(HB)
            a('s_waitcnt vmcnt(16)')
            hsum(HA)
            a('s_cbranch_vccz L_h2_done')
            hissue(HA)
            a('s_waitcnt vmcnt(16)')
            hsum(HB)
            a(f"""
            s_cbranch_vccz L_h2_done
            s_add_u32 s{sCNT}, s{sCNT}, 1
            s_cmp_lt_u32 s{sCNT}, {MAXSPIN}
            s_cbranch_scc1 L_h2
            L_h2_done:
            """)
        else:
            a(f's_mov_b32 s{sCNT}, 0')
            a.label('L_h2')
            hissue(HA)
            a('s_waitcnt vmcnt(0)')
            hsum(HA)
            self._poll_tail('L_h2', self.sl_h2p)
        if self.w2_late:
            a(f"""
            v_mov_b32 v14, {LCNT_H2}
            v_mov_b32 v15, 1
            s_mov_b64 exec, 1
            ds_add_u32 v14, v15
            """)
            self.exec_set((1 << 36) - 1)
        self.stamp(10)
        GB = 20
        av = [20, 21, 22, 23]
        T = [12, 13]
        self.rnd(av, T)
        for r in range(4): a(f'v_mul_f32 v{GB+r}, v{GB+r}, v{24+r}')
        self.rnd(av, T)
        for r in range(4): a(f'v_add_f32 v{GB+r}, v{GB+r}, v{36+r}')
        self.rnd(av, T)
        a(f'v_readfirstlane_b32 s64, v{GB}')
        self.exec_all()
        a('v_mov_b32 v16, 0'); a('v_mov_b32 v17, 0')
        self.exec_set((1 << 36) - 1)
        for r in range(4): a(f'v_subrev_f32 v{12+r}, s64, v{GB+r}')
        a('v_add_f32 v16, v12, v13'); a('v_mul_f32 v17, v12, v12')
        a('v_add_f32 v18, v14, v15'); a('v_fmac_f32 v17, v13, v13')
        a('v_add_f32 v16, v16, v18'); a('v_fmac_f32 v17, v14, v14')
        a('v_fmac_f32 v17, v15, v15')
        self.exec_all()
        self.wave_red('v_add_f32', [16, 17], [18, 19])
        a(f"""
        v_mov_b32 v18, v17
        v_mov_b32 v17, v16
        v_mov_b32 v16, s64
        v_mov_b32 v19, 0
        s_mov_b64 exec, 1
        ds_write_b128 v10, v[16:19] offset:{LST2}
        s_mov_b64 exec, -1
        s_waitcnt lgkmcnt(0)
        s_barrier                            ; Bh1
        s_waitcnt vmcnt(0)
        ds_read_b128 v[116:119], v11 offset:{LST2}
        ds_read_b128 v[120:123], v11 offset:{LST2+16}
        ds_read_b128 v[124:127], v11 offset:{LST2+32}
        ds_read_b128 v[128:131], v11 offset:{LST2+48}
        s_waitcnt lgkmcnt(0)
        v_add_f32 v16, v116, v120
        v_add_f32 v17, v124, v128
        v_add_f32 v18, v117, v121
        v_add_f32 v19, v125, v129
        v_add_f32 v16, v16, v17
        v_add_f32 v18, v18, v19
        v_mul_f32 v16, 0x43100000, v16       ; *144
        v_add_f32 v16, v16, v18
        v_mul_f32 v16, {f2u(1.0/576):#x}, v16   ; mean (f32)
        """)
        for w in range(4): a(f'v_sub_f32 v{116+4*w}, v{116+4*w}, v16')
        for w in range(4): a(f'v_add_f32 v{117+4*w}, v{117+4*w}, v{117+4*w}')
        for w in range(4): a(f'v_fmac_f32 v{117+4*w}, 0x43100000, v{116+4*w}')
        for w in range(4): a(f'v_fmac_f32 v{118+4*w}, v{116+4*w}, v{117+4*w}')
        a(f"""
        v_add_f32 v17, v118, v122
        v_add_f32 v18, v126, v130
        v_add_f32 v17, v17, v18
        v_mul_f32 v17, {f2u(1.0/576):#x}, v17
        """)
        self.ln_finish(16, 17, 18)
        self.ln_apply(av, mean=16, sd=17, tmps=T)
        for r in range(4): a(f'v_mul_f32 v{GB+r}, v{GB+r}, v{32+r}')
        self.rnd(av, T)
        for r in range(4): a(f'v_add_f32 v{GB+r}, v{GB+r}, v{28+r}')
        for r in range(4): a(f'v_cvt_pk_bf16_f32 v{GB+r}, v{GB+r}, v{GB+r}')
        self.exec_set((1 << 36) - 1)
        a(f'ds_write_b128 v8, {vr(GB,4)} offset:{LH2}')
        self.exec_all()
        a('s_waitcnt lgkmcnt(0)')
        self.stamp(11)
        a('s_barrier')
        self.end_wave()

    def reducer(self):
        a = self.a
        GB = 96
        a(f"""
        v_lshrrev_b32 v8, 2, v1
        v_mul_u32_u24 v8, 2304, v8
        v_and_b32 v9, 3, v1
        v_lshl_add_u32 v8, v9, 4, v8
        s_lshl_b32 s7, s69, 6
        s_add_u32 s6, s7, {WS_AP}
        """)
        self.srd_plain(SRD_A, POUT, 1152)
        self.poll_begin('L_r1')
        a(f"""
        buffer_load_dwordx4 v[12:15], v8, {sr(SRD_WS,4)}, s6 offen sc1
        s_waitcnt vmcnt(0)
        """)
        av = [12, 13, 14, 15]
        self.row_red('v_add_f32', av, rors=(8, 4))
        self.xgroup('v_add_f32', av, [16, 17, 18, 19])
        a(f"""
        v_add_f32 v16, v12, v13
        v_add_f32 v17, v14, v15
        v_add_f32 v16, v16, v17
        """)
        self.poll_end('L_r1', 16, sleep=2)
        self.rnd(av, [16, 17])
        for r in range(4): a(f'v_mul_f32 v{12+r}, v{12+r}, v{24+r}')
        self.rnd(av, [16, 17])
        for r in range(4): a(f'v_add_f32 v{32+r}, v{12+r}, v{36+r}')
        self.rnd([32, 33, 34, 35], [16, 17])
        a(f"""
        v_lshlrev_b32 v10, 3, v1
        s_lshl_b32 s10, s69, 5
        v_mov_b32 v14, s{sTAG}
        v_mov_b32 v15, {WS_EPOCH}
        """)
        self.stamp(10)
        a(f's_add_u32 s7, s7, {WS_YP}')
        a(f's_sleep {self.sl_h2}')
        RA, RB = 96, 132
        def rissue(base):
            a('s_mov_b32 s6, s7')
            for i in range(9):
                a(f'buffer_load_dwordx4 {vr(base+4*i,4)}, v8, {sr(SRD_WS,4)}, s6 offen sc1')
                if i < 8: a(f's_add_u32 s6, s6, {16*2304}')
        def rsum(base):
            for (x, y) in ((0, 1), (2, 3), (4, 5), (6, 7), (0, 2), (4, 6), (0, 8)):
                for r in range(4): a(f'v_add_f32 v{base+4*x+r}, v{base+4*x+r}, v{base+4*y+r}')
            for r in range(4): a(f'v_add_f32 v{44+r}, v{base+r}, v{base+16+r}')
        rissue(RA)
        a(f's_sleep {self.sl_stag}')
        a(f's_mov_b32 s{sCNT}, 0')
        a.label('L_r2')
        rissue(RB)
        a('s_waitcnt vmcnt(9)')
        self.sent_check(list(range(RA, RA + 36)), 16, 17)
        a('s_cbranch_vccz L_r2_useA')
        rissue(RA)
        a('s_waitcnt vmcnt(9)')
        self.sent_check(list(range(RB, RB + 36)), 16, 17)
        a(f"""
        s_cbranch_vccz L_r2_useB
        s_add_u32 s{sCNT}, s{sCNT}, 1
        s_cmp_lt_u32 s{sCNT}, {MAXSPIN}
        s_cbranch_scc1 L_r2
        L_r2_useB:
        """)
        rsum(RB)
        a('s_branch L_r2_done')
        a.label('L_r2_useA')
        rsum(RA)
        a.label('L_r2_done')
        GB = 44
        yv = [GB, GB + 1, GB + 2, GB + 3]
        self.row_red('v_add_f32', yv, rors=(8, 4))
        self.xgroup('v_add_f32', yv, [16, 17, 18, 19])
        self.stamp(11)
        self.rnd(yv, [16, 17])
        for r in range(4): a(f'v_mul_f32 v{GB+r}, v{GB+r}, v{28+r}')
        self.rnd(yv, [16, 17])
        for r in range(4): a(f'v_add_f32 v{GB+r}, v{GB+r}, v{32+r}')
        a(f"""
        v_cvt_pk_bf16_f32 v12, v{GB}, v{GB+1}
        v_cvt_pk_bf16_f32 v13, v{GB+2}, v{GB+3}
        s_mov_b64 exec, 0xf
        buffer_store_dwordx2 v[12:13], v10, {sr(SRD_A,4)}, s10 offen
        s_mov_b64 exec, 1
        s_cmp_lg_u32 s69, 0
        s_cbranch_scc1 L_r_noepoch
        buffer_store_dword v14, v15, {sr(SRD_WS,4)}, 0 offen sc1
        L_r_noepoch:
        s_mov_b64 exec, -1
        """)
        self.end_wave()

    def build(self):
        self.prologue()
        self.stream()
        self.chain()
        self.a.label('L_exit')
        self.a('s_endpgm')
        self.a.label('L_code_end')
        body = self.a.text()
        return wrap(body, 256, 768, LDS_BYTES, 168)

if __name__ == '__main__':
    import argparse
    ap = argparse.ArgumentParser()
    ap.add_argument('-o', default='k.s'); ap.add_argument('--diag', action='store_true')
    ap.add_argument('--depth', type=int, default=3)
    for n, d in (('sl_stream', 16), ('sl_p1', 4), ('sl_q0', 32), ('sl_m0', 8), ('sl_h2', 16)):
        ap.add_argument('--' + n, type=int, default=d)
    ap.add_argument('--nopf', action='store_true')
    ap.add_argument('--nb1', type=int, default=16); ap.add_argument('--extra', type=int, default=0); ap.add_argument('--dk', type=int, default=3); ap.add_argument('--early_wo', type=int, default=4); ap.add_argument('--early_w2', type=int, default=4); ap.add_argument('--nohint', action='store_true')
    for n, d in (('dt_wo', 2), ('thr_wo', 8), ('dt_ffn', 2), ('thr_ffn', 6)): ap.add_argument('--' + n, type=int, default=d)
    ap.add_argument('--w2_first', action='store_true'); ap.add_argument('--pf1', action='store_true'); ap.add_argument('--pf2', action='store_true'); ap.add_argument('--pf_nont', action='store_true'); ap.add_argument('--sl_ffn', type=int, default=0); ap.add_argument('--early2', action='store_true'); ap.add_argument('--sl_q1', type=int, default=0); ap.add_argument('--cks', default='4,7,10,13'); ap.add_argument('--wo_wait', action='store_true'); ap.add_argument('--wo_first', action='store_true'); ap.add_argument('--tk', type=int, default=8); ap.add_argument('--sl_stag', type=int, default=4); ap.add_argument('--sl_hint', type=int, default=8)
    args = ap.parse_args()
    g = Gen(depth=args.depth, diag=args.diag, sl_stream=args.sl_stream, sl_p1=args.sl_p1, sl_q0=args.sl_q0, sl_m0=args.sl_m0, sl_h2=args.sl_h2, prefetch_code=not args.nopf, nb1=args.nb1, extra=args.extra, sl_hint=args.sl_hint, dk=args.dk, early_wo=args.early_wo, early_w2=args.early_w2, hint=not args.nohint, dt_wo=args.dt_wo, thr_wo=args.thr_wo, dt_ffn=args.dt_ffn, thr_ffn=args.thr_ffn, w2_first=args.w2_first, pf1=args.pf1, pf2=args.pf2, pf_nt=not args.pf_nont, sl_ffn=args.sl_ffn, early2=args.early2, sl_q1=args.sl_q1, cks=tuple(int(x) for x in args.cks.split(',')), wo_wait=args.wo_wait, ffn_first=not args.wo_first, tk=args.tk, sl_stag=args.sl_stag)
    s = g.build()
    open(args.o, 'w').write(s)
    print('hazard pads inserted:', g.a.ninsert, 'lines', s.count('\n'))
```

```python
import sys, struct
from asmgen import *

WS_EPOCH = 0x0
WS_FLAGS = 0x1000
WS_MODP = 0x2000
MODP_P = 3456 * 8
WS_QP = 0x10000
QP_P = 4096 * 8
WS_OP = 0x20000
WS_ST = 0x60000
WS_AP = 0x70000
WS_YP = 0x80000
WS_XG = 0x7E800
WS_RC = 0x7F000
WS_UX = 0x7A000
WS_DIAG = 0x800000
WS_SRD_SIZE = 0x1000000
LQ = 0x0000; LMX = 0x0200; LLS = 0x0240; LST2 = 0x0280; LF_XX = 0x02C0; LF_Q = 0x02C4; LCNT = 0x02C8; LCNT2 = 0x02CC; LCNT_V = 0x02D0; LROLE = 0x02D4; LCNT_T = 0x02D8; LCNT_Q = 0x02DC; LCNT_W = 0x02E0; LCNT_C = 0x02E4; LFAST = 0x02E8; LCNT_H2 = 0x02EC
LH2 = 0x0300
LUS = 0x1000
LUP = 0x0C00
LAP = 0x1100
LXXT = 0x1700; LOXX = 0x1C00; LOP = 0x2000
LCON = 0x4000
LOXX2 = 0x6000
LDS_BYTES = 0x6800
sB = 2; sW = 3; sG = 4; sS = 5
PX, PK, PV, PWQ, PWO, PW1, PW2, PC, PWM, POUT, PDBG, PWS = 16, 18, 20, 22, 24, 28, 30, 32, 34, 36, 38, 40
sTAG = 42; sCNT = 43
SRD_WS = 44; SRD_A = 48; SRD_B = 52
sSCALE = 56; sLOG2E = 57; sF = 58; sSLOT = 59
SCALE = 0x3DB504F3
LOG2E = 0x3FB8AA3B
MAXSPIN = 200000
NT = ' nt'
ALL = (1 << 64) - 1

def f2u(x):
    return struct.unpack('<I', struct.pack('<f', x))[0]

class VM:
    def __init__(self, a):
        self.a = a; self.q = []; self.done = 0
    def issue(self, tag, text):
        self.a(text); self.q.append(tag)
    def wait(self, tag):
        i = self.q.index(tag)
        if i < self.done: return
        n = len(self.q) - 1 - i
        self.a(f's_waitcnt vmcnt({min(n, 63)})')
        self.done = i + 1

class Gen:
    def __init__(self, depth=3, diag=False, prefetch_code=True, sl_stream=16, sl_p1=4, sl_q0=32, sl_m0=8, sl_h2=16, nb1=16, extra=0, sl_hint=8, dk=3, early_wo=4, early_w2=4, hint=True, dt_wo=2, thr_wo=8, dt_ffn=2, thr_ffn=6, w2_first=False, pf1=False, pf2=False, pf_nt=True, pf1_wave=3, sl_ffn=0, early2=False, sl_q1=0, cks=(4, 7, 10, 13), wo_wait=False, ffn_first=True, tk=8, sl_stag=4):
        self.a = Asm(); self.depth = depth; self.diag = diag
        self.prefetch_code = prefetch_code; self.nb1 = nb1; self.extra = extra; self.sl_hint = sl_hint; self.dk = dk; self.early_wo = early_wo; self.early_w2 = early_w2; self.hint = hint; self.dt_wo = dt_wo; self.thr_wo = thr_wo; self.dt_ffn = dt_ffn; self.thr_ffn = thr_ffn; self.w2_first = w2_first; self.pf1 = pf1; self.pf2 = pf2; self.pf_policy = ' nt' if pf_nt else ''; self.pf1_wave = pf1_wave; self.sl_ffn = sl_ffn; self.early2 = early2; self.sl_q1 = sl_q1; self.cks = cks; self.wo_wait = wo_wait; self.ffn_first = ffn_first; self.tk = tk; self.sl_stag = sl_stag
        self.sl_stream = sl_stream; self.sl_p1 = sl_p1; self.sl_q0 = sl_q0; self.sl_m0 = sl_m0; self.sl_h2 = sl_h2

    def stamp(self, idx):
        if not self.diag: return
        self.a(f'''
        s_memrealtime s[92:93]
        s_waitcnt lgkmcnt(0)
        v_writelane_b32 v3, s92, {idx}
        ''')
    def exec_set(self, mask):
        a = self.a
        lo = mask & 0xffffffff; hi = mask >> 32
        if mask == ALL: a('s_mov_b64 exec, -1')
        elif hi == 0 and lo <= 0x7fffffff and False: a(f's_mov_b64 exec, {lo:#x}')
        else:
            a(f's_mov_b32 exec_lo, {lo:#x}'); a(f's_mov_b32 exec_hi, {hi:#x}')
    def exec_all(self): self.a('s_mov_b64 exec, -1')
    def rnd(self, regs, tmps):
        a = self.a
        regs = list(regs)
        if isinstance(tmps, int): tmps = [tmps]
        pairs = [(regs[i], regs[i + 1] if i + 1 < len(regs) else None) for i in range(0, len(regs), 2)]
        for c in range(0, len(pairs), len(tmps)):
            grp = pairs[c:c + len(tmps)]
            for (x, y), t in zip(grp, tmps): a(f'v_cvt_pk_bf16_f32 v{t}, v{x}, v{y if y is not None else x}')
            for (x, y), t in zip(grp, tmps):
                a(f'v_lshlrev_b32 v{x}, 16, v{t}')
                if y is not None: a(f'v_and_b32 v{y}, 0xffff0000, v{t}')
    def unpack(self, src, lo, hi):
        self.a(f'v_lshlrev_b32 v{lo}, 16, v{src}')
        self.a(f'v_and_b32 v{hi}, 0xffff0000, v{src}')
    def xstep(self, op, regs, tmps, st):
        a = self.a
        sw = 'v_permlane16_swap_b32' if st == 16 else 'v_permlane32_swap_b32'
        n = len(regs)
        for i, r in enumerate(regs): a(f'v_mov_b32 v{tmps[i]}, v{r}')
        for i, r in enumerate(regs): a(f'{sw} v{r}, v{tmps[i]}')
        for i, r in enumerate(regs): a(f'{op} v{r}, v{r}, v{tmps[i]}')
    def xgroup(self, op, regs, tmps, steps=(16, 32)):
        for st in steps: self.xstep(op, regs, tmps, st)
    def row_red(self, op, regs, rors=(8, 4, 2, 1)):
        a = self.a
        for n in rors:
            for r in regs:
                a(f'{op}_dpp v{r}, v{r}, v{r} row_ror:{n} row_mask:0xf bank_mask:0xf')
    def wave_red(self, op, regs, tmps):
        self.row_red(op, regs)
        self.xgroup(op, regs, tmps)
    def masks(self, m0, t):
        a = self.a
        a(f'''
        v_and_b32 v{t}, 1, v1
        v_lshlrev_b32 v{t}, 4, v{t}
        v_mov_b32 v{m0}, 0xffff
        v_lshlrev_b32 v{m0+3}, v{t}, v{m0}
        v_bfe_u32 v{t}, v1, 1, 2
        ''')
        for w in range(4):
            a(f'v_cmp_eq_u32 vcc, {w}, v{t}')
            a(f'v_cndmask_b32 v{m0+w}, 0, v{m0+3}, vcc')
    def abuild(self, dst, xx, m0=4):
        for w in range(4):
            self.a(f'v_and_b32 v{dst+w}, v{xx}, v{m0+w}')
    def poll_begin(self, name):
        self.a(f's_mov_b32 s{sCNT}, 0')
        self.a.label(name)
    def _poll_tail(self, name, sleep):
        a = self.a
        a(f'''
        s_cbranch_vccz {name}_done
        s_add_u32 s{sCNT}, s{sCNT}, 1
        s_cmp_lt_u32 s{sCNT}, {MAXSPIN}
        s_cbranch_scc0 {name}_done
        ''')
        if sleep: a(f's_sleep {sleep}')
        a(f'''
        s_branch {name}
        {name}_done:
        ''')
    def poll_end(self, name, chk, sleep=0):
        self.a(f'v_cmp_u_f32 vcc, v{chk}, v{chk}')
        self._poll_tail(name, sleep)
    def poll_end_nz(self, name, chk, sleep=1):
        self.a(f'v_cmp_ne_u32 vcc, 0, v{chk}')
        self._poll_tail(name, sleep)
    def sent_check(self, regs, t1, t2):
        a = self.a
        regs = list(regs)
        acc = [t1, t2]
        a(f'v_max3_u32 v{t1}, v{regs[0]}, v{regs[1]}, v{regs[2]}')
        a(f'v_max3_u32 v{t2}, v{regs[3]}, v{regs[4]}, v{regs[5]}')
        i = 6; k = 0
        while i < len(regs):
            r2 = regs[i + 1] if i + 1 < len(regs) else regs[i]
            a(f'v_max3_u32 v{acc[k]}, v{acc[k]}, v{regs[i]}, v{r2}')
            i += 2; k ^= 1
        a(f'v_max_u32 v{t1}, v{t1}, v{t2}')
        a(f'v_cmp_eq_u32 vcc, -1, v{t1}')
    def tag_check(self, tags, t1, t2):
        a = self.a
        tags = list(tags)
        a(f'v_min_u32 v{t1}, v{tags[0]}, v{tags[1]}')
        a(f'v_max_u32 v{t2}, v{tags[0]}, v{tags[1]}')
        for i in range(2, len(tags) - 1, 2):
            a(f'v_min3_u32 v{t1}, v{t1}, v{tags[i]}, v{tags[i+1]}')
            a(f'v_max3_u32 v{t2}, v{t2}, v{tags[i]}, v{tags[i+1]}')
        a(f'v_xor_b32 v{t1}, s{sTAG}, v{t1}')
        a(f'v_xor_b32 v{t2}, s{sTAG}, v{t2}')
        a(f'v_or_b32 v{t1}, v{t1}, v{t2}')
    def shint(self, name, base, offs, s0, sleep=None):
        a = self.a
        sleep = self.sl_hint if sleep is None else sleep
        a(f's_mov_b32 s{sCNT}, 0')
        a.label(name)
        for i, o in enumerate(offs): a(f's_load_dword s{s0+i}, {sr(base,2)}, {o} glc')
        a('s_waitcnt lgkmcnt(0)')
        a(f's_xor_b32 s6, s{s0}, s{sTAG}') if False else None
        a(f's_xor_b32 s15, s{s0}, s{sTAG}')
        for i in range(1, len(offs)):
            a(f's_xor_b32 s14, s{s0+i}, s{sTAG}')
            a(f's_or_b32 s15, s15, s14')
        a(f'''
        s_cmp_eq_u32 s15, 0
        s_cbranch_scc1 {name}_done
        s_add_u32 s{sCNT}, s{sCNT}, 1
        s_cmp_lt_u32 s{sCNT}, {MAXSPIN}
        s_cbranch_scc0 {name}_done
        s_sleep {sleep}
        s_branch {name}
        {name}_done:
        ''')
    def lds_wait_cnt(self, name, addr, n, vt):
        a = self.a
        a(f'''
        s_mov_b32 s{sCNT}, 0
        v_mov_b32 v{vt}, {addr}
        {name}:
        ds_read_b32 v{vt+1}, v{vt}
        s_add_u32 s{sCNT}, s{sCNT}, 1
        s_cmp_lt_u32 s{sCNT}, {MAXSPIN*8}
        s_cbranch_scc0 {name}_done
        s_waitcnt lgkmcnt(0)
        v_cmp_ne_u32 vcc, {n}, v{vt+1}
        s_cbranch_vccz {name}_done
        s_sleep 1
        s_branch {name}
        {name}_done:
        s_waitcnt lgkmcnt(0)
        ''')
    def lds_wait_flag(self, name, addr, vt):
        a = self.a
        a(f'''
        s_mov_b32 s{sCNT}, 0
        v_mov_b32 v{vt}, {addr}
        {name}:
        ds_read_b32 v{vt+1}, v{vt}
        s_waitcnt lgkmcnt(0)
        v_cmp_ne_u32 vcc, 1, v{vt+1}
        s_cbranch_vccz {name}_done
        s_add_u32 s{sCNT}, s{sCNT}, 1
        s_cmp_lt_u32 s{sCNT}, {MAXSPIN*8}
        s_cbranch_scc0 {name}_done
        s_sleep 1
        s_branch {name}
        {name}_done:
        ''')
    def flags_check(self, name, vo, vd, sleep=16):
        a = self.a
        a(f'''
        v_lshlrev_b32 v{vo}, 4, v1
        s_mov_b32 s{sCNT}, 0
        s_mov_b32 s6, {WS_FLAGS}
        {name}:
        buffer_load_dwordx4 {vr(vd,4)}, v{vo}, {sr(SRD_WS,4)}, s6 offen sc1
        s_waitcnt vmcnt(0)
        ''')
        self.tag_check([vd, vd + 1, vd + 2, vd + 3], vo + 1, vo + 2)
        self.a(f'v_cmp_ne_u32 vcc, 0, v{vo+1}')
        self._poll_tail(name, sleep)
    def srd(self, s, ptr, off_s, size):
        a = self.a
        a(f's_add_u32 s{s}, s{ptr}, s{off_s}')
        a(f's_addc_u32 s{s+1}, s{ptr+1}, 0')
        a(f's_mov_b32 s{s+2}, {size}')
        a(f's_mov_b32 s{s+3}, 0x20000')
    def srd_plain(self, s, ptr, size):
        a = self.a
        a(f's_mov_b32 s{s}, s{ptr}'); a(f's_mov_b32 s{s+1}, s{ptr+1}')
        a(f's_mov_b32 s{s+2}, {size}'); a(f's_mov_b32 s{s+3}, 0x20000')
    def setsum2(self, ds, outs):
        a = self.a
        for d in ds:
            a(f'v_permlane32_swap_b32 v{d}, v{d+2}')
            a(f'v_permlane32_swap_b32 v{d+1}, v{d+3}')
        for d, o in zip(ds, outs):
            a(f'v_add_f32_dpp v{o}, v{d+2}, v{d} row_ror:8 row_mask:0xf bank_mask:0xf')
            a(f'v_add_f32_dpp v{o+1}, v{d+3}, v{d+1} row_ror:8 row_mask:0xf bank_mask:0xf')
    def setsum4(self, ds, outs):
        a = self.a
        self.setsum2(ds, outs)
        for o in outs:
            a(f'v_mov_b32 v{o+2}, v{o}')
            a(f'v_mov_b32 v{o+3}, v{o+1}')
        for o in outs:
            a(f'v_permlane32_swap_b32 v{o}, v{o+2}')
            a(f'v_permlane32_swap_b32 v{o+1}, v{o+3}')
    def set_addr4(self, dst, t):
        a = self.a
        a(f'''
        v_and_b32 v{dst}, 7, v1
        v_lshlrev_b32 v{dst}, 5, v{dst}
        v_bfe_u32 v{t}, v1, 4, 1
        v_lshl_add_u32 v{dst}, v{t}, 4, v{dst}
        ''')
    def quad_gather(self, src, dst):
        for j in range(4):
            self.a(f'v_mov_b32_dpp v{dst+j}, v{src} quad_perm:[{j},{j},{j},{j}] row_mask:0xf bank_mask:0xf')
    def set_addr(self, dst, t):
        a = self.a
        a(f'''
        v_and_b32 v{dst}, 7, v1
        v_lshlrev_b32 v{dst}, 5, v{dst}
        v_bfe_u32 v{t}, v1, 4, 1
        v_lshl_add_u32 v{dst}, v{t}, 4, v{dst}
        v_lshrrev_b32 v{t}, 5, v1
        v_lshl_add_u32 v{dst}, v{t}, 3, v{dst}
        ''')
    SETMASK = 0x00FF00FF00FF00FF
    def silu(self, regs, tmps):
        a = self.a
        for r, t in zip(regs, tmps): a(f'v_mul_f32 v{t}, 0xbfb8aa3b, v{r}')
        for r, t in zip(regs, tmps): a(f'v_exp_f32 v{t}, v{t}')
        for r, t in zip(regs, tmps): a(f'v_add_f32 v{t}, 1.0, v{t}')
        for r, t in zip(regs, tmps): a(f'v_rcp_f32 v{t}, v{t}')
        for r, t in zip(regs, tmps): a(f'v_mul_f32 v{r}, v{r}, v{t}')
    def end_wave(self):
        a = self.a
        if self.diag:
            self.stamp(15)
            a(f'''
            s_memtime s[86:87]
            s_waitcnt lgkmcnt(0)
            s_sub_u32 s86, s86, s88
            v_writelane_b32 v3, s86, 14
            s_mov_b64 exec, -1
            s_lshl_b32 s6, s{sB}, 10
            s_lshl_b32 s7, s94, 6
            s_add_u32 s6, s6, s7
            s_add_u32 s6, s6, {WS_DIAG}
            v_lshlrev_b32 v2, 2, v1
            s_mov_b64 exec, 0xffff
            buffer_store_dword v3, v2, {sr(SRD_WS,4)}, s6 offen
            ''')
        a('s_endpgm')

    def prologue(self):
        a = self.a
        if self.diag: a('s_memrealtime s[90:91]'); a('s_memtime s[88:89]')
        a(f'''
        s_cmp_ge_u32 s{sB}, 256
        s_cbranch_scc1 L_exit
        s_load_dwordx16 s[16:31], s[0:1], 0
        s_load_dwordx8 s[32:39], s[0:1], 64
        s_load_dwordx2 s[40:41], s[0:1], 96
        ''')
        if self.prefetch_code:
            a(f'''
            s_getpc_b64 s[64:65]
            L_pc:
            s_sub_u32 s{SRD_A}, s64, (L_pc - {KNAME})
            s_subb_u32 s{SRD_A+1}, s65, 0
            s_mov_b32 s{SRD_A+2}, (L_code_end - {KNAME})
            s_mov_b32 s{SRD_A+3}, 0x20000
            v_lshlrev_b32 v2, 7, v0
            buffer_load_dword v167, v2, {sr(SRD_A,4)}, 0 offen
            ''')
        a(f'''
        v_lshrrev_b32 v2, 6, v0
        v_and_b32 v1, 63, v0
        v_readfirstlane_b32 s{sW}, v2
        s_and_b32 s6, s{sB}, 7
        s_mov_b32 s94, s{sW}
        s_lshr_b32 s7, s{sB}, 3
        s_lshl_b32 s{sG}, s6, 1
        s_lshr_b32 s8, s7, 4
        s_add_u32 s{sG}, s{sG}, s8
        s_and_b32 s{sS}, s7, 15
        s_lshl_b32 s{sSLOT}, s{sG}, 4
        s_add_u32 s{sSLOT}, s{sSLOT}, s{sS}
        s_mul_i32 s{sF}, s{sG}, 9
        s_add_u32 s{sF}, s{sF}, s{sS}
        s_sub_u32 s{sF}, s{sF}, 7
        s_mov_b32 s{sSCALE}, {SCALE:#x}
        s_mov_b32 s{sLOG2E}, {LOG2E:#x}
        v_mov_b32 v3, 0
        s_waitcnt lgkmcnt(0)
        s_mov_b32 s{SRD_WS}, s{PWS}
        s_mov_b32 s{SRD_WS+1}, s{PWS+1}
        s_mov_b32 s{SRD_WS+2}, {WS_SRD_SIZE}
        s_mov_b32 s{SRD_WS+3}, 0x20000
        ''')
        if self.diag: a('v_writelane_b32 v3, s90, 0')
        a(f'''
        s_cmp_ge_u32 s{sW}, 8
        s_cbranch_scc1 L_chain
        ''')

    def stream(self):
        a = self.a; DK = self.dk; DV = self.depth
        KB, VB = 40, 104
        SB = 20; PM = 28
        a(f"""
        s_load_dword s{sTAG}, {sr(PWS,2)}, {WS_EPOCH}
        s_lshl_b32 s6, s{sG}, 21
        s_lshl_b32 s7, s{sS}, 17
        s_add_u32 s6, s6, s7
        s_lshl_b32 s7, s{sW}, 14
        s_add_u32 s6, s6, s7
        """)
        self.srd(SRD_A, PK, 6, 16384)
        self.srd(SRD_B, PV, 6, 16384)
        a(f"""
        v_lshrrev_b32 v8, 4, v1
        v_bfe_u32 v9, v1, 2, 2
        v_and_b32 v10, 3, v1
        v_lshlrev_b32 v8, 6, v8
        v_lshlrev_b32 v9, 8, v9
        v_lshlrev_b32 v10, 4, v10
        v_add3_u32 v36, v8, v9, v10          ; K voffset
        v_lshlrev_b32 v37, 4, v1             ; V voffset
        s_mov_b32 s61, 4096
        s_mov_b32 s62, 8192
        s_mov_b32 s63, 12288
        s_mov_b32 s71, 0
        """)
        if self.prio47:
            a(f"""
            s_cmp_lt_u32 s{sW}, 4
            s_cbranch_scc1 L_noprio
            s_setprio {self.prio47}
            L_noprio:
            """)
        a('s_barrier')
        vm = VM(a)
        def ld(kind, t):
            so = '0' if t < 4 else f's{60 + t // 4}'
            off = (t % 4) * 1024
            if kind == 'K':
                return f'buffer_load_dwordx4 {vr(KB+4*t,4)}, v36, {sr(SRD_A,4)}, {so} offen offset:{off}{NT}'
            return f'buffer_load_dwordx4 {vr(VB+4*t,4)}, v37, {sr(SRD_B,4)}, {so} offen offset:{off}{NT}'
        seq = [('K', t) for t in range(16)] + [('V', t) for t in range(16)]
        if self.sl_stream: a(f's_sleep {self.sl_stream}')
        st = {'pos': 0}
        def pump(depth):
            pos = st['pos']
            if pos >= 32: return
            if pos >= depth: vm.wait(seq[pos - depth])
            vm.issue(seq[pos], ld(*seq[pos]))
            st['pos'] = pos + 1
            if self.prio47 and pos + 1 == self.prio_off: a('s_setprio 0')
        for _ in range(DK): pump(DK)
        self.stamp(1)
        self.masks(4, 8)
        a(f"""
        v_bfe_u32 v16, v1, 3, 1              ; head
        v_lshlrev_b32 v38, 5, v16
        s_lshl_b32 s6, s{sW}, 2
        v_add_u32 v39, s6, v38               ; head*32 + w*4
        v_lshlrev_b32 v16, 8, v16
        v_lshrrev_b32 v17, 4, v1
        v_lshlrev_b32 v17, 6, v17
        v_and_b32 v18, 3, v1
        v_lshlrev_b32 v18, 4, v18
        v_add3_u32 v0, v16, v17, v18
        v_lshrrev_b32 v8, 5, v1
        v_lshlrev_b32 v8, 12, v8
        v_and_b32 v9, 31, v1
        v_lshlrev_b32 v9, 2, v9
        s_lshl_b32 s6, s{sW}, 7
        v_add3_u32 v2, v8, v9, s6
        s_lshl_b32 s8, s{sSLOT}, 10
        s_add_u32 s8, s8, {WS_OP}
        s_mov_b32 s66, 0xf0f0f0f0
        s_mov_b32 s67, 0xf0f0f0f0
        """)
        while st['pos'] < 16: pump(DK)
        a(f"""
        v_lshrrev_b32 v8, 5, v1
        v_lshlrev_b32 v8, 9, v8
        v_and_b32 v9, 15, v1
        v_lshl_add_u32 v8, v9, 5, v8
        v_bfe_u32 v9, v1, 4, 1
        v_lshl_add_u32 v8, v9, 4, v8
        s_lshl_b32 s6, s{sW}, 10
        v_add_u32 v36, s6, v8
        s_waitcnt lgkmcnt(0)
        s_add_u32 s{sTAG}, s{sTAG}, 1
        """)
        def check(k, blocking):
            lab = f'L_ck{k}'
            a(f"""
            s_cmp_lg_u32 s71, 0
            s_cbranch_scc1 {lab}_skip
            v_mov_b32 v16, {LF_Q}
            s_mov_b32 s{sCNT}, 0
            {lab}:
            ds_read_b32 v17, v16
            s_waitcnt lgkmcnt(0)
            v_readfirstlane_b32 s72, v17
            s_cmp_lg_u32 s72, 0
            s_cbranch_scc1 {lab}_go
            """)
            if blocking:
                a(f"""
                s_add_u32 s{sCNT}, s{sCNT}, 1
                s_cmp_lt_u32 s{sCNT}, {MAXSPIN*8}
                s_cbranch_scc0 {lab}_go
                s_sleep 1
                s_branch {lab}
                """)
            else:
                a(f's_branch {lab}_skip')
            a.label(f'{lab}_go')
            i = vm.q.index(('K', 15)); n = len(vm.q) - 1 - i
            a(f's_waitcnt vmcnt({n})')
            a(f's_call_b64 s[74:75], L_qk')
            a.label(f'{lab}_skip')
        cks = sorted(self.cks)
        while st['pos'] < 32:
            pump(DV)
            vpos = st['pos'] - 16
            if vpos == self.tk:
                a(f"""
                v_mov_b32 v16, {LCNT_T}
                v_mov_b32 v17, 1
                s_mov_b64 exec, 1
                ds_add_u32 v16, v17
                s_mov_b64 exec, -1
                """)
            if vpos in cks and vpos < 16: check(vpos, False)
        a(f"""
        v_mov_b32 v16, {LCNT_V}
        v_mov_b32 v17, 1
        s_mov_b64 exec, 1
        ds_add_u32 v16, v17
        s_mov_b64 exec, -1
        """)
        self.stamp(2)
        check(16, True)
        self.stamp(5)
        def pv(t):
            p, s_ = t // 2, t % 2
            A = 16 if t % 2 == 0 else 8
            for w in range(4):
                srcr = SB + p if (w >> 1) == s_ else PM + p
                a(f'v_and_b32 v{A+w}, v{srcr}, v{4+w}')
            vm.wait(('V', t))
            c = '0' if t == 0 else 'v[12:15]'
            a(f'v_mfma_f32_16x16x32_bf16 v[12:15], {vr(A,4)}, {vr(VB+4*t,4)}, {c}')
        for t in range(16): pv(t)
        a(f"""
        s_lshr_b32 s6, s{sW}, 2
        s_lshl_b32 s6, s6, 5
        v_lshrrev_b32 v0, 5, v1
        v_lshlrev_b32 v0, 4, v0
        v_add_u32 v0, s6, v0
        v_xor_b32 v37, 16, v0
        v_mov_b32 v16, {LCNT}
        v_mov_b32 v17, 1
        ds_write_b128 v36, v[12:15] offset:{LOP}
        s_mov_b64 exec, 1
        ds_add_u32 v16, v17
        s_mov_b64 exec, -1
        """)
        self.stamp(6)
        a(f"""
        s_mov_b32 s{sCNT}, 0
        L_sbar:
        ds_read_b32 v17, v16
        s_add_u32 s{sCNT}, s{sCNT}, 1
        s_cmp_lt_u32 s{sCNT}, {MAXSPIN*8}
        s_cbranch_scc0 L_sbar_done
        s_waitcnt lgkmcnt(0)
        v_cmp_ne_u32 vcc, 8, v17
        s_cbranch_vccnz L_sbar
        L_sbar_done:
        s_waitcnt lgkmcnt(0)
        v_mov_b32 v21, {LFAST}
        ds_read_b32 v22, v21
        ds_read_b128 v[8:11], v0 offset:{LMX}
        ds_read_b128 v[12:15], v37 offset:{LMX}
        """)
        for i in range(4): a(f'ds_read_b32 v{16+i}, v2 offset:{LOP + 1024*i}')
        a(f"""
        s_waitcnt lgkmcnt(4)
        v_readfirstlane_b32 s70, v22
        v_max3_f32 v12, v12, v13, v14
        v_max3_f32 v20, v8, v9, v10
        v_max3_f32 v12, v12, v15, v11
        v_max_f32 v12, v12, v20
        """)
        for i in range(4): a(f'v_sub_f32 v{8+i}, v{8+i}, v12')
        for i in range(4): a(f'v_mul_f32 v{8+i}, s{sLOG2E}, v{8+i}')
        for i in range(4): a(f'v_exp_f32 v{8+i}, v{8+i}')
        a(f"""
        s_waitcnt lgkmcnt(0)
        v_mul_f32 v16, v16, v8
        v_mul_f32 v18, v18, v10
        v_fmac_f32 v16, v17, v9
        v_fmac_f32 v18, v19, v11
        v_add_f32 v16, v16, v18
        """)
        self.xstep('v_add_f32', [16], [17], 32)
        self.quad_gather(16, 20)
        a(f"""
        s_mov_b32 exec_lo, 0x11111111
        s_mov_b32 exec_hi, 0
        s_cmp_eq_u32 s70, 1
        s_cbranch_scc1 L_s_fast
        buffer_store_dwordx4 v[20:23], v2, {sr(SRD_WS,4)}, s8 offen sc1
        s_branch L_s_stored
        L_s_fast:
        buffer_store_dwordx4 v[20:23], v2, {sr(SRD_WS,4)}, s8 offen
        L_s_stored:
        s_mov_b64 exec, -1
        """)
        self.stamp(8)
        a(f"""
        v_mov_b32 v16, {LROLE}
        s_mov_b32 s{sCNT}, 0
        L_s_role:
        ds_read_b32 v17, v16
        s_add_u32 s{sCNT}, s{sCNT}, 1
        s_cmp_lt_u32 s{sCNT}, {MAXSPIN*8}
        s_cbranch_scc0 L_s_role_done
        s_waitcnt lgkmcnt(0)
        v_readfirstlane_b32 s70, v17
        s_cmp_eq_u32 s70, 0
        s_cbranch_scc1 L_s_role
        L_s_role_done:
        s_waitcnt lgkmcnt(0)
        s_mov_b32 s71, 0
        s_sub_u32 s6, s70, 10
        s_cmp_ge_u32 s6, 18
        s_cbranch_scc1 L_s_sig
        s_cmp_ge_u32 s{sW}, 4
        s_cbranch_scc1 L_s_sig
        s_mov_b32 s71, 1
        """)
        self.stream_consts()
        a(f"""
        L_s_sig:
        v_mov_b32 v16, {LCNT2}
        v_mov_b32 v17, 1
        s_mov_b64 exec, 1
        ds_add_u32 v16, v17
        s_mov_b64 exec, -1
        """)
        self.stamp(7)
        a(f"""
        s_cmp_eq_u32 s71, 1
        s_cbranch_scc1 L_s_ffn
        """)
        self.end_wave()
        a.label('L_s_ffn')
        self.stream_consts_finish()
        self.stamp(12)
        self.hop2()
        a.label('L_qk')
        self.stamp(3)
        a(f"""
        ds_read_b128 v[8:11], v0 offset:{LQ}
        s_waitcnt lgkmcnt(0)
        """)
        for r in range(4): a(f'v_cndmask_b32 v{12+r}, 0, v{8+r}, s[66:67]')
        for r in range(4): a(f'v_cndmask_b32 v{8+r}, v{8+r}, 0, s[66:67]')
        def dreg(p): return 16 if p == 0 else KB + 4 * (2 * p - 2)
        for p in range(8):
            a(f'v_mfma_f32_16x16x32_bf16 {vr(dreg(p),4)}, {vr(KB+8*p,4)}, v[8:11], 0')
            a(f'v_mfma_f32_16x16x32_bf16 {vr(dreg(p),4)}, {vr(KB+8*p+4,4)}, v[12:15], {vr(dreg(p),4)}')
        for p0 in range(0, 8, 4):
            for j, pat in enumerate(('[0,0,0,0]', '[1,1,1,1]', '[2,2,2,2]', '[3,3,3,3]')):
                for p in range(p0, p0 + 4):
                    d = dreg(p); s = SB + p
                    if j == 0: a(f'v_mov_b32_dpp v{s}, v{d} quad_perm:{pat} row_mask:0xf bank_mask:0xf')
                    else: a(f'v_add_f32_dpp v{s}, v{d+j}, v{s} quad_perm:{pat} row_mask:0xf bank_mask:0xf')
        sc = list(range(SB, SB + 8))
        T4 = [8, 9, 10, 11]
        self.rnd(sc, T4)
        for s in sc: a(f'v_mul_f32 v{s}, s{sSCALE}, v{s}')
        self.rnd(sc, T4)
        a(f'v_max3_f32 v16, v{SB}, v{SB+1}, v{SB+2}')
        a(f'v_max3_f32 v17, v{SB+3}, v{SB+4}, v{SB+5}')
        a(f'v_max3_f32 v16, v16, v{SB+6}, v{SB+7}')
        a(f'v_max_f32 v16, v16, v17')
        a(f'v_max_f32_dpp v16, v16, v16 row_half_mirror row_mask:0xf bank_mask:0xf')
        self.xgroup('v_max_f32', [16], [17])
        a(f"""
        s_mov_b64 exec, 0x101
        ds_write_b32 v39, v16 offset:{LMX}
        s_mov_b64 exec, -1
        v_mul_f32 v9, s{sLOG2E}, v16
        v_sub_f32 v9, 0, v9
        """)
        for s in sc: a(f'v_fma_f32 v{s}, v{s}, s{sLOG2E}, v9')
        for s in sc: a(f'v_exp_f32 v{s}, v{s}')
        a(f'v_add_f32 v8, v{SB}, v{SB+1}'); a(f'v_add_f32 v9, v{SB+2}, v{SB+3}')
        a(f'v_add_f32 v10, v{SB+4}, v{SB+5}'); a(f'v_add_f32 v11, v{SB+6}, v{SB+7}')
        for s in sc: a(f'v_cvt_pk_bf16_f32 v{s}, v{s}, v{s}')
        a('v_add_f32 v8, v8, v9'); a('v_add_f32 v10, v10, v11'); a('v_add_f32 v10, v10, v8')
        for p in range(8): a(f'v_mov_b32_dpp v{PM+p}, v{SB+p} row_half_mirror row_mask:0xf bank_mask:0xf')
        a(f'v_add_f32_dpp v10, v10, v10 row_half_mirror row_mask:0xf bank_mask:0xf')
        self.xgroup('v_add_f32', [10], [17])
        a(f"""
        s_mov_b64 exec, 0x101
        ds_write_b32 v39, v10 offset:{LLS}
        v_mov_b32 v16, {LCNT_Q}
        v_mov_b32 v17, 1
        s_mov_b64 exec, 1
        ds_add_u32 v16, v17
        s_mov_b64 exec, -1
        s_mov_b32 s71, 1
        """)
        self.stamp(4)
        a('s_setpc_b64 s[74:75]')

    def w2_loads(self, WB):
        a = self.a
        a(f'''
        s_mul_i32 s6, s{sF}, {32*1152}
        s_lshl_b32 s7, s{sW}, 7
        s_add_u32 s6, s6, s7
        ''')
        self.srd(SRD_B, PW2, 6, f'{4608*1152}')
        a(f'''
        s_sub_u32 s{SRD_B+2}, s{SRD_B+2}, s6
        v_lshrrev_b32 v8, 3, v1
        v_mul_u32_u24 v8, 1152, v8
        v_and_b32 v9, 7, v1
        v_lshl_add_u32 v45, v9, 4, v8
        s_mul_i32 s74, s{sF}, 2304
        s_lshl_b32 s7, s{sW}, 8
        s_add_u32 s74, s74, s7
        s_add_u32 s74, s74, {WS_YP}
        ''')
    def gemv1_prep(self):
        a = self.a
        a(f'''
        s_and_b32 s75, s{sF}, 1              ; kh
        s_mul_i32 s6, s75, {288*4}
        s_mul_i32 s7, s{sW}, {72*4}
        s_add_u32 s6, s6, s7
        v_lshrrev_b32 v39, 3, v1
        v_lshlrev_b32 v39, 2, v39            ; v39 = (l>>3)*4
        v_add_u32 v36, s6, v39
        v_add_u32 v36, {LH2}, v36
        ''')
        self.set_addr(40, 41)
        a(f'''
        s_lshl_b32 s6, s{sW}, 8
        v_add_u32 v37, s6, v40
        v_lshlrev_b32 v38, 2, v1             ; v38 = l*4
        s_lshl_b32 s76, s{sF}, 7
        s_add_u32 s76, s76, {WS_UX}
        s_xor_b32 s77, s{sF}, 1
        s_lshl_b32 s77, s77, 7
        s_add_u32 s77, s77, {WS_UX}
        v_and_b32 v41, 31, v1
        v_lshlrev_b32 v41, 2, v41            ; v41 = (l&31)*4
        ''')
        self.set_addr4(42, 43)
        a(f"""
        v_mov_b32 v43, {LFAST}
        ds_read_b32 v43, v43
        s_waitcnt lgkmcnt(0)
        v_readfirstlane_b32 s78, v43
        """)
    def gemv1(self, KB, XB, extra_after):
        a = self.a
        N = 9
        for i in range(N): a(f'ds_read_b32 v{XB+i}, v36 offset:{32*i}')
        Areg = lambda i: (16, 20, 28)[i % 3]
        a(f's_waitcnt lgkmcnt({N-1})')
        self.abuild(Areg(0), XB)
        a(f's_waitcnt vmcnt({extra_after})')
        for i in range(N):
            if i < N - 1:
                a(f's_waitcnt lgkmcnt({N-2-i})')
                self.abuild(Areg(i + 1), XB + i + 1)
            c = '0' if i == 0 else 'v[12:15]'
            a(f'v_mfma_f32_16x16x32_bf16 v[12:15], {vr(Areg(i),4)}, {vr(KB+4*i,4)}, {c}')
        self.setsum2([12], [24])
        self.exec_set(self.SETMASK)
        a(f'ds_write_b64 v37, v[24:25] offset:{LUP}')
        self.exec_all()
        a('s_waitcnt lgkmcnt(0)')
        a('s_barrier')
        a(f'''
        s_cmp_lg_u32 s{sW}, 0
        s_cbranch_scc1 L_g1_skip
        ds_read_b32 v16, v38 offset:{LUP}
        ds_read_b32 v17, v38 offset:{LUP+256}
        ds_read_b32 v18, v38 offset:{LUP+512}
        ds_read_b32 v19, v38 offset:{LUP+768}
        s_mov_b32 s66, -1
        s_mov_b32 s67, 0                     ; s[66:67] = lanes 0..31
        s_cmp_eq_u32 s75, 0
        s_cbranch_scc1 L_g1_k0
        s_mov_b32 s66, 0
        s_mov_b32 s67, -1
        L_g1_k0:
        s_waitcnt lgkmcnt(0)
        v_add_f32 v16, v16, v17
        v_add_f32 v18, v18, v19
        v_add_f32 v16, v16, v18
        ''')
        self.quad_gather(16, 20)
        a(f'''
        s_not_b64 s[68:69], s[66:67]
        s_and_b32 s68, s68, 0x11111111
        s_and_b32 s69, s69, 0x11111111
        s_mov_b64 exec, s[68:69]
        s_cmp_eq_u32 s78, 1
        s_cbranch_scc1 L_ux_fast
        buffer_store_dwordx4 v[20:23], v41, {sr(SRD_WS,4)}, s76 offen sc1
        s_branch L_ux_stored
        L_ux_fast:
        buffer_store_dwordx4 v[20:23], v41, {sr(SRD_WS,4)}, s76 offen
        L_ux_stored:
        s_mov_b64 exec, s[66:67]
        ''')
        self.poll_begin('L_ux')
        a(f'''
        buffer_load_dword v17, v41, {sr(SRD_WS,4)}, s77 offen sc1
        s_waitcnt vmcnt(0)
        ''')
        self.poll_end('L_ux', 17)
        a('v_add_f32 v16, v16, v17')
        self.rnd([16], [20])
        self.silu([16], [20])
        a(f'''
        v_cvt_pk_bf16_f32 v16, v16, v16
        ds_write_b32 v41, v16 offset:{LUS}
        s_mov_b64 exec, -1
        s_waitcnt lgkmcnt(0)
        L_g1_skip:
        ''')
        a('s_barrier')

    def gemv2(self, WB, TB):
        a = self.a
        for ro in range(4): a(f'ds_read_b32 v{16+ro}, v39 offset:{LUS + 32*ro}')
        DB = TB + 16
        for ro in range(4):
            a(f's_waitcnt lgkmcnt({3-ro})')
            self.abuild(TB + 4 * ro, 16 + ro)
        a('s_waitcnt vmcnt(0)')
        for ro in range(4):
            for k in range(2):
                c = '0' if ro == 0 else vr(DB + 4 * k, 4)
                a(f'v_mfma_f32_16x16x32_bf16 {vr(DB+4*k,4)}, {vr(TB+4*ro,4)}, {vr(WB+16*k+4*ro,4)}, {c}')
        a(f'''
        s_cmp_lg_u32 s{sW}, 0
        s_cbranch_scc1 L_g2_no3
        ''')
        for ro in range(4):
            c = '0' if ro == 0 else vr(DB + 8, 4)
            a(f'v_mfma_f32_16x16x32_bf16 {vr(DB+8,4)}, {vr(TB+4*ro,4)}, {vr(WB+32+4*ro,4)}, {c}')
        a('s_nop 7')
        self.setsum4([DB + 8], [DB + 20])
        self.exec_set(0x00FF00FF)
        a(f'buffer_store_dwordx4 {vr(DB+20,4)}, v42, {sr(SRD_WS,4)}, s74 offen offset:2048 sc1')
        self.exec_all()
        a.label('L_g2_no3')
        a('s_nop 7')
        self.setsum4([DB, DB + 4], [DB + 12, DB + 16])
        self.exec_set(0x00FF00FF)
        a(f'buffer_store_dwordx4 {vr(DB+12,4)}, v42, {sr(SRD_WS,4)}, s74 offen sc1')
        a(f'buffer_store_dwordx4 {vr(DB+16,4)}, v42, {sr(SRD_WS,4)}, s74 offen offset:1024 sc1')
        self.exec_all()

    def chain(self):
        a = self.a
        a.label('L_chain')
        a(f'''
        s_setprio 3
        s_load_dword s{sTAG}, {sr(PWS,2)}, {WS_EPOCH}
        s_sub_u32 s{sW}, s{sW}, 8
        s_mov_b32 s60, 1
        s_mov_b32 s6, s{sB}
        s_cmp_lt_u32 s{sB}, 108
        s_cbranch_scc1 L_p1role
        s_mov_b32 s60, 2
        s_sub_u32 s6, s{sB}, 108
        s_cmp_lt_u32 s{sB}, 236
        s_cbranch_scc1 L_p1role
        s_mov_b32 s60, 0
        L_p1role:
        s_lshr_b32 s61, s6, 1
        s_and_b32 s62, s6, 1
        s_cmp_eq_u32 s{sW}, 0
        s_cbranch_scc1 L_c0
        s_cmp_eq_u32 s{sW}, 1
        s_cbranch_scc1 L_c1
        s_cmp_eq_u32 s{sW}, 2
        s_cbranch_scc1 L_c2
        ''')
        self.c3(); self.c0(); self.c1(); self.c2(); self.ctail()

    def c3(self):
        a = self.a
        a(f'''
        s_barrier                            ; B0
        s_waitcnt lgkmcnt(0)
        s_add_u32 s{sTAG}, s{sTAG}, 1
        s_sleep 127
        ''')
        self.flags_check('L_c3_flags', 8, 12, sleep=32)
        if self.fast:
            a(f"""
            s_lshr_b32 s6, s{sG}, 1
            s_lshl_b32 s6, s6, 8                 ; (g>>1)*32*8
            s_add_u32 s6, s6, {WS_XG}
            v_lshlrev_b32 v8, 3, v1
            s_getreg_b32 s7, hwreg(HW_REG_XCC_ID)
            s_and_b32 s7, s7, 15
            s_mov_b32 exec_hi, 0
            s_mov_b32 s{sCNT}, 0
            L_c3_xg:
            buffer_load_dwordx2 v[12:13], v8, {sr(SRD_WS,4)}, s6 offen sc1
            s_waitcnt vmcnt(0)
            v_cmp_ne_u32 vcc, s{sTAG}, v13
            s_cbranch_vccz L_c3_xg_ok
            s_add_u32 s{sCNT}, s{sCNT}, 1
            s_cmp_lt_u32 s{sCNT}, 64
            s_cbranch_scc0 L_c3_xg_no
            s_sleep 16
            s_branch L_c3_xg
            L_c3_xg_ok:
            v_cmp_ne_u32 vcc, s7, v12
            s_cbranch_vccnz L_c3_xg_no
            v_mov_b32 v12, 1
            v_mov_b32 v13, {LFAST}
            s_mov_b64 exec, 1
            ds_write_b32 v13, v12
            L_c3_xg_no:
            s_mov_b64 exec, -1
            """)
        self.stamp(1)
        a('s_branch L_ctail')
    code_kb4 = 6

    def c0(self):
        a = self.a
        a.label('L_c0')
        a(f"""
        s_cmp_eq_u32 s60, 0
        s_cbranch_scc1 L_c0_skip
        s_mov_b32 s63, 6912
        s_mov_b32 s64, s{PWM}
        s_mov_b32 s65, s{PWM+1}
        s_cmp_eq_u32 s60, 1
        s_cbranch_scc1 L_c0_sel
        s_mov_b32 s63, 8192
        s_mov_b32 s64, s{PWQ}
        s_mov_b32 s65, s{PWQ+1}
        L_c0_sel:
        s_mul_i32 s6, s62, 288
        s_mul_i32 s6, s6, s63                ; kh*288*pitch
        s_lshl_b32 s7, s61, 7
        s_add_u32 s6, s6, s7
        s_add_u32 s{SRD_A}, s64, s6
        s_addc_u32 s{SRD_A+1}, s65, 0
        s_mul_i32 s{SRD_A+2}, s63, 288
        s_mov_b32 s{SRD_A+3}, 0x20000
        v_lshrrev_b32 v8, 3, v1
        v_mul_lo_u32 v8, v8, s63
        v_and_b32 v9, 7, v1
        v_lshlrev_b32 v9, 4, v9
        v_add_u32 v8, v8, v9
        s_lshl_b32 s66, s63, 3               ; 8*pitch
        s_mov_b32 s67, 0
        """)
        TB = 24
        for i in range(36):
            a(f'buffer_load_dwordx4 {vr(TB+4*i,4)}, v8, {sr(SRD_A,4)}, s67 offen{NT}')
            if i < 35: a('s_add_u32 s67, s67, s66')
        a('s_barrier')
        self.masks(4, 9)
        a(f"""
        v_lshrrev_b32 v2, 3, v1
        v_mul_u32_u24 v2, 144, v2
        s_lshl_b32 s6, s61, 9                ; ct*512
        s_mul_i32 s7, s62, {MODP_P}
        s_add_u32 s7, s7, {WS_MODP}
        s_cmp_eq_u32 s60, 1
        s_cbranch_scc1 L_c0_pub
        s_mul_i32 s7, s62, {QP_P}
        s_add_u32 s7, s7, {WS_QP}
        L_c0_pub:
        s_add_u32 s68, s6, s7
        s_waitcnt lgkmcnt(0)
        s_add_u32 s{sTAG}, s{sTAG}, 1
        """)
        self.stamp(1)
        self.lds_wait_flag('L_c0_wxx', LF_XX, 8)
        self.stamp(2)
        a(f'ds_read_b128 v[8:11], v2 offset:{LXXT}')
        for n in range(9):
            xb = 8 if n == 0 else TB + 16 * (n - 1)
            a('s_waitcnt lgkmcnt(0)')
            for k in range(4):
                i = 4 * n + k
                A = 16 if i % 2 == 0 else 20
                self.abuild(A, xb + k)
                a(f's_waitcnt vmcnt({35 - i})')
                c = '0' if i == 0 else 'v[12:15]'
                a(f'v_mfma_f32_16x16x32_bf16 v[12:15], {vr(A,4)}, {vr(TB+4*i,4)}, {c}')
                if k == 0 and n < 8:
                    a(f'ds_read_b128 {vr(TB + 16*n, 4)}, v2 offset:{LXXT + 16*(n+1)}')
        self.stamp(3)
        self.set_addr(9, 10)
        a('v_lshlrev_b32 v9, 1, v9')
        self.setsum2([12], [16])
        a(f"""
        v_mov_b32 v18, v17
        v_mov_b32 v17, s{sTAG}
        v_mov_b32 v19, s{sTAG}
        """)
        self.exec_set(self.SETMASK)
        a(f'buffer_store_dwordx4 v[16:19], v9, {sr(SRD_WS,4)}, s68 offen sc1')
        self.exec_all()
        self.stamp(4)
        a('s_branch L_ctail')
        a.label('L_c0_skip')
        a(f"""
        s_barrier
        s_waitcnt lgkmcnt(0)
        s_add_u32 s{sTAG}, s{sTAG}, 1
        s_branch L_ctail
        """)

    def c1(self):
        a = self.a
        a.label('L_c1')
        a(f"""
        v_mov_b32 v8, -1
        v_mov_b32 v9, -1
        v_mov_b32 v10, -1
        v_mov_b32 v11, -1
        v_lshlrev_b32 v12, 4, v1             ; lane*16
        s_lshl_b32 s6, s{sSLOT}, 10
        s_add_u32 s6, s6, {WS_OP}
        buffer_store_dwordx4 v[8:11], v12, {sr(SRD_WS,4)}, s6 offen sc1
        s_cmp_lt_u32 s{sS}, 7
        s_cbranch_scc1 L_c1_ap
        s_mul_i32 s6, s{sF}, 2304
        s_add_u32 s6, s6, {WS_YP}
        buffer_store_dwordx4 v[8:11], v12, {sr(SRD_WS,4)}, s6 offen sc1
        buffer_store_dwordx4 v[8:11], v12, {sr(SRD_WS,4)}, s6 offen offset:1024 sc1
        s_mov_b64 exec, 0xffff
        buffer_store_dwordx4 v[8:11], v12, {sr(SRD_WS,4)}, s6 offen offset:2048 sc1
        s_mov_b64 exec, 0xff
        s_lshl_b32 s6, s{sF}, 7
        s_add_u32 s6, s6, {WS_UX}
        buffer_store_dwordx4 v[8:11], v12, {sr(SRD_WS,4)}, s6 offen sc1
        s_branch L_c1_st
        L_c1_ap:
        L_c1_apdummy:
        L_c1_st:
        s_bitcmp1_b32 s{sG}, 0
        s_cbranch_scc1 L_c1_norc
        s_cmp_ge_u32 s{sS}, 9
        s_cbranch_scc1 L_c1_norc
        s_mov_b64 exec, 0xffff
        s_lshr_b32 s6, s{sG}, 1
        s_mul_i32 s6, s6, 2304
        s_lshl_b32 s7, s{sS}, 8
        s_add_u32 s6, s6, s7
        s_add_u32 s6, s6, {WS_AP}
        buffer_store_dwordx4 v[8:11], v12, {sr(SRD_WS,4)}, s6 offen sc1
        s_cmp_lg_u32 s{sS}, 0
        s_cbranch_scc1 L_c1_norc
        s_mov_b64 exec, 1
        v_mov_b32 v13, 0
        s_lshr_b32 s6, s{sG}, 1
        s_lshl_b32 s6, s6, 7
        s_add_u32 s6, s6, {WS_RC}
        buffer_store_dword v13, v12, {sr(SRD_WS,4)}, s6 offen sc1
        L_c1_norc:
        s_mov_b64 exec, 1
        s_lshl_b32 s6, s{sSLOT}, 7
        s_add_u32 s6, s6, {WS_ST}
        buffer_store_dwordx4 v[8:11], v12, {sr(SRD_WS,4)}, s6 offen sc1
        s_mov_b64 exec, -1
        s_barrier                            ; B0
        s_waitcnt vmcnt(0) lgkmcnt(0)
        s_add_u32 s{sTAG}, s{sTAG}, 1
        v_mov_b32 v13, s{sTAG}
        s_lshl_b32 s6, s{sB}, 2
        s_add_u32 s6, s6, {WS_FLAGS}
        v_mov_b32 v15, 0
        s_mov_b64 exec, 1
        buffer_store_dword v13, v15, {sr(SRD_WS,4)}, s6 offen sc1
        s_getreg_b32 s7, hwreg(HW_REG_XCC_ID)
        s_and_b32 s7, s7, 15
        v_mov_b32 v16, s7
        v_mov_b32 v17, s{sTAG}
        s_lshl_b32 s6, s{sSLOT}, 3
        s_add_u32 s6, s6, {WS_XG}
        buffer_store_dwordx2 v[16:17], v15, {sr(SRD_WS,4)}, s6 offen sc1
        s_mov_b64 exec, -1
        """)
        self.stamp(1)
        a(f"""
        v_lshlrev_b32 v8, 4, v1
        s_lshl_b32 s6, s{sG}, 11
        s_add_u32 s6, s6, {WS_QP}
        s_add_u32 s7, s6, {QP_P}
        s_add_u32 s64, s{PWS}, s6
        s_addc_u32 s65, s{PWS+1}, 0
        s_sleep {self.sl_q0}
        """)
        if self.sl_q1: a(f's_sleep {self.sl_q1}')
        if self.hint: self.shint('L_c1_hint', 64, [4 + kh * QP_P + j * 512 for kh in range(2) for j in range(4)], 66)
        self.stamp(2)
        self.poll_begin('L_c1_q')
        a(f"""
        buffer_load_dwordx4 v[112:115], v8, {sr(SRD_WS,4)}, s6 offen sc1
        buffer_load_dwordx4 v[116:119], v8, {sr(SRD_WS,4)}, s6 offen offset:1024 sc1
        buffer_load_dwordx4 v[120:123], v8, {sr(SRD_WS,4)}, s7 offen sc1
        buffer_load_dwordx4 v[124:127], v8, {sr(SRD_WS,4)}, s7 offen offset:1024 sc1
        s_waitcnt vmcnt(0)
        """)
        self.tag_check(list(range(113, 128, 2)), 128, 129)
        self.poll_end_nz('L_c1_q', 128, sleep=self.sl_p1)
        a(f"""
        v_add_f32 v112, v112, v120
        v_add_f32 v114, v114, v122
        v_add_f32 v116, v116, v124
        v_add_f32 v118, v118, v126
        v_cvt_pk_bf16_f32 v112, v112, v114
        v_cvt_pk_bf16_f32 v113, v116, v118
        v_lshlrev_b32 v8, 2, v1
        ds_write_b32 v8, v112 offset:{LQ}
        ds_write_b32 v8, v113 offset:{LQ+256}
        v_mov_b32 v8, {LF_Q}
        v_mov_b32 v9, 1
        s_waitcnt lgkmcnt(0)
        s_mov_b64 exec, 1
        ds_write_b32 v8, v9
        s_mov_b64 exec, -1
        """)
        self.stamp(3)
        self.lds_wait_cnt('L_c1_wq', LCNT_Q, 8, 46)
        self.stats_pub('c', 1)
        a('s_branch L_ctail')

    def c2(self):
        a = self.a
        a.label('L_c2')
        a(f"""
        v_mov_b32 v13, 0
        v_lshlrev_b32 v14, 2, v1
        s_mov_b64 exec, 0xffff
        ds_write_b32 v14, v13 offset:{LF_XX}
        s_mov_b64 exec, -1
        s_cmp_eq_u32 s60, 0
        s_cbranch_scc1 L_c2_skip
        s_cmp_eq_u32 s60, 2
        s_cbranch_scc1 L_c2_h
        s_mul_i32 s6, s62, 576
        s_add_u32 s{SRD_A}, s{PC}, s6
        s_addc_u32 s{SRD_A+1}, s{PC+1}, 0
        s_mov_b32 s{SRD_A+2}, 576
        s_mov_b32 s{SRD_A+3}, 0x20000
        v_lshlrev_b32 v8, 4, v1
        buffer_load_dwordx4 v[12:15], v8, {sr(SRD_A,4)}, 0 offen
        s_waitcnt lgkmcnt(0)
        s_barrier                            ; B0
        s_waitcnt vmcnt(0)
        s_add_u32 s{sTAG}, s{sTAG}, 1
        """)
        xs = list(range(16, 24))
        for i in range(4): self.unpack(12 + i, 16 + 2 * i, 17 + 2 * i)
        self.silu(xs, list(range(24, 32)))
        for i in range(8): a(f'v_cvt_pk_bf16_f32 v{16+i}, v{16+i}, v{16+i}')
        a(f'v_lshlrev_b32 v8, 2, v1')
        self.exec_set((1 << 36) - 1)
        for e in range(8): a(f'ds_write_b32 v8, v{16+e} offset:{LXXT + 144*e}')
        self.exec_all()
        a('s_branch L_c2_flag')
        a.label('L_c2_h')
        self.srd_plain(SRD_A, PX, 1152)
        a(f"""
        v_lshlrev_b32 v8, 5, v1
        buffer_load_dwordx4 v[12:15], v8, {sr(SRD_A,4)}, 0 offen
        buffer_load_dwordx4 v[16:19], v8, {sr(SRD_A,4)}, 0 offen offset:16
        s_mul_i32 s6, s62, 576
        v_lshlrev_b32 v9, 2, v1
        buffer_load_dword v20, v9, {sr(SRD_A,4)}, s6 offen
        buffer_load_dword v21, v9, {sr(SRD_A,4)}, s6 offen offset:256
        buffer_load_dword v22, v9, {sr(SRD_A,4)}, s6 offen offset:512
        s_waitcnt lgkmcnt(0)
        s_barrier                            ; B0
        s_waitcnt vmcnt(0)
        s_add_u32 s{sTAG}, s{sTAG}, 1
        """)
        xv = list(range(32, 48))
        for i in range(8): self.unpack(12 + i, 32 + 2 * i, 33 + 2 * i)
        a(f'v_add_f32 v26, v32, v33')
        for r in xv[2:]: a(f'v_add_f32 v26, v26, v{r}')
        self.wave_red('v_add_f32', [26], [27])
        a(f'v_mul_f32 v24, {f2u(1.0/576):#x}, v26')
        a('v_mov_b32 v26, 0')
        self.exec_set((1 << 36) - 1)
        for r in xv:
            a(f'v_sub_f32 v29, v{r}, v24')
            a(f'v_fmac_f32 v26, v29, v29')
        self.exec_all()
        self.wave_red('v_add_f32', [26], [27])
        a(f'v_mul_f32 v25, {f2u(1.0/576):#x}, v26')
        self.ln_finish(24, 25, 27)
        for i in range(3): self.unpack(20 + i, 32 + 2 * i, 33 + 2 * i)
        xr = list(range(32, 38))
        self.ln_apply(xr, mean=24, sd=25, tmps=[26, 27, 28])
        self.stamp(1)
        a(f"""
        s_mul_i32 s6, s62, {288*8}
        s_add_u32 s6, s6, {WS_MODP}
        s_add_u32 s7, s6, {MODP_P}
        s_add_u32 s8, s6, {576*8}
        s_add_u32 s9, s7, {576*8}
        v_lshlrev_b32 v8, 4, v1
        s_sleep {self.sl_m0}
        """)
        self.poll_begin('L_c2_mod')
        for base, so in ((64, 's6'), (76, 's8'), (88, 's7'), (100, 's9')):
            a(f'buffer_load_dwordx4 {vr(base,4)}, v8, {sr(SRD_WS,4)}, {so} offen sc1')
            a(f'buffer_load_dwordx4 {vr(base+4,4)}, v8, {sr(SRD_WS,4)}, {so} offen offset:1024 sc1')
        for base in (64, 76, 88, 100):
            a(f'v_mov_b32 v{base+9}, s{sTAG}'); a(f'v_mov_b32 v{base+11}, s{sTAG}')
            a(f'v_mov_b32 v{base+8}, 0'); a(f'v_mov_b32 v{base+10}, 0')
        a('s_mov_b64 exec, 0xffff')
        for base, so in ((64, 's6'), (76, 's8'), (88, 's7'), (100, 's9')):
            a(f'buffer_load_dwordx4 {vr(base+8,4)}, v8, {sr(SRD_WS,4)}, {so} offen offset:2048 sc1')
        a('s_mov_b64 exec, -1')
        a('s_waitcnt vmcnt(0)')
        self.tag_check(list(range(65, 112, 2)), 48, 49)
        self.poll_end_nz('L_c2_mod', 48, sleep=self.sl_p1)
        self.stamp(2)
        for e in range(6):
            a(f'v_add_f32 v{48+e}, v{64+2*e}, v{88+2*e}')
            a(f'v_add_f32 v{56+e}, v{76+2*e}, v{100+2*e}')
        sa = list(range(48, 54)); ca = list(range(56, 62))
        T = list(range(64, 70))
        self.rnd(sa + ca, T)
        for r in ca: a(f'v_add_f32 v{r}, 1.0, v{r}')
        self.rnd(ca, T)
        for x, c in zip(xr, ca): a(f'v_mul_f32 v{x}, v{x}, v{c}')
        self.rnd(xr, T)
        for x, s, d in zip(xr, sa, range(16, 22)): a(f'v_add_f32 v{d}, v{x}, v{s}')
        for i in range(6): a(f'v_cvt_pk_bf16_f32 v{16+i}, v{16+i}, v{16+i}')
        a(f"""
        v_and_b32 v8, 3, v1
        v_mul_u32_u24 v8, 288, v8
        v_lshrrev_b32 v9, 2, v1
        v_lshlrev_b32 v9, 2, v9
        v_add_u32 v8, v8, v9
        ds_write_b32 v8, v16 offset:{LXXT}
        ds_write_b32 v8, v17 offset:{LXXT+144}
        ds_write_b32 v8, v18 offset:{LXXT+64}
        ds_write_b32 v8, v19 offset:{LXXT+64+144}
        s_mov_b64 exec, 0xffff
        ds_write_b32 v8, v20 offset:{LXXT+128}
        ds_write_b32 v8, v21 offset:{LXXT+128+144}
        s_mov_b64 exec, -1
        """)
        a.label('L_c2_flag')
        a(f"""
        v_mov_b32 v13, 1
        v_mov_b32 v14, {LF_XX}
        s_waitcnt lgkmcnt(0)
        s_mov_b64 exec, 1
        ds_write_b32 v14, v13
        s_mov_b64 exec, -1
        """)
        self.stamp(3)
        a('s_branch L_ctail')
        a.label('L_c2_skip')
        a(f"""
        s_waitcnt lgkmcnt(0)
        s_barrier
        s_add_u32 s{sTAG}, s{sTAG}, 1
        """)

    def ln_finish(self, mean, var, t):
        a = self.a
        self.rnd([mean, var], [t])
        a(f'v_add_f32 v{var}, {f2u(1e-5):#x}, v{var}')
        self.rnd([var], [t])
        a(f'v_sqrt_f32 v{var}, v{var}')
        self.rnd([var], [t])
        a(f'v_rcp_f32 v{var}, v{var}')

    def ln_apply(self, xr, mean, sd, tmps):
        a = self.a
        for r in xr: a(f'v_sub_f32 v{r}, v{r}, v{mean}')
        self.rnd(xr, tmps)
        for r in xr: a(f'v_mul_f32 v{r}, v{r}, v{sd}')
        self.rnd(xr, tmps)

    def ffn_consts_issue(self):
        a = self.a
        for p, so in ((0, 8), (1, 9)):
            for arr in range(3):
                if arr: a(f's_add_u32 s10, s{so}, {576*8*arr}')
                sreg = f's{so}' if arr == 0 else 's10'
                b = 64 + 24 * p + 8 * arr
                a(f'buffer_load_dwordx4 {vr(b,4)}, v9, {sr(SRD_WS,4)}, {sreg} offen sc1')
                a(f'buffer_load_dwordx4 {vr(b+4,4)}, v9, {sr(SRD_WS,4)}, {sreg} offen offset:16 sc1')
    def ffn_consts_prep(self):
        a = self.a
        self.srd_plain(SRD_B, PX, 1152)
        a(f"""
        s_mul_i32 s6, s{sW}, 288
        v_lshlrev_b32 v8, 3, v1
        s_mul_i32 s7, s{sW}, {144*8}
        s_add_u32 s8, s7, {WS_MODP + 1152*8}
        s_add_u32 s9, s8, {MODP_P}
        v_lshlrev_b32 v9, 5, v1
        """)
        self.exec_set((1 << 36) - 1)
        a(f'buffer_load_dwordx2 v[40:41], v8, {sr(SRD_B,4)}, s6 offen')
        self.exec_all()
    def ffn_consts_finish(self):
        a = self.a
        self.exec_set((1 << 36) - 1)
        a(f's_mov_b32 s{sCNT}, 0')
        a('s_branch L_ct_mod_chk')
        a.label('L_ct_mod')
        self.ffn_consts_issue()
        a.label('L_ct_mod_chk')
        a('s_waitcnt vmcnt(0)')
        self.tag_check(list(range(65, 112, 2)), 44, 45)
        self.poll_end_nz('L_ct_mod', 44, sleep=4)
        for i in range(12): a(f'v_add_f32 v{24+i}, v{64+2*i}, v{88+2*i}')
        T = list(range(42, 48))
        self.rnd(list(range(24, 36)), T)
        for i in range(4): a(f'v_add_f32 v{32+i}, 1.0, v{32+i}')
        self.rnd(list(range(32, 36)), T)
        self.unpack(40, 36, 37); self.unpack(41, 38, 39)
        self.exec_all()

    def red_consts(self):
        a = self.a
        self.srd_plain(SRD_B, PX, 1152)
        a(f"""
        v_and_b32 v8, 3, v1
        v_lshlrev_b32 v9, 5, v8
        v_lshlrev_b32 v8, 3, v8
        s_lshl_b32 s6, s69, 5
        buffer_load_dwordx2 v[40:41], v8, {sr(SRD_B,4)}, s6 offen
        s_lshl_b32 s7, s69, 7
        s_add_u32 s8, s7, {WS_MODP + 1152*8}
        s_add_u32 s9, s8, {MODP_P}
        s_add_u32 s10, s8, {1728*8}
        s_add_u32 s11, s9, {1728*8}
        """)
        self.poll_begin('L_ct_red')
        for b, so in ((128, 's8'), (136, 's10'), (144, 's9'), (152, 's11')):
            a(f'buffer_load_dwordx4 {vr(b,4)}, v9, {sr(SRD_WS,4)}, {so} offen sc1')
            a(f'buffer_load_dwordx4 {vr(b+4,4)}, v9, {sr(SRD_WS,4)}, {so} offen offset:16 sc1')
        a('s_waitcnt vmcnt(0)')
        self.tag_check(list(range(129, 160, 2)), 44, 45)
        self.poll_end_nz('L_ct_red', 44, sleep=4)
        for i in range(8): a(f'v_add_f32 v{24+i}, v{128+2*i}, v{144+2*i}')
        self.rnd(list(range(24, 32)), list(range(44, 48)))
        self.unpack(40, 36, 37); self.unpack(41, 38, 39)

    def ctail(self):
        a = self.a
        a.label('L_ctail')
        self.stamp(5)
        WB = 64
        self.masks(4, 8)
        a(f"""
        s_cmp_lg_u32 s{sW}, 3
        s_cbranch_scc1 L_ct_norole
        """)
        self.lds_wait_cnt('L_ct_wv', LCNT_T, 8, 46)
        a(f"""
        v_mov_b32 v46, 1
        v_mov_b32 v47, 0
        s_lshr_b32 s6, s{sG}, 1
        s_lshl_b32 s6, s6, 7
        s_add_u32 s6, s6, {WS_RC}
        s_mov_b64 exec, 1
        buffer_atomic_add v46, v47, {sr(SRD_WS,4)}, s6 offen sc0 sc1
        s_waitcnt vmcnt(0)
        v_and_b32 v46, 31, v46
        v_add_u32 v46, 1, v46
        v_mov_b32 v47, {LROLE}
        ds_write_b32 v47, v46
        s_mov_b64 exec, -1
        L_ct_norole:
        v_mov_b32 v46, {LROLE}
        s_mov_b32 s{sCNT}, 0
        L_ct_role:
        ds_read_b32 v47, v46
        s_add_u32 s{sCNT}, s{sCNT}, 1
        s_cmp_lt_u32 s{sCNT}, {MAXSPIN*8}
        s_cbranch_scc0 L_ct_role_done
        s_waitcnt lgkmcnt(0)
        v_readfirstlane_b32 s70, v47
        s_cmp_lg_u32 s70, 0
        s_cbranch_scc1 L_ct_role_done
        s_sleep 1
        s_branch L_ct_role
        L_ct_role_done:
        s_waitcnt lgkmcnt(0)
        s_sub_u32 s70, s70, 1                ; rank
        """)
        a(f"""
        s_cmp_lt_u32 s70, 9
        s_cbranch_scc1 L_ct_wor
        s_cmp_lt_u32 s70, 27
        s_cbranch_scc1 L_ct_ffn2
        s_lshr_b32 s6, s{sG}, 1
        s_mul_i32 s69, s6, 5
        s_add_u32 s69, s69, s70
        s_sub_u32 s69, s69, 27               ; r
        s_cmp_ge_u32 s69, 36
        s_cbranch_scc1 L_ct_end
        s_cmp_lg_u32 s{sW}, 3
        s_cbranch_scc1 L_ct_end
        """)
        self.red_consts()
        self.reducer()
        a.label('L_ct_end')
        self.end_wave({})
        a.label('L_ct_wor')
        a(f"""
        s_mov_b32 s71, s70                   ; ct
        s_lshr_b32 s6, s{sG}, 1
        s_lshl_b32 s6, s6, 9                 ; x*512 rows
        s_lshl_b32 s7, s{sW}, 6
        s_add_u32 s6, s6, s7
        s_mul_i32 s6, s6, 1152
        s_lshl_b32 s7, s71, 7
        s_add_u32 s6, s6, s7
        """)
        self.srd(SRD_A, PWO, 6, f'{4096*1152}')
        a(f"""
        s_sub_u32 s{SRD_A+2}, s{SRD_A+2}, s6
        v_lshrrev_b32 v8, 3, v1
        v_mul_u32_u24 v8, 1152, v8
        v_and_b32 v9, 7, v1
        v_lshl_add_u32 v42, v9, 4, v8
        """)
        self.lds_wait_cnt('L_wo_wv', LCNT_V, 8, 46)
        self.stamp(12)
        for n in range(16):
            gp, i = n // 8, n % 8
            if n == self.wo_pre: self.lds_wait_cnt('L_wo_wp', LCNT2, 8, 46)
            a(f's_mov_b32 s7, {9216*i + 294912*gp}')
            a(f'buffer_load_dwordx4 {vr(WB+32*gp+4*i,4)}, v42, {sr(SRD_A,4)}, s7 offen{NT}')
        if self.wo_pre >= 16: self.lds_wait_cnt('L_wo_wp', LCNT2, 8, 46)
        self.stamp(6)
        self.hop1_prep()
        self.hop1_stats()
        self.hop1(WB)
        self.end_wave({3: 3, 8: 7, 9: 8})
        a.label('L_ct_ffn2')
        W1B, W2B = 64, 100
        a(f"""
        s_lshr_b32 s{sF}, s{sG}, 1
        s_mul_i32 s{sF}, s{sF}, 18
        s_add_u32 s{sF}, s{sF}, s70
        s_sub_u32 s{sF}, s{sF}, 9
        s_and_b32 s6, s{sF}, 1
        s_mul_i32 s6, s6, 288
        s_mul_i32 s7, s{sW}, 72
        s_add_u32 s6, s6, s7
        s_mul_i32 s6, s6, 9216
        s_lshr_b32 s7, s{sF}, 1
        s_lshl_b32 s7, s7, 7
        s_add_u32 s6, s6, s7
        """)
        self.srd(SRD_A, PW1, 6, f'{576*9216}')
        a(f"""
        s_sub_u32 s{SRD_A+2}, s{SRD_A+2}, s6
        v_lshrrev_b32 v8, 3, v1
        v_mul_u32_u24 v8, 9216, v8
        v_and_b32 v9, 7, v1
        v_lshl_add_u32 v44, v9, 4, v8        ; v44 = w1 voffset
        """)
        self.w2_loads(W2B)
        self.chain_consts()
        vm = VM(a)
        lst = [('w1', i) for i in range(9)] + [('w2', n) for n in range(8)]
        if self.ffn_mode == 1:
            self.lds_wait_cnt('L_ffn_wv', LCNT_V, 8, 46)
            for _ in range(self.sl_ffn // 100): a('s_sleep 100')
            if self.sl_ffn % 100: a(f's_sleep {self.sl_ffn % 100}')
            self.stamp(10)
        elif self.thr_ffn > 0: self.lds_wait_cnt('L_ffn_wv', LCNT_V, 8, 46)
        def sig_w():
            a(f"""
            v_mov_b32 v46, {LCNT_W}
            v_mov_b32 v47, 1
            s_mov_b64 exec, 1
            ds_add_u32 v46, v47
            s_mov_b64 exec, -1
            """)
        split = 9 + self.w2_pre if self.w2_late else 99
        for idx, (k, i) in enumerate(lst):
            if idx == split:
                sig_w()
                self.gemv1_prep()
                self.stamp(6)
                self.lds_wait_cnt('L_ffn_wh', LCNT_H2, 4, 46)
            if self.ffn_mode == 1:
                if idx >= self.dt_ffn: vm.wait(lst[idx - self.dt_ffn])
            elif idx == self.thr_ffn:
                self.lds_wait_cnt('L_ffn_wp', LCNT2, 8, 46)
                if self.sl_ffn: a(f's_sleep {self.sl_ffn}')
                self.stamp(10)
            if idx == 9: self.stamp(11)
            if k == 'w1':
                a(f's_mov_b32 s64, {73728*i}')
                vm.issue((k, i), f'buffer_load_dwordx4 {vr(W1B+4*i,4)}, v44, {sr(SRD_A,4)}, s64 offen{NT}')
            else:
                ro, kk = i // 2, i % 2
                a(f's_mov_b32 s64, {9216*ro}')
                vm.issue((k, i), f'buffer_load_dwordx4 {vr(W2B+16*kk+4*ro,4)}, v45, {sr(SRD_B,4)}, s64 offen offset:{512*kk}{NT}')
        a(f"""
        s_cmp_lg_u32 s{sW}, 0
        s_cbranch_scc1 L_w2_no3
        """)
        for ro in range(4):
            a(f's_mov_b32 s64, {9216*ro}')
            a(f'buffer_load_dwordx4 {vr(W2B+32+4*ro,4)}, v45, {sr(SRD_B,4)}, s64 offen offset:1024{NT}')
        a.label('L_w2_no3')
        if not self.w2_late: sig_w()
        if not self.w2_late:
            self.gemv1_prep()
            self.stamp(6)
        a('s_barrier')
        a('s_barrier')
        self.stamp(8)
        self.gemv1(W1B, 148, 8)
        self.stamp(9)
        self.gemv2(W2B, 64)
        self.stamp(13)
        self.end_wave()

    def stats_pub(self, tag, who):
        a = self.a
        a(f"""
        s_cmp_lg_u32 s{sW}, {who}
        s_cbranch_scc1 L_nostat{tag}
        v_bfe_u32 v12, v1, 3, 1
        v_lshlrev_b32 v12, 5, v12
        ds_read_b128 v[16:19], v12 offset:{LMX}
        ds_read_b128 v[20:23], v12 offset:{LMX+16}
        ds_read_b128 v[152:155], v12 offset:{LLS}
        ds_read_b128 v[156:159], v12 offset:{LLS+16}
        s_lshl_b32 s12, s{sSLOT}, 7
        s_add_u32 s12, s12, {WS_ST}
        v_lshrrev_b32 v12, 2, v12            ; head*8
        s_waitcnt lgkmcnt(0)
        v_max3_f32 v160, v16, v17, v18
        v_max3_f32 v161, v20, v21, v22
        v_max3_f32 v160, v160, v19, v23
        v_max_f32 v160, v160, v161
        """)
        for i in range(8): a(f'v_sub_f32 v{16+i}, v{16+i}, v160')
        for i in range(8): a(f'v_mul_f32 v{16+i}, s{sLOG2E}, v{16+i}')
        for i in range(8): a(f'v_exp_f32 v{16+i}, v{16+i}')
        a('v_mul_f32 v161, v16, v152')
        for i in range(1, 8): a(f'v_fmac_f32 v161, v{16+i}, v{152+i}')
        a(f"""
        s_mov_b64 exec, 0x101
        buffer_store_dwordx2 v[160:161], v12, {sr(SRD_WS,4)}, s12 offen sc1
        s_mov_b64 exec, -1
        L_nostat{tag}:
        """)

    def l2_prefetch(self, ptr, base_expr_lines, nbytes, total, tag, lanes_stride=128):
        a = self.a
        PF = self.pf_policy
        a(base_expr_lines)
        self.srd_plain(80, ptr, total)
        a(f'v_lshlrev_b32 v47, 7, v1')
        nl = nbytes // 128
        k = 0
        while nl > 0:
            n = min(nl, 64)
            if n < 64: self.exec_set((1 << n) - 1)
            a(f'buffer_load_dword v43, v47, s[80:83], s14 offen{PF}')
            if n < 64: self.exec_all()
            nl -= n; k += 1
            if nl > 0: a('s_add_u32 s14, s14, 8192')

    def pf_wo(self, tag):
        a = self.a
        if not self.pf1: return
        a(f'''
        s_cmp_lg_u32 s{sW}, {self.pf1_wave}
        s_cbranch_scc1 L_pfwo{tag}
        ''')
        self.l2_prefetch(PWO, f'''
        s_mul_i32 s14, s{sG}, {256*1152}
        s_mul_i32 s15, s{sS}, 18432
        s_add_u32 s14, s14, s15
        ''', 18432, 4096*1152, tag)
        a.label(f'L_pfwo{tag}')

    def pf_w2(self):
        a = self.a
        if not self.pf2: return
        self.l2_prefetch(PW2, f'''
        s_mul_i32 s14, s{sG}, {288*1152}
        s_lshl_b32 s15, s{sS}, 2
        s_add_u32 s15, s15, s{sW}
        s_mul_i32 s15, s15, {96*128}
        s_add_u32 s14, s14, s15
        ''', 96*128, 4608*1152, 'w2')

    def chain_consts(self):
        a = self.a
        B = 64
        a(f"""
        s_mul_i32 s7, s{sW}, {144*8}
        s_add_u32 s8, s7, {WS_MODP + 1152*8}
        v_lshlrev_b32 v46, 4, v1
        s_mov_b32 s{sCNT}, 0
        L_cc:
        """)
        for arr in range(3):
            for p in range(2):
                b = B + (arr * 2 + p) * 8
                a(f's_add_u32 s9, s8, {576*8*arr + MODP_P*p}')
                a(f'buffer_load_dwordx4 {vr(b,4)}, v46, {sr(SRD_WS,4)}, s9 offen sc1')
                a(f'v_mov_b32 v{b+4}, 0'); a(f'v_mov_b32 v{b+5}, s{sTAG}'); a(f'v_mov_b32 v{b+6}, 0'); a(f'v_mov_b32 v{b+7}, s{sTAG}')
        a('s_mov_b64 exec, 0xff')
        for arr in range(3):
            for p in range(2):
                b = B + (arr * 2 + p) * 8
                a(f's_add_u32 s9, s8, {576*8*arr + MODP_P*p}')
                a(f'buffer_load_dwordx4 {vr(b+4,4)}, v46, {sr(SRD_WS,4)}, s9 offen offset:1024 sc1')
        a('s_mov_b64 exec, -1')
        a('s_waitcnt vmcnt(0)')
        self.tag_check(list(range(B + 1, B + 48, 2)), 112, 113)
        self.poll_end_nz('L_cc', 112, sleep=4)
        for arr in range(3):
            b0 = B + arr * 16; b1 = b0 + 8
            for j, off in enumerate((0, 2, 4, 6)):
                a(f'v_add_f32 v{112+4*arr+j}, v{b0+off}, v{b1+off}')
        allr = list(range(112, 124))
        T = list(range(124, 130))
        self.rnd(allr, T)
        for j in range(4): a(f'v_add_f32 v{120+j}, 1.0, v{120+j}')
        self.rnd(list(range(120, 124)), T)
        a(f"""
        s_mul_i32 s7, s{sW}, 576
        v_lshlrev_b32 v46, 3, v1
        v_add_u32 v46, s7, v46
        """)
        for arr in range(3):
            a(f'ds_write_b64 v46, {vr(112+4*arr,2)} offset:{LCON + 2304*arr}')
        a('s_mov_b64 exec, 0xff')
        for arr in range(3):
            a(f'ds_write_b64 v46, {vr(114+4*arr,2)} offset:{LCON + 2304*arr + 512}')
        a(f"""
        v_mov_b32 v46, {LCNT_C}
        v_mov_b32 v47, 1
        s_mov_b64 exec, 1
        ds_add_u32 v46, v47
        s_mov_b64 exec, -1
        """)

    def stream_consts(self):
        a = self.a
        self.srd_plain(SRD_B, PX, 1152)
        a(f"""
        s_mul_i32 s6, s{sW}, 288
        v_lshlrev_b32 v8, 3, v1
        buffer_load_dwordx2 v[40:41], v8, {sr(SRD_B,4)}, s6 offen
        """)
    def stream_consts_finish(self):
        a = self.a
        self.lds_wait_cnt('L_sc_w', LCNT_C, 4, 14)
        a(f"""
        s_mul_i32 s6, s{sW}, 576
        v_lshlrev_b32 v8, 4, v1
        v_add_u32 v8, s6, v8
        ds_read_b128 v[24:27], v8 offset:{LCON}
        ds_read_b128 v[28:31], v8 offset:{LCON+2304}
        ds_read_b128 v[32:35], v8 offset:{LCON+4608}
        s_waitcnt vmcnt(0) lgkmcnt(0)
        """)
        self.unpack(40, 36, 37); self.unpack(41, 38, 39)

    def hop1_prep(self):
        a = self.a
        a(f"""
        v_lshrrev_b32 v8, 4, v1
        v_lshlrev_b32 v9, 10, v8             ; pp*1024
        v_and_b32 v10, 15, v1
        v_lshl_add_u32 v9, v10, 4, v9
        v_lshlrev_b32 v8, 7, v8
        s_lshr_b32 s12, s{sG}, 1             ; x
        s_lshl_b32 s6, s12, 15               ; x*32*1024
        s_lshl_b32 s7, s{sW}, 8
        s_add_u32 s6, s6, s7
        s_add_u32 s6, s6, {WS_OP}
        s_lshl_b32 s8, s12, 12               ; x*32*128
        s_lshr_b32 s7, s{sW}, 1
        s_lshl_b32 s7, s7, 3
        s_add_u32 s8, s8, s7
        s_add_u32 s8, s8, {WS_ST}            ; group 2x+1 = +2048
        s_lshl_b32 s7, s{sW}, 9
        v_lshlrev_b32 v10, 4, v10
        v_add_u32 v10, s7, v10
        v_lshrrev_b32 v11, 3, v1
        v_lshlrev_b32 v11, 2, v11
        v_add_u32 v11, s7, v11
        s_mul_i32 s73, s12, 2304
        s_lshl_b32 s7, s71, 8
        s_add_u32 s73, s73, s7
        s_add_u32 s73, s73, {WS_AP}
        """)
        self.set_addr(2, 40)
        a(f"""
        s_lshl_b32 s7, s{sW}, 8
        v_add_u32 v2, s7, v2
        v_lshlrev_b32 v41, 4, v1             ; v41 = l*16
        """)

    def hop1_stats(self):
        a = self.a
        self.poll_begin('L_h1s')
        for gp in range(2):
            a(f's_add_u32 s9, s8, {2048*gp}')
            for i in range(4):
                a(f'buffer_load_dwordx2 {vr(128+8*gp+2*i,2)}, v8, {sr(SRD_WS,4)}, s9 offen offset:{512*i} sc1')
        a('s_waitcnt vmcnt(0)')
        self.sent_check(list(range(128, 144)), 144, 145)
        self._poll_tail('L_h1s', 4)
        for gp in range(2):
            b = 128 + 8 * gp
            a(f'v_max3_f32 v{144+gp}, v{b}, v{b+2}, v{b+4}')
            a(f'v_max_f32 v{144+gp}, v{144+gp}, v{b+6}')
        self.xgroup('v_max_f32', [144, 145], [146, 147])
        for gp in range(2):
            b = 128 + 8 * gp; e = 160 + 4 * gp
            for i in range(4): a(f'v_sub_f32 v{e+i}, v{b+2*i}, v{144+gp}')
        for r in range(160, 168): a(f'v_mul_f32 v{r}, s{sLOG2E}, v{r}')
        for r in range(160, 168): a(f'v_exp_f32 v{r}, v{r}')
        for gp in range(2):
            b = 128 + 8 * gp; e = 160 + 4 * gp
            a(f'v_mul_f32 v{148+gp}, v{e}, v{b+1}')
            for i in range(1, 4): a(f'v_fmac_f32 v{148+gp}, v{e+i}, v{b+1+2*i}')
        self.xgroup('v_add_f32', [148, 149], [146, 147])
        a('v_rcp_f32 v148, v148'); a('v_rcp_f32 v149, v149')
        for gp in range(2):
            for i in range(4): a(f'v_mul_f32 v{160+4*gp+i}, v{160+4*gp+i}, v{148+gp}')

    def hop1(self, WB):
        a = self.a
        S = 128
        a(f's_mov_b32 s{sCNT}, 0')
        a.label('L_h1')
        for n in range(8):
            gp, i = n // 4, n % 4
            a(f's_add_u32 s9, s6, {16384*gp + 4096*i}')
            a(f'buffer_load_dwordx4 {vr(S+4*n,4)}, v9, {sr(SRD_WS,4)}, s9 offen sc1')
        a('s_waitcnt vmcnt(0)')
        self.sent_check(list(range(S, S + 32)), 56, 57)
        self._poll_tail('L_h1', 0)
        if self.diag: a(f'v_writelane_b32 v3, s{sCNT}, 13')
        for gp in range(2):
            o = 48 + 4 * gp; e = 160 + 4 * gp; b = S + 16 * gp
            for r in range(4): a(f'v_mul_f32 v{o+r}, v{e}, v{b+r}')
            for i in range(1, 4):
                for r in range(4): a(f'v_fmac_f32 v{o+r}, v{e+i}, v{b+4*i+r}')
        self.xgroup('v_add_f32', list(range(48, 56)), list(range(56, 64)))
        self.stamp(8)
        for r in range(48, 56): a(f'v_cvt_pk_bf16_f32 v{r}, v{r}, v{r}')
        a(f"""
        s_mov_b64 exec, 0xffff
        ds_write_b128 v10, v[48:51] offset:{LOXX2}
        ds_write_b128 v10, v[52:55] offset:{LOXX2+256}
        s_mov_b64 exec, -1
        s_waitcnt lgkmcnt(0)
        """)
        for n in range(16):
            gp, i = n // 8, n % 8
            a(f'ds_read_b32 v{128+n}, v11 offset:{LOXX2 + 256*gp + 32*i}')
        Areg = lambda i: (12, 16, 20)[i % 3]
        a('s_waitcnt lgkmcnt(15)')
        self.abuild(Areg(0), 128)
        for n in range(16):
            if n < 15:
                a(f's_waitcnt lgkmcnt({14-n})')
                self.abuild(Areg(n + 1), 128 + n + 1)
            gp, i = n // 8, n % 8
            c = '0' if n == 0 else 'v[52:55]'
            a(f'v_mfma_f32_16x16x32_bf16 v[52:55], {vr(Areg(n),4)}, {vr(WB+32*gp+4*i,4)}, {c}')
        self.setsum2([52], [60])
        self.exec_set(self.SETMASK)
        a(f'ds_write_b64 v2, v[60:61] offset:{LAP}')
        self.exec_all()
        a(f"""
        s_waitcnt lgkmcnt(0)
        s_barrier
        s_cmp_lg_u32 s{sW}, 0
        s_cbranch_scc1 L_h1_nopub
        s_mov_b64 exec, 0xffff
        ds_read_b128 v[12:15], v41 offset:{LAP}
        ds_read_b128 v[16:19], v41 offset:{LAP+256}
        ds_read_b128 v[20:23], v41 offset:{LAP+512}
        ds_read_b128 v[44:47], v41 offset:{LAP+768}
        s_waitcnt lgkmcnt(0)
        """)
        for r in range(4):
            a(f'v_add_f32 v{12+r}, v{12+r}, v{16+r}')
            a(f'v_add_f32 v{20+r}, v{20+r}, v{44+r}')
        for r in range(4): a(f'v_add_f32 v{12+r}, v{12+r}, v{20+r}')
        a(f"""
        buffer_store_dwordx4 v[12:15], v41, {sr(SRD_WS,4)}, s73 offen sc1
        s_mov_b64 exec, -1
        L_h1_nopub:
        """)
        self.stamp(9)

    def hop2(self):
        a = self.a
        GB = 104
        a(f"""
        v_lshlrev_b32 v9, 4, v1
        s_mul_i32 s7, s{sW}, 576
        v_add_u32 v8, s7, v9
        s_add_u32 s7, s7, {WS_AP}
        s_lshl_b32 s6, s{sW}, 4
        v_mov_b32 v10, s6
        v_mov_b32 v11, 0
        """)
        self.lds_wait_cnt('L_h2_ww', LCNT_W, 4, 14)
        if self.sl_h2: a(f's_sleep {self.sl_h2}')
        self.exec_set((1 << 36) - 1)
        HA, HB = 40, 104
        def hissue(base):
            a('s_mov_b32 s6, s7')
            for p in range(8):
                a(f'buffer_load_dwordx4 {vr(base+4*p,4)}, v9, {sr(SRD_WS,4)}, s6 offen sc1')
                if p < 7: a('s_add_u32 s6, s6, 2304')
        def hsum(base):
            for st in (4, 2):
                for p in range(st):
                    for r in range(4): a(f'v_add_f32 v{base+4*p+r}, v{base+4*p+r}, v{base+4*(p+st)+r}')
            for r in range(4): a(f'v_add_f32 v{20+r}, v{base+r}, v{base+4+r}')
            a(f"""
            v_add_f32 v12, v20, v21
            v_add_f32 v13, v22, v23
            v_add_f32 v12, v12, v13
            v_cmp_u_f32 vcc, v12, v12
            """)
        if self.h2_db:
            hissue(HA)
            a(f's_sleep {self.sl_stag}')
            a(f's_mov_b32 s{sCNT}, 0')
            a.label('L_h2')
            hissue(HB)
            a('s_waitcnt vmcnt(8)')
            hsum(HA)
            a('s_cbranch_vccz L_h2_done')
            hissue(HA)
            a('s_waitcnt vmcnt(8)')
            hsum(HB)
            a(f"""
            s_cbranch_vccz L_h2_done
            s_add_u32 s{sCNT}, s{sCNT}, 1
            s_cmp_lt_u32 s{sCNT}, {MAXSPIN}
            s_cbranch_scc1 L_h2
            L_h2_done:
            """)
        else:
            a(f's_mov_b32 s{sCNT}, 0')
            a.label('L_h2')
            hissue(HA)
            a('s_waitcnt vmcnt(0)')
            hsum(HA)
            self._poll_tail('L_h2', self.sl_h2p)
        if self.w2_late:
            a(f"""
            v_mov_b32 v14, {LCNT_H2}
            v_mov_b32 v15, 1
            s_mov_b64 exec, 1
            ds_add_u32 v14, v15
            """)
            self.exec_set((1 << 36) - 1)
        self.stamp(10)
        GB = 20
        av = [20, 21, 22, 23]
        T = [12, 13]
        self.rnd(av, T)
        for r in range(4): a(f'v_mul_f32 v{GB+r}, v{GB+r}, v{24+r}')
        self.rnd(av, T)
        for r in range(4): a(f'v_add_f32 v{GB+r}, v{GB+r}, v{36+r}')
        self.rnd(av, T)
        a(f'v_readfirstlane_b32 s64, v{GB}')
        self.exec_all()
        a('v_mov_b32 v16, 0'); a('v_mov_b32 v17, 0')
        self.exec_set((1 << 36) - 1)
        for r in range(4): a(f'v_subrev_f32 v{12+r}, s64, v{GB+r}')
        a('v_add_f32 v16, v12, v13'); a('v_mul_f32 v17, v12, v12')
        a('v_add_f32 v18, v14, v15'); a('v_fmac_f32 v17, v13, v13')
        a('v_add_f32 v16, v16, v18'); a('v_fmac_f32 v17, v14, v14')
        a('v_fmac_f32 v17, v15, v15')
        self.exec_all()
        self.wave_red('v_add_f32', [16, 17], [18, 19])
        a(f"""
        v_mov_b32 v18, v17
        v_mov_b32 v17, v16
        v_mov_b32 v16, s64
        v_mov_b32 v19, 0
        s_mov_b64 exec, 1
        ds_write_b128 v10, v[16:19] offset:{LST2}
        s_mov_b64 exec, -1
        s_waitcnt lgkmcnt(0)
        s_barrier                            ; Bh1
        s_waitcnt vmcnt(0)
        ds_read_b128 v[116:119], v11 offset:{LST2}
        ds_read_b128 v[120:123], v11 offset:{LST2+16}
        ds_read_b128 v[124:127], v11 offset:{LST2+32}
        ds_read_b128 v[128:131], v11 offset:{LST2+48}
        s_waitcnt lgkmcnt(0)
        v_add_f32 v16, v116, v120
        v_add_f32 v17, v124, v128
        v_add_f32 v18, v117, v121
        v_add_f32 v19, v125, v129
        v_add_f32 v16, v16, v17
        v_add_f32 v18, v18, v19
        v_mul_f32 v16, 0x43100000, v16       ; *144
        v_add_f32 v16, v16, v18
        v_mul_f32 v16, {f2u(1.0/576):#x}, v16   ; mean (f32)
        """)
        for w in range(4): a(f'v_sub_f32 v{116+4*w}, v{116+4*w}, v16')
        for w in range(4): a(f'v_add_f32 v{117+4*w}, v{117+4*w}, v{117+4*w}')
        for w in range(4): a(f'v_fmac_f32 v{117+4*w}, 0x43100000, v{116+4*w}')
        for w in range(4): a(f'v_fmac_f32 v{118+4*w}, v{116+4*w}, v{117+4*w}')
        a(f"""
        v_add_f32 v17, v118, v122
        v_add_f32 v18, v126, v130
        v_add_f32 v17, v17, v18
        v_mul_f32 v17, {f2u(1.0/576):#x}, v17
        """)
        self.ln_finish(16, 17, 18)
        self.ln_apply(av, mean=16, sd=17, tmps=T)
        for r in range(4): a(f'v_mul_f32 v{GB+r}, v{GB+r}, v{32+r}')
        self.rnd(av, T)
        for r in range(4): a(f'v_add_f32 v{GB+r}, v{GB+r}, v{28+r}')
        for r in range(4): a(f'v_cvt_pk_bf16_f32 v{GB+r}, v{GB+r}, v{GB+r}')
        self.exec_set((1 << 36) - 1)
        a(f'ds_write_b128 v8, {vr(GB,4)} offset:{LH2}')
        self.exec_all()
        a('s_waitcnt lgkmcnt(0)')
        self.stamp(11)
        a('s_barrier')
        self.end_wave()

    def reducer(self):
        a = self.a
        GB = 96
        a(f"""
        v_lshrrev_b32 v8, 2, v1
        v_mul_u32_u24 v8, 2304, v8
        v_and_b32 v9, 3, v1
        v_lshl_add_u32 v8, v9, 4, v8
        s_lshl_b32 s7, s69, 6
        s_add_u32 s6, s7, {WS_AP}
        """)
        self.srd_plain(SRD_A, POUT, 1152)
        self.poll_begin('L_r1')
        a(f"""
        v_mov_b32 v12, 0
        v_mov_b32 v13, 0
        v_mov_b32 v14, 0
        v_mov_b32 v15, 0
        s_mov_b32 exec_hi, 0
        buffer_load_dwordx4 v[12:15], v8, {sr(SRD_WS,4)}, s6 offen sc1
        s_mov_b64 exec, -1
        s_waitcnt vmcnt(0)
        """)
        av = [12, 13, 14, 15]
        self.row_red('v_add_f32', av, rors=(8, 4))
        self.xgroup('v_add_f32', av, [16, 17, 18, 19])
        a(f"""
        v_add_f32 v16, v12, v13
        v_add_f32 v17, v14, v15
        v_add_f32 v16, v16, v17
        """)
        self.poll_end('L_r1', 16, sleep=2)
        self.rnd(av, [16, 17])
        for r in range(4): a(f'v_mul_f32 v{12+r}, v{12+r}, v{24+r}')
        self.rnd(av, [16, 17])
        for r in range(4): a(f'v_add_f32 v{32+r}, v{12+r}, v{36+r}')
        self.rnd([32, 33, 34, 35], [16, 17])
        a(f"""
        v_lshlrev_b32 v10, 3, v1
        s_lshl_b32 s10, s69, 5
        v_mov_b32 v14, s{sTAG}
        v_mov_b32 v15, {WS_EPOCH}
        """)
        self.stamp(10)
        a(f's_add_u32 s7, s7, {WS_YP}')
        a(f's_sleep {self.sl_h2}')
        RA, RB = 96, 132
        def rissue(base):
            a('s_mov_b32 s6, s7')
            for i in range(9):
                a(f'buffer_load_dwordx4 {vr(base+4*i,4)}, v8, {sr(SRD_WS,4)}, s6 offen sc1')
                if i < 8: a(f's_add_u32 s6, s6, {16*2304}')
        def rsum(base):
            for (x, y) in ((0, 1), (2, 3), (4, 5), (6, 7), (0, 2), (4, 6), (0, 8)):
                for r in range(4): a(f'v_add_f32 v{base+4*x+r}, v{base+4*x+r}, v{base+4*y+r}')
            for r in range(4): a(f'v_add_f32 v{44+r}, v{base+r}, v{base+16+r}')
        rissue(RA)
        a(f's_sleep {self.sl_stag}')
        a(f's_mov_b32 s{sCNT}, 0')
        a.label('L_r2')
        rissue(RB)
        a('s_waitcnt vmcnt(9)')
        self.sent_check(list(range(RA, RA + 36)), 16, 17)
        a('s_cbranch_vccz L_r2_useA')
        rissue(RA)
        a('s_waitcnt vmcnt(9)')
        self.sent_check(list(range(RB, RB + 36)), 16, 17)
        a(f"""
        s_cbranch_vccz L_r2_useB
        s_add_u32 s{sCNT}, s{sCNT}, 1
        s_cmp_lt_u32 s{sCNT}, {MAXSPIN}
        s_cbranch_scc1 L_r2
        L_r2_useB:
        """)
        rsum(RB)
        a('s_branch L_r2_done')
        a.label('L_r2_useA')
        rsum(RA)
        a.label('L_r2_done')
        GB = 44
        yv = [GB, GB + 1, GB + 2, GB + 3]
        self.row_red('v_add_f32', yv, rors=(8, 4))
        self.xgroup('v_add_f32', yv, [16, 17, 18, 19])
        self.stamp(11)
        self.rnd(yv, [16, 17])
        for r in range(4): a(f'v_mul_f32 v{GB+r}, v{GB+r}, v{28+r}')
        self.rnd(yv, [16, 17])
        for r in range(4): a(f'v_add_f32 v{GB+r}, v{GB+r}, v{32+r}')
        a(f"""
        v_cvt_pk_bf16_f32 v12, v{GB}, v{GB+1}
        v_cvt_pk_bf16_f32 v13, v{GB+2}, v{GB+3}
        s_mov_b64 exec, 0xf
        buffer_store_dwordx2 v[12:13], v10, {sr(SRD_A,4)}, s10 offen
        s_mov_b64 exec, 1
        s_cmp_lg_u32 s69, 0
        s_cbranch_scc1 L_r_noepoch
        buffer_store_dword v14, v15, {sr(SRD_WS,4)}, 0 offen sc1
        L_r_noepoch:
        s_mov_b64 exec, -1
        """)
        self.end_wave()

    def build(self):
        self.prologue()
        self.stream()
        self.chain()
        self.a.label('L_exit')
        self.a('s_endpgm')
        self.a.label('L_code_end')
        body = self.a.text()
        return wrap(body, 256, 768, LDS_BYTES, 168)

if __name__ == '__main__':
    import argparse
    ap = argparse.ArgumentParser()
    ap.add_argument('-o', default='k.s'); ap.add_argument('--diag', action='store_true')
    ap.add_argument('--depth', type=int, default=3)
    for n, d in (('sl_stream', 16), ('sl_p1', 4), ('sl_q0', 32), ('sl_m0', 8), ('sl_h2', 16)):
        ap.add_argument('--' + n, type=int, default=d)
    ap.add_argument('--nopf', action='store_true')
    ap.add_argument('--nb1', type=int, default=16); ap.add_argument('--extra', type=int, default=0); ap.add_argument('--dk', type=int, default=3); ap.add_argument('--early_wo', type=int, default=4); ap.add_argument('--early_w2', type=int, default=4); ap.add_argument('--nohint', action='store_true')
    for n, d in (('dt_wo', 2), ('thr_wo', 8), ('dt_ffn', 2), ('thr_ffn', 6)): ap.add_argument('--' + n, type=int, default=d)
    ap.add_argument('--w2_first', action='store_true'); ap.add_argument('--pf1', action='store_true'); ap.add_argument('--pf2', action='store_true'); ap.add_argument('--pf_nont', action='store_true'); ap.add_argument('--sl_ffn', type=int, default=0); ap.add_argument('--early2', action='store_true'); ap.add_argument('--sl_q1', type=int, default=0); ap.add_argument('--cks', default='4,7,10,13'); ap.add_argument('--wo_wait', action='store_true'); ap.add_argument('--wo_first', action='store_true'); ap.add_argument('--tk', type=int, default=8); ap.add_argument('--sl_stag', type=int, default=4); ap.add_argument('--sl_hint', type=int, default=8)
    args = ap.parse_args()
    g = Gen(depth=args.depth, diag=args.diag, sl_stream=args.sl_stream, sl_p1=args.sl_p1, sl_q0=args.sl_q0, sl_m0=args.sl_m0, sl_h2=args.sl_h2, prefetch_code=not args.nopf, nb1=args.nb1, extra=args.extra, sl_hint=args.sl_hint, dk=args.dk, early_wo=args.early_wo, early_w2=args.early_w2, hint=not args.nohint, dt_wo=args.dt_wo, thr_wo=args.thr_wo, dt_ffn=args.dt_ffn, thr_ffn=args.thr_ffn, w2_first=args.w2_first, pf1=args.pf1, pf2=args.pf2, pf_nt=not args.pf_nont, sl_ffn=args.sl_ffn, early2=args.early2, sl_q1=args.sl_q1, cks=tuple(int(x) for x in args.cks.split(',')), wo_wait=args.wo_wait, ffn_first=not args.wo_first, tk=args.tk, sl_stag=args.sl_stag)
    s = g.build()
    open(args.o, 'w').write(s)
    print('hazard pads inserted:', g.a.ninsert, 'lines', s.count('\n'))
```

```python
import sys, struct
from asmgen import *

WS_EPOCH = 0x0
WS_FLAGS = 0x1000
WS_MODP = 0x2000
MODP_P = 3456 * 8
WS_QP = 0x10000
QP_P = 4096 * 8
WS_OP = 0x20000
WS_ST = 0x60000
WS_AP = 0x70000
WS_YP = 0x80000
WS_XG = 0x7E800
WS_RC = 0x7F000
WS_UX = 0x7A000
WS_DIAG = 0x800000
WS_SRD_SIZE = 0x1000000
LQ = 0x0000; LMX = 0x0200; LLS = 0x0240; LST2 = 0x0280; LF_XX = 0x02C0; LF_Q = 0x02C4; LCNT = 0x02C8; LCNT2 = 0x02CC; LCNT_V = 0x02D0; LROLE = 0x02D4; LCNT_T = 0x02D8; LCNT_Q = 0x02DC; LCNT_W = 0x02E0; LCNT_C = 0x02E4; LFAST = 0x02E8; LCNT_H2 = 0x02EC
LH2 = 0x0300
LUS = 0x1000
LUP = 0x0C00
LAP = 0x1100
LXXT = 0x1700; LOXX = 0x1C00; LOP = 0x2000
LCON = 0x4000
LOXX2 = 0x6000
LDS_BYTES = 0x6800
sB = 2; sW = 3; sG = 4; sS = 5
PX, PK, PV, PWQ, PWO, PW1, PW2, PC, PWM, POUT, PDBG, PWS = 16, 18, 20, 22, 24, 28, 30, 32, 34, 36, 38, 40
sTAG = 42; sCNT = 43
SRD_WS = 44; SRD_A = 48; SRD_B = 52
sSCALE = 56; sLOG2E = 57; sF = 58; sSLOT = 59
SCALE = 0x3DB504F3
LOG2E = 0x3FB8AA3B
MAXSPIN = 200000
NT = ' nt'
ALL = (1 << 64) - 1

def f2u(x):
    return struct.unpack('<I', struct.pack('<f', x))[0]

class VM:
    def __init__(self, a):
        self.a = a; self.q = []; self.done = 0
    def issue(self, tag, text):
        self.a(text); self.q.append(tag)
    def wait(self, tag):
        i = self.q.index(tag)
        if i < self.done: return
        n = len(self.q) - 1 - i
        self.a(f's_waitcnt vmcnt({min(n, 63)})')
        self.done = i + 1

class Gen:
    def __init__(self, depth=3, diag=False, prefetch_code=True, sl_stream=16, sl_p1=4, sl_q0=32, sl_m0=8, sl_h2=16, nb1=16, extra=0, sl_hint=8, dk=3, early_wo=4, early_w2=4, hint=True, dt_wo=2, thr_wo=8, dt_ffn=2, thr_ffn=6, w2_first=False, pf1=False, pf2=False, pf_nt=True, pf1_wave=3, sl_ffn=0, early2=False, sl_q1=0, cks=(4, 7, 10, 13), wo_wait=False, ffn_first=True, tk=8, sl_stag=4):
        self.a = Asm(); self.depth = depth; self.diag = diag
        self.prefetch_code = prefetch_code; self.nb1 = nb1; self.extra = extra; self.sl_hint = sl_hint; self.dk = dk; self.early_wo = early_wo; self.early_w2 = early_w2; self.hint = hint; self.dt_wo = dt_wo; self.thr_wo = thr_wo; self.dt_ffn = dt_ffn; self.thr_ffn = thr_ffn; self.w2_first = w2_first; self.pf1 = pf1; self.pf2 = pf2; self.pf_policy = ' nt' if pf_nt else ''; self.pf1_wave = pf1_wave; self.sl_ffn = sl_ffn; self.early2 = early2; self.sl_q1 = sl_q1; self.cks = cks; self.wo_wait = wo_wait; self.ffn_first = ffn_first; self.tk = tk; self.sl_stag = sl_stag
        self.sl_stream = sl_stream; self.sl_p1 = sl_p1; self.sl_q0 = sl_q0; self.sl_m0 = sl_m0; self.sl_h2 = sl_h2

    def stamp(self, idx):
        if not self.diag: return
        self.a(f'''
        s_memrealtime s[92:93]
        s_waitcnt lgkmcnt(0)
        v_writelane_b32 v3, s92, {idx}
        ''')
    def exec_set(self, mask):
        a = self.a
        lo = mask & 0xffffffff; hi = mask >> 32
        if mask == ALL: a('s_mov_b64 exec, -1')
        elif hi == 0 and lo <= 0x7fffffff and False: a(f's_mov_b64 exec, {lo:#x}')
        else:
            a(f's_mov_b32 exec_lo, {lo:#x}'); a(f's_mov_b32 exec_hi, {hi:#x}')
    def exec_all(self): self.a('s_mov_b64 exec, -1')
    def rnd(self, regs, tmps):
        a = self.a
        regs = list(regs)
        if isinstance(tmps, int): tmps = [tmps]
        pairs = [(regs[i], regs[i + 1] if i + 1 < len(regs) else None) for i in range(0, len(regs), 2)]
        for c in range(0, len(pairs), len(tmps)):
            grp = pairs[c:c + len(tmps)]
            for (x, y), t in zip(grp, tmps): a(f'v_cvt_pk_bf16_f32 v{t}, v{x}, v{y if y is not None else x}')
            for (x, y), t in zip(grp, tmps):
                a(f'v_lshlrev_b32 v{x}, 16, v{t}')
                if y is not None: a(f'v_and_b32 v{y}, 0xffff0000, v{t}')
    def unpack(self, src, lo, hi):
        self.a(f'v_lshlrev_b32 v{lo}, 16, v{src}')
        self.a(f'v_and_b32 v{hi}, 0xffff0000, v{src}')
    def xstep(self, op, regs, tmps, st):
        a = self.a
        sw = 'v_permlane16_swap_b32' if st == 16 else 'v_permlane32_swap_b32'
        n = len(regs)
        for i, r in enumerate(regs): a(f'v_mov_b32 v{tmps[i]}, v{r}')
        for i, r in enumerate(regs): a(f'{sw} v{r}, v{tmps[i]}')
        for i, r in enumerate(regs): a(f'{op} v{r}, v{r}, v{tmps[i]}')
    def xgroup(self, op, regs, tmps, steps=(16, 32)):
        for st in steps: self.xstep(op, regs, tmps, st)
    def row_red(self, op, regs, rors=(8, 4, 2, 1)):
        a = self.a
        for n in rors:
            for r in regs:
                a(f'{op}_dpp v{r}, v{r}, v{r} row_ror:{n} row_mask:0xf bank_mask:0xf')
    def wave_red(self, op, regs, tmps):
        self.row_red(op, regs)
        self.xgroup(op, regs, tmps)
    def masks(self, m0, t):
        a = self.a
        a(f'''
        v_and_b32 v{t}, 1, v1
        v_lshlrev_b32 v{t}, 4, v{t}
        v_mov_b32 v{m0}, 0xffff
        v_lshlrev_b32 v{m0+3}, v{t}, v{m0}
        v_bfe_u32 v{t}, v1, 1, 2
        ''')
        for w in range(4):
            a(f'v_cmp_eq_u32 vcc, {w}, v{t}')
            a(f'v_cndmask_b32 v{m0+w}, 0, v{m0+3}, vcc')
    def abuild(self, dst, xx, m0=4):
        for w in range(4):
            self.a(f'v_and_b32 v{dst+w}, v{xx}, v{m0+w}')
    def poll_begin(self, name):
        self.a(f's_mov_b32 s{sCNT}, 0')
        self.a.label(name)
    def _poll_tail(self, name, sleep):
        a = self.a
        a(f'''
        s_cbranch_vccz {name}_done
        s_add_u32 s{sCNT}, s{sCNT}, 1
        s_cmp_lt_u32 s{sCNT}, {MAXSPIN}
        s_cbranch_scc0 {name}_done
        ''')
        if sleep: a(f's_sleep {sleep}')
        a(f'''
        s_branch {name}
        {name}_done:
        ''')
    def poll_end(self, name, chk, sleep=0):
        self.a(f'v_cmp_u_f32 vcc, v{chk}, v{chk}')
        self._poll_tail(name, sleep)
    def poll_end_nz(self, name, chk, sleep=1):
        self.a(f'v_cmp_ne_u32 vcc, 0, v{chk}')
        self._poll_tail(name, sleep)
    def sent_check(self, regs, t1, t2):
        a = self.a
        regs = list(regs)
        acc = [t1, t2]
        a(f'v_max3_u32 v{t1}, v{regs[0]}, v{regs[1]}, v{regs[2]}')
        a(f'v_max3_u32 v{t2}, v{regs[3]}, v{regs[4]}, v{regs[5]}')
        i = 6; k = 0
        while i < len(regs):
            r2 = regs[i + 1] if i + 1 < len(regs) else regs[i]
            a(f'v_max3_u32 v{acc[k]}, v{acc[k]}, v{regs[i]}, v{r2}')
            i += 2; k ^= 1
        a(f'v_max_u32 v{t1}, v{t1}, v{t2}')
        a(f'v_cmp_eq_u32 vcc, -1, v{t1}')
    def tag_check(self, tags, t1, t2):
        a = self.a
        tags = list(tags)
        a(f'v_min_u32 v{t1}, v{tags[0]}, v{tags[1]}')
        a(f'v_max_u32 v{t2}, v{tags[0]}, v{tags[1]}')
        for i in range(2, len(tags) - 1, 2):
            a(f'v_min3_u32 v{t1}, v{t1}, v{tags[i]}, v{tags[i+1]}')
            a(f'v_max3_u32 v{t2}, v{t2}, v{tags[i]}, v{tags[i+1]}')
        a(f'v_xor_b32 v{t1}, s{sTAG}, v{t1}')
        a(f'v_xor_b32 v{t2}, s{sTAG}, v{t2}')
        a(f'v_or_b32 v{t1}, v{t1}, v{t2}')
    def shint(self, name, base, offs, s0, sleep=None):
        a = self.a
        sleep = self.sl_hint if sleep is None else sleep
        a(f's_mov_b32 s{sCNT}, 0')
        a.label(name)
        for i, o in enumerate(offs): a(f's_load_dword s{s0+i}, {sr(base,2)}, {o} glc')
        a('s_waitcnt lgkmcnt(0)')
        a(f's_xor_b32 s6, s{s0}, s{sTAG}') if False else None
        a(f's_xor_b32 s15, s{s0}, s{sTAG}')
        for i in range(1, len(offs)):
            a(f's_xor_b32 s14, s{s0+i}, s{sTAG}')
            a(f's_or_b32 s15, s15, s14')
        a(f'''
        s_cmp_eq_u32 s15, 0
        s_cbranch_scc1 {name}_done
        s_add_u32 s{sCNT}, s{sCNT}, 1
        s_cmp_lt_u32 s{sCNT}, {MAXSPIN}
        s_cbranch_scc0 {name}_done
        s_sleep {sleep}
        s_branch {name}
        {name}_done:
        ''')
    def lds_wait_cnt(self, name, addr, n, vt):
        a = self.a
        a(f'''
        s_mov_b32 s{sCNT}, 0
        v_mov_b32 v{vt}, {addr}
        {name}:
        ds_read_b32 v{vt+1}, v{vt}
        s_add_u32 s{sCNT}, s{sCNT}, 1
        s_cmp_lt_u32 s{sCNT}, {MAXSPIN*8}
        s_cbranch_scc0 {name}_done
        s_waitcnt lgkmcnt(0)
        v_cmp_ne_u32 vcc, {n}, v{vt+1}
        s_cbranch_vccz {name}_done
        s_sleep 1
        s_branch {name}
        {name}_done:
        s_waitcnt lgkmcnt(0)
        ''')
    def lds_wait_flag(self, name, addr, vt):
        a = self.a
        a(f'''
        s_mov_b32 s{sCNT}, 0
        v_mov_b32 v{vt}, {addr}
        {name}:
        ds_read_b32 v{vt+1}, v{vt}
        s_waitcnt lgkmcnt(0)
        v_cmp_ne_u32 vcc, 1, v{vt+1}
        s_cbranch_vccz {name}_done
        s_add_u32 s{sCNT}, s{sCNT}, 1
        s_cmp_lt_u32 s{sCNT}, {MAXSPIN*8}
        s_cbranch_scc0 {name}_done
        s_sleep 1
        s_branch {name}
        {name}_done:
        ''')
    def flags_check(self, name, vo, vd, sleep=16):
        a = self.a
        a(f'''
        v_lshlrev_b32 v{vo}, 4, v1
        s_mov_b32 s{sCNT}, 0
        s_mov_b32 s6, {WS_FLAGS}
        {name}:
        buffer_load_dwordx4 {vr(vd,4)}, v{vo}, {sr(SRD_WS,4)}, s6 offen sc1
        s_waitcnt vmcnt(0)
        ''')
        self.tag_check([vd, vd + 1, vd + 2, vd + 3], vo + 1, vo + 2)
        self.a(f'v_cmp_ne_u32 vcc, 0, v{vo+1}')
        self._poll_tail(name, sleep)
    def srd(self, s, ptr, off_s, size):
        a = self.a
        a(f's_add_u32 s{s}, s{ptr}, s{off_s}')
        a(f's_addc_u32 s{s+1}, s{ptr+1}, 0')
        a(f's_mov_b32 s{s+2}, {size}')
        a(f's_mov_b32 s{s+3}, 0x20000')
    def srd_plain(self, s, ptr, size):
        a = self.a
        a(f's_mov_b32 s{s}, s{ptr}'); a(f's_mov_b32 s{s+1}, s{ptr+1}')
        a(f's_mov_b32 s{s+2}, {size}'); a(f's_mov_b32 s{s+3}, 0x20000')
    def setsum2(self, ds, outs):
        a = self.a
        for d in ds:
            a(f'v_permlane32_swap_b32 v{d}, v{d+2}')
            a(f'v_permlane32_swap_b32 v{d+1}, v{d+3}')
        for d, o in zip(ds, outs):
            a(f'v_add_f32_dpp v{o}, v{d+2}, v{d} row_ror:8 row_mask:0xf bank_mask:0xf')
            a(f'v_add_f32_dpp v{o+1}, v{d+3}, v{d+1} row_ror:8 row_mask:0xf bank_mask:0xf')
    def setsum4(self, ds, outs):
        a = self.a
        self.setsum2(ds, outs)
        for o in outs:
            a(f'v_mov_b32 v{o+2}, v{o}')
            a(f'v_mov_b32 v{o+3}, v{o+1}')
        for o in outs:
            a(f'v_permlane32_swap_b32 v{o}, v{o+2}')
            a(f'v_permlane32_swap_b32 v{o+1}, v{o+3}')
    def set_addr4(self, dst, t):
        a = self.a
        a(f'''
        v_and_b32 v{dst}, 7, v1
        v_lshlrev_b32 v{dst}, 5, v{dst}
        v_bfe_u32 v{t}, v1, 4, 1
        v_lshl_add_u32 v{dst}, v{t}, 4, v{dst}
        ''')
    def quad_gather(self, src, dst):
        for j in range(4):
            self.a(f'v_mov_b32_dpp v{dst+j}, v{src} quad_perm:[{j},{j},{j},{j}] row_mask:0xf bank_mask:0xf')
    def set_addr(self, dst, t):
        a = self.a
        a(f'''
        v_and_b32 v{dst}, 7, v1
        v_lshlrev_b32 v{dst}, 5, v{dst}
        v_bfe_u32 v{t}, v1, 4, 1
        v_lshl_add_u32 v{dst}, v{t}, 4, v{dst}
        v_lshrrev_b32 v{t}, 5, v1
        v_lshl_add_u32 v{dst}, v{t}, 3, v{dst}
        ''')
    SETMASK = 0x00FF00FF00FF00FF
    def silu(self, regs, tmps):
        a = self.a
        for r, t in zip(regs, tmps): a(f'v_mul_f32 v{t}, 0xbfb8aa3b, v{r}')
        for r, t in zip(regs, tmps): a(f'v_exp_f32 v{t}, v{t}')
        for r, t in zip(regs, tmps): a(f'v_add_f32 v{t}, 1.0, v{t}')
        for r, t in zip(regs, tmps): a(f'v_rcp_f32 v{t}, v{t}')
        for r, t in zip(regs, tmps): a(f'v_mul_f32 v{r}, v{r}, v{t}')
    def end_wave(self):
        a = self.a
        if self.diag:
            self.stamp(15)
            a(f'''
            s_memtime s[86:87]
            s_waitcnt lgkmcnt(0)
            s_sub_u32 s86, s86, s88
            v_writelane_b32 v3, s86, 14
            s_mov_b64 exec, -1
            s_lshl_b32 s6, s{sB}, 10
            s_lshl_b32 s7, s94, 6
            s_add_u32 s6, s6, s7
            s_add_u32 s6, s6, {WS_DIAG}
            v_lshlrev_b32 v2, 2, v1
            s_mov_b64 exec, 0xffff
            buffer_store_dword v3, v2, {sr(SRD_WS,4)}, s6 offen
            ''')
        a('s_endpgm')

    def prologue(self):
        a = self.a
        if self.diag: a('s_memrealtime s[90:91]'); a('s_memtime s[88:89]')
        a(f'''
        s_cmp_ge_u32 s{sB}, 256
        s_cbranch_scc1 L_exit
        s_load_dwordx16 s[16:31], s[0:1], 0
        s_load_dwordx8 s[32:39], s[0:1], 64
        s_load_dwordx2 s[40:41], s[0:1], 96
        ''')
        if self.prefetch_code:
            a(f'''
            s_getpc_b64 s[64:65]
            L_pc:
            s_sub_u32 s{SRD_A}, s64, (L_pc - {KNAME})
            s_subb_u32 s{SRD_A+1}, s65, 0
            s_mov_b32 s{SRD_A+2}, (L_code_end - {KNAME})
            s_mov_b32 s{SRD_A+3}, 0x20000
            v_lshlrev_b32 v2, 7, v0
            buffer_load_dword v167, v2, {sr(SRD_A,4)}, 0 offen
            ''')
        a(f'''
        v_lshrrev_b32 v2, 6, v0
        v_and_b32 v1, 63, v0
        v_readfirstlane_b32 s{sW}, v2
        s_and_b32 s6, s{sB}, 7
        s_mov_b32 s94, s{sW}
        s_lshr_b32 s7, s{sB}, 3
        s_lshl_b32 s{sG}, s6, 1
        s_lshr_b32 s8, s7, 4
        s_add_u32 s{sG}, s{sG}, s8
        s_and_b32 s{sS}, s7, 15
        s_lshl_b32 s{sSLOT}, s{sG}, 4
        s_add_u32 s{sSLOT}, s{sSLOT}, s{sS}
        s_mul_i32 s{sF}, s{sG}, 9
        s_add_u32 s{sF}, s{sF}, s{sS}
        s_sub_u32 s{sF}, s{sF}, 7
        s_mov_b32 s{sSCALE}, {SCALE:#x}
        s_mov_b32 s{sLOG2E}, {LOG2E:#x}
        v_mov_b32 v3, 0
        s_waitcnt lgkmcnt(0)
        s_mov_b32 s{SRD_WS}, s{PWS}
        s_mov_b32 s{SRD_WS+1}, s{PWS+1}
        s_mov_b32 s{SRD_WS+2}, {WS_SRD_SIZE}
        s_mov_b32 s{SRD_WS+3}, 0x20000
        ''')
        if self.diag: a('v_writelane_b32 v3, s90, 0')
        a(f'''
        s_cmp_ge_u32 s{sW}, 8
        s_cbranch_scc1 L_chain
        ''')

    def stream(self):
        a = self.a; DK = self.dk; DV = self.depth
        KB, VB = 40, 104
        SB = 20; PM = 28
        a(f"""
        s_load_dword s{sTAG}, {sr(PWS,2)}, {WS_EPOCH}
        s_lshl_b32 s6, s{sG}, 21
        s_lshl_b32 s7, s{sS}, 17
        s_add_u32 s6, s6, s7
        s_lshl_b32 s7, s{sW}, 14
        s_add_u32 s6, s6, s7
        """)
        self.srd(SRD_A, PK, 6, 16384)
        self.srd(SRD_B, PV, 6, 16384)
        a(f"""
        v_lshrrev_b32 v8, 4, v1
        v_bfe_u32 v9, v1, 2, 2
        v_and_b32 v10, 3, v1
        v_lshlrev_b32 v8, 6, v8
        v_lshlrev_b32 v9, 8, v9
        v_lshlrev_b32 v10, 4, v10
        v_add3_u32 v36, v8, v9, v10          ; K voffset
        v_lshlrev_b32 v37, 4, v1             ; V voffset
        s_mov_b32 s61, 4096
        s_mov_b32 s62, 8192
        s_mov_b32 s63, 12288
        s_mov_b32 s71, 0
        """)
        if self.prio47:
            a(f"""
            s_cmp_lt_u32 s{sW}, 4
            s_cbranch_scc1 L_noprio
            s_setprio {self.prio47}
            L_noprio:
            """)
        a('s_barrier')
        vm = VM(a)
        def ld(kind, t):
            so = '0' if t < 4 else f's{60 + t // 4}'
            off = (t % 4) * 1024
            if kind == 'K':
                return f'buffer_load_dwordx4 {vr(KB+4*t,4)}, v36, {sr(SRD_A,4)}, {so} offen offset:{off}{NT}'
            return f'buffer_load_dwordx4 {vr(VB+4*t,4)}, v37, {sr(SRD_B,4)}, {so} offen offset:{off}{NT}'
        seq = [('K', t) for t in range(16)] + [('V', t) for t in range(16)]
        if self.sl_stream: a(f's_sleep {self.sl_stream}')
        st = {'pos': 0}
        def pump(depth):
            pos = st['pos']
            if pos >= 32: return
            if pos >= depth: vm.wait(seq[pos - depth])
            vm.issue(seq[pos], ld(*seq[pos]))
            st['pos'] = pos + 1
            if self.prio47 and pos + 1 == self.prio_off: a('s_setprio 0')
        for _ in range(DK): pump(DK)
        self.stamp(1)
        self.masks(4, 8)
        a(f"""
        v_bfe_u32 v16, v1, 3, 1              ; head
        v_lshlrev_b32 v38, 5, v16
        s_lshl_b32 s6, s{sW}, 2
        v_add_u32 v39, s6, v38               ; head*32 + w*4
        v_lshlrev_b32 v16, 8, v16
        v_lshrrev_b32 v17, 4, v1
        v_lshlrev_b32 v17, 6, v17
        v_and_b32 v18, 3, v1
        v_lshlrev_b32 v18, 4, v18
        v_add3_u32 v0, v16, v17, v18
        v_lshrrev_b32 v8, 5, v1
        v_lshlrev_b32 v8, 12, v8
        v_and_b32 v9, 31, v1
        v_lshlrev_b32 v9, 2, v9
        s_lshl_b32 s6, s{sW}, 7
        v_add3_u32 v2, v8, v9, s6
        s_lshl_b32 s8, s{sSLOT}, 10
        s_add_u32 s8, s8, {WS_OP}
        s_mov_b32 s66, 0xf0f0f0f0
        s_mov_b32 s67, 0xf0f0f0f0
        """)
        while st['pos'] < 16: pump(DK)
        a(f"""
        v_lshrrev_b32 v8, 5, v1
        v_lshlrev_b32 v8, 9, v8
        v_and_b32 v9, 15, v1
        v_lshl_add_u32 v8, v9, 5, v8
        v_bfe_u32 v9, v1, 4, 1
        v_lshl_add_u32 v8, v9, 4, v8
        s_lshl_b32 s6, s{sW}, 10
        v_add_u32 v36, s6, v8
        s_waitcnt lgkmcnt(0)
        s_add_u32 s{sTAG}, s{sTAG}, 1
        """)
        def check(k, blocking):
            lab = f'L_ck{k}'
            a(f"""
            s_cmp_lg_u32 s71, 0
            s_cbranch_scc1 {lab}_skip
            v_mov_b32 v16, {LF_Q}
            s_mov_b32 s{sCNT}, 0
            {lab}:
            ds_read_b32 v17, v16
            s_waitcnt lgkmcnt(0)
            v_readfirstlane_b32 s72, v17
            s_cmp_lg_u32 s72, 0
            s_cbranch_scc1 {lab}_go
            """)
            if blocking:
                a(f"""
                s_add_u32 s{sCNT}, s{sCNT}, 1
                s_cmp_lt_u32 s{sCNT}, {MAXSPIN*8}
                s_cbranch_scc0 {lab}_go
                s_sleep 1
                s_branch {lab}
                """)
            else:
                a(f's_branch {lab}_skip')
            a.label(f'{lab}_go')
            i = vm.q.index(('K', 15)); n = len(vm.q) - 1 - i
            a(f's_waitcnt vmcnt({n})')
            a(f's_call_b64 s[74:75], L_qk')
            a.label(f'{lab}_skip')
        cks = sorted(self.cks)
        while st['pos'] < 32:
            pump(DV)
            vpos = st['pos'] - 16
            if vpos == self.tk:
                a(f"""
                v_mov_b32 v16, {LCNT_T}
                v_mov_b32 v17, 1
                s_mov_b64 exec, 1
                ds_add_u32 v16, v17
                s_mov_b64 exec, -1
                """)
            if vpos in cks and vpos < 16: check(vpos, False)
        a(f"""
        v_mov_b32 v16, {LCNT_V}
        v_mov_b32 v17, 1
        s_mov_b64 exec, 1
        ds_add_u32 v16, v17
        s_mov_b64 exec, -1
        """)
        self.stamp(2)
        check(16, True)
        self.stamp(5)
        def pv(t):
            p, s_ = t // 2, t % 2
            A = 16 if t % 2 == 0 else 8
            for w in range(4):
                srcr = SB + p if (w >> 1) == s_ else PM + p
                a(f'v_and_b32 v{A+w}, v{srcr}, v{4+w}')
            vm.wait(('V', t))
            c = '0' if t == 0 else 'v[12:15]'
            a(f'v_mfma_f32_16x16x32_bf16 v[12:15], {vr(A,4)}, {vr(VB+4*t,4)}, {c}')
        for t in range(16): pv(t)
        a(f"""
        s_lshr_b32 s6, s{sW}, 2
        s_lshl_b32 s6, s6, 5
        v_lshrrev_b32 v0, 5, v1
        v_lshlrev_b32 v0, 4, v0
        v_add_u32 v0, s6, v0
        v_xor_b32 v37, 16, v0
        v_mov_b32 v16, {LCNT}
        v_mov_b32 v17, 1
        ds_write_b128 v36, v[12:15] offset:{LOP}
        s_mov_b64 exec, 1
        ds_add_u32 v16, v17
        s_mov_b64 exec, -1
        """)
        self.stamp(6)
        a(f"""
        s_mov_b32 s{sCNT}, 0
        L_sbar:
        ds_read_b32 v17, v16
        s_add_u32 s{sCNT}, s{sCNT}, 1
        s_cmp_lt_u32 s{sCNT}, {MAXSPIN*8}
        s_cbranch_scc0 L_sbar_done
        s_waitcnt lgkmcnt(0)
        v_cmp_ne_u32 vcc, 8, v17
        s_cbranch_vccnz L_sbar
        L_sbar_done:
        s_waitcnt lgkmcnt(0)
        ds_read_b128 v[8:11], v0 offset:{LMX}
        ds_read_b128 v[12:15], v37 offset:{LMX}
        """)
        for i in range(4): a(f'ds_read_b32 v{16+i}, v2 offset:{LOP + 1024*i}')
        a(f"""
        s_waitcnt lgkmcnt(4)
        v_max3_f32 v12, v12, v13, v14
        v_max3_f32 v20, v8, v9, v10
        v_max3_f32 v12, v12, v15, v11
        v_max_f32 v12, v12, v20
        """)
        for i in range(4): a(f'v_sub_f32 v{8+i}, v{8+i}, v12')
        for i in range(4): a(f'v_mul_f32 v{8+i}, s{sLOG2E}, v{8+i}')
        for i in range(4): a(f'v_exp_f32 v{8+i}, v{8+i}')
        a(f"""
        s_waitcnt lgkmcnt(0)
        v_mul_f32 v16, v16, v8
        v_mul_f32 v18, v18, v10
        v_fmac_f32 v16, v17, v9
        v_fmac_f32 v18, v19, v11
        v_add_f32 v16, v16, v18
        """)
        self.xstep('v_add_f32', [16], [17], 32)
        self.quad_gather(16, 20)
        a(f"""
        s_mov_b32 exec_lo, 0x11111111
        s_mov_b32 exec_hi, 0
        buffer_store_dwordx4 v[20:23], v2, {sr(SRD_WS,4)}, s8 offen sc1
        s_mov_b64 exec, -1
        """)
        self.stamp(8)
        a(f"""
        v_mov_b32 v16, {LROLE}
        s_mov_b32 s{sCNT}, 0
        L_s_role:
        ds_read_b32 v17, v16
        s_add_u32 s{sCNT}, s{sCNT}, 1
        s_cmp_lt_u32 s{sCNT}, {MAXSPIN*8}
        s_cbranch_scc0 L_s_role_done
        s_waitcnt lgkmcnt(0)
        v_readfirstlane_b32 s70, v17
        s_cmp_eq_u32 s70, 0
        s_cbranch_scc1 L_s_role
        L_s_role_done:
        s_waitcnt lgkmcnt(0)
        s_mov_b32 s71, 0
        s_sub_u32 s6, s70, 10
        s_cmp_ge_u32 s6, 18
        s_cbranch_scc1 L_s_sig
        s_cmp_ge_u32 s{sW}, 4
        s_cbranch_scc1 L_s_sig
        s_mov_b32 s71, 1
        """)
        self.stream_consts()
        a(f"""
        L_s_sig:
        v_mov_b32 v16, {LCNT2}
        v_mov_b32 v17, 1
        s_mov_b64 exec, 1
        ds_add_u32 v16, v17
        s_mov_b64 exec, -1
        """)
        self.stamp(7)
        a(f"""
        s_cmp_eq_u32 s71, 1
        s_cbranch_scc1 L_s_ffn
        """)
        self.end_wave()
        a.label('L_s_ffn')
        self.stream_consts_finish()
        self.stamp(12)
        self.hop2()
        a.label('L_qk')
        self.stamp(3)
        a(f"""
        ds_read_b128 v[8:11], v0 offset:{LQ}
        s_waitcnt lgkmcnt(0)
        """)
        for r in range(4): a(f'v_cndmask_b32 v{12+r}, 0, v{8+r}, s[66:67]')
        for r in range(4): a(f'v_cndmask_b32 v{8+r}, v{8+r}, 0, s[66:67]')
        def dreg(p): return 16 if p == 0 else KB + 4 * (2 * p - 2)
        for p in range(8):
            a(f'v_mfma_f32_16x16x32_bf16 {vr(dreg(p),4)}, {vr(KB+8*p,4)}, v[8:11], 0')
            a(f'v_mfma_f32_16x16x32_bf16 {vr(dreg(p),4)}, {vr(KB+8*p+4,4)}, v[12:15], {vr(dreg(p),4)}')
        for p0 in range(0, 8, 4):
            for j, pat in enumerate(('[0,0,0,0]', '[1,1,1,1]', '[2,2,2,2]', '[3,3,3,3]')):
                for p in range(p0, p0 + 4):
                    d = dreg(p); s = SB + p
                    if j == 0: a(f'v_mov_b32_dpp v{s}, v{d} quad_perm:{pat} row_mask:0xf bank_mask:0xf')
                    else: a(f'v_add_f32_dpp v{s}, v{d+j}, v{s} quad_perm:{pat} row_mask:0xf bank_mask:0xf')
        sc = list(range(SB, SB + 8))
        T4 = [8, 9, 10, 11]
        self.rnd(sc, T4)
        for s in sc: a(f'v_mul_f32 v{s}, s{sSCALE}, v{s}')
        self.rnd(sc, T4)
        a(f'v_max3_f32 v16, v{SB}, v{SB+1}, v{SB+2}')
        a(f'v_max3_f32 v17, v{SB+3}, v{SB+4}, v{SB+5}')
        a(f'v_max3_f32 v16, v16, v{SB+6}, v{SB+7}')
        a(f'v_max_f32 v16, v16, v17')
        a(f'v_max_f32_dpp v16, v16, v16 row_half_mirror row_mask:0xf bank_mask:0xf')
        self.xgroup('v_max_f32', [16], [17])
        a(f"""
        s_mov_b64 exec, 0x101
        ds_write_b32 v39, v16 offset:{LMX}
        s_mov_b64 exec, -1
        v_mul_f32 v9, s{sLOG2E}, v16
        v_sub_f32 v9, 0, v9
        """)
        for s in sc: a(f'v_fma_f32 v{s}, v{s}, s{sLOG2E}, v9')
        for s in sc: a(f'v_exp_f32 v{s}, v{s}')
        a(f'v_add_f32 v8, v{SB}, v{SB+1}'); a(f'v_add_f32 v9, v{SB+2}, v{SB+3}')
        a(f'v_add_f32 v10, v{SB+4}, v{SB+5}'); a(f'v_add_f32 v11, v{SB+6}, v{SB+7}')
        for s in sc: a(f'v_cvt_pk_bf16_f32 v{s}, v{s}, v{s}')
        a('v_add_f32 v8, v8, v9'); a('v_add_f32 v10, v10, v11'); a('v_add_f32 v10, v10, v8')
        for p in range(8): a(f'v_mov_b32_dpp v{PM+p}, v{SB+p} row_half_mirror row_mask:0xf bank_mask:0xf')
        a(f'v_add_f32_dpp v10, v10, v10 row_half_mirror row_mask:0xf bank_mask:0xf')
        self.xgroup('v_add_f32', [10], [17])
        a(f"""
        s_mov_b64 exec, 0x101
        ds_write_b32 v39, v10 offset:{LLS}
        v_mov_b32 v16, {LCNT_Q}
        v_mov_b32 v17, 1
        s_mov_b64 exec, 1
        ds_add_u32 v16, v17
        s_mov_b64 exec, -1
        s_mov_b32 s71, 1
        """)
        self.stamp(4)
        a('s_setpc_b64 s[74:75]')

    def w2_loads(self, WB):
        a = self.a
        a(f'''
        s_mul_i32 s6, s{sF}, {32*1152}
        s_lshl_b32 s7, s{sW}, 7
        s_add_u32 s6, s6, s7
        ''')
        self.srd(SRD_B, PW2, 6, f'{4608*1152}')
        a(f'''
        s_sub_u32 s{SRD_B+2}, s{SRD_B+2}, s6
        v_lshrrev_b32 v8, 3, v1
        v_mul_u32_u24 v8, 1152, v8
        v_and_b32 v9, 7, v1
        v_lshl_add_u32 v45, v9, 4, v8
        s_mul_i32 s74, s{sF}, 2304
        s_lshl_b32 s7, s{sW}, 8
        s_add_u32 s74, s74, s7
        s_add_u32 s74, s74, {WS_YP}
        ''')
    def gemv1_prep(self):
        a = self.a
        a(f'''
        s_and_b32 s75, s{sF}, 1              ; kh
        s_mul_i32 s6, s75, {288*4}
        s_mul_i32 s7, s{sW}, {72*4}
        s_add_u32 s6, s6, s7
        v_lshrrev_b32 v39, 3, v1
        v_lshlrev_b32 v39, 2, v39            ; v39 = (l>>3)*4
        v_add_u32 v36, s6, v39
        v_add_u32 v36, {LH2}, v36
        ''')
        self.set_addr(40, 41)
        a(f'''
        s_lshl_b32 s6, s{sW}, 8
        v_add_u32 v37, s6, v40
        v_lshlrev_b32 v38, 2, v1             ; v38 = l*4
        s_lshl_b32 s76, s{sF}, 7
        s_add_u32 s76, s76, {WS_UX}
        s_xor_b32 s77, s{sF}, 1
        s_lshl_b32 s77, s77, 7
        s_add_u32 s77, s77, {WS_UX}
        v_and_b32 v41, 31, v1
        v_lshlrev_b32 v41, 2, v41            ; v41 = (l&31)*4
        ''')
        self.set_addr4(42, 43)
    def gemv1(self, KB, XB, extra_after):
        a = self.a
        N = 9
        for i in range(N): a(f'ds_read_b32 v{XB+i}, v36 offset:{32*i}')
        Areg = lambda i: (16, 20, 28)[i % 3]
        a(f's_waitcnt lgkmcnt({N-1})')
        self.abuild(Areg(0), XB)
        a(f's_waitcnt vmcnt({extra_after})')
        for i in range(N):
            if i < N - 1:
                a(f's_waitcnt lgkmcnt({N-2-i})')
                self.abuild(Areg(i + 1), XB + i + 1)
            c = '0' if i == 0 else 'v[12:15]'
            a(f'v_mfma_f32_16x16x32_bf16 v[12:15], {vr(Areg(i),4)}, {vr(KB+4*i,4)}, {c}')
        self.setsum2([12], [24])
        self.exec_set(self.SETMASK)
        a(f'ds_write_b64 v37, v[24:25] offset:{LUP}')
        self.exec_all()
        a('s_waitcnt lgkmcnt(0)')
        a('s_barrier')
        a(f'''
        s_cmp_lg_u32 s{sW}, 0
        s_cbranch_scc1 L_g1_skip
        ds_read_b32 v16, v38 offset:{LUP}
        ds_read_b32 v17, v38 offset:{LUP+256}
        ds_read_b32 v18, v38 offset:{LUP+512}
        ds_read_b32 v19, v38 offset:{LUP+768}
        s_mov_b32 s66, -1
        s_mov_b32 s67, 0                     ; s[66:67] = lanes 0..31
        s_cmp_eq_u32 s75, 0
        s_cbranch_scc1 L_g1_k0
        s_mov_b32 s66, 0
        s_mov_b32 s67, -1
        L_g1_k0:
        s_waitcnt lgkmcnt(0)
        v_add_f32 v16, v16, v17
        v_add_f32 v18, v18, v19
        v_add_f32 v16, v16, v18
        ''')
        self.quad_gather(16, 20)
        a(f'''
        s_not_b64 s[68:69], s[66:67]
        s_and_b32 s68, s68, 0x11111111
        s_and_b32 s69, s69, 0x11111111
        s_mov_b64 exec, s[68:69]
        buffer_store_dwordx4 v[20:23], v41, {sr(SRD_WS,4)}, s76 offen sc1
        s_mov_b64 exec, s[66:67]
        ''')
        self.poll_begin('L_ux')
        a(f'''
        buffer_load_dword v17, v41, {sr(SRD_WS,4)}, s77 offen sc1
        s_waitcnt vmcnt(0)
        ''')
        self.poll_end('L_ux', 17)
        a('v_add_f32 v16, v16, v17')
        self.rnd([16], [20])
        self.silu([16], [20])
        a(f'''
        v_cvt_pk_bf16_f32 v16, v16, v16
        ds_write_b32 v41, v16 offset:{LUS}
        s_mov_b64 exec, -1
        s_waitcnt lgkmcnt(0)
        L_g1_skip:
        ''')
        a('s_barrier')

    def gemv2(self, WB, TB):
        a = self.a
        for ro in range(4): a(f'ds_read_b32 v{16+ro}, v39 offset:{LUS + 32*ro}')
        DB = TB + 16
        for ro in range(4):
            a(f's_waitcnt lgkmcnt({3-ro})')
            self.abuild(TB + 4 * ro, 16 + ro)
        a('s_waitcnt vmcnt(0)')
        for ro in range(4):
            for k in range(2):
                c = '0' if ro == 0 else vr(DB + 4 * k, 4)
                a(f'v_mfma_f32_16x16x32_bf16 {vr(DB+4*k,4)}, {vr(TB+4*ro,4)}, {vr(WB+16*k+4*ro,4)}, {c}')
        a(f'''
        s_cmp_lg_u32 s{sW}, 0
        s_cbranch_scc1 L_g2_no3
        ''')
        for ro in range(4):
            c = '0' if ro == 0 else vr(DB + 8, 4)
            a(f'v_mfma_f32_16x16x32_bf16 {vr(DB+8,4)}, {vr(TB+4*ro,4)}, {vr(WB+32+4*ro,4)}, {c}')
        a('s_nop 7')
        self.setsum4([DB + 8], [DB + 20])
        self.exec_set(0x00FF00FF)
        a(f'buffer_store_dwordx4 {vr(DB+20,4)}, v42, {sr(SRD_WS,4)}, s74 offen offset:2048 sc1')
        self.exec_all()
        a.label('L_g2_no3')
        a('s_nop 7')
        self.setsum4([DB, DB + 4], [DB + 12, DB + 16])
        self.exec_set(0x00FF00FF)
        a(f'buffer_store_dwordx4 {vr(DB+12,4)}, v42, {sr(SRD_WS,4)}, s74 offen sc1')
        a(f'buffer_store_dwordx4 {vr(DB+16,4)}, v42, {sr(SRD_WS,4)}, s74 offen offset:1024 sc1')
        self.exec_all()

    def chain(self):
        a = self.a
        a.label('L_chain')
        a(f'''
        s_setprio 3
        s_load_dword s{sTAG}, {sr(PWS,2)}, {WS_EPOCH}
        s_sub_u32 s{sW}, s{sW}, 8
        s_mov_b32 s60, 1
        s_mov_b32 s6, s{sB}
        s_cmp_lt_u32 s{sB}, 108
        s_cbranch_scc1 L_p1role
        s_mov_b32 s60, 2
        s_sub_u32 s6, s{sB}, 108
        s_cmp_lt_u32 s{sB}, 236
        s_cbranch_scc1 L_p1role
        s_mov_b32 s60, 0
        L_p1role:
        s_lshr_b32 s61, s6, 1
        s_and_b32 s62, s6, 1
        s_cmp_eq_u32 s{sW}, 0
        s_cbranch_scc1 L_c0
        s_cmp_eq_u32 s{sW}, 1
        s_cbranch_scc1 L_c1
        s_cmp_eq_u32 s{sW}, 2
        s_cbranch_scc1 L_c2
        ''')
        self.c3(); self.c0(); self.c1(); self.c2(); self.ctail()

    def c3(self):
        a = self.a
        a(f'''
        s_barrier                            ; B0
        s_waitcnt lgkmcnt(0)
        s_add_u32 s{sTAG}, s{sTAG}, 1
        s_sleep 127
        ''')
        self.flags_check('L_c3_flags', 8, 12, sleep=32)
        if self.fast:
            a(f"""
            s_lshr_b32 s6, s{sG}, 1
            s_lshl_b32 s6, s6, 8                 ; (g>>1)*32*8
            s_add_u32 s6, s6, {WS_XG}
            v_lshlrev_b32 v8, 3, v1
            s_getreg_b32 s7, hwreg(HW_REG_XCC_ID)
            s_and_b32 s7, s7, 15
            s_mov_b32 exec_hi, 0
            s_mov_b32 s{sCNT}, 0
            L_c3_xg:
            buffer_load_dwordx2 v[12:13], v8, {sr(SRD_WS,4)}, s6 offen sc1
            s_waitcnt vmcnt(0)
            v_cmp_ne_u32 vcc, s{sTAG}, v13
            s_cbranch_vccz L_c3_xg_ok
            s_add_u32 s{sCNT}, s{sCNT}, 1
            s_cmp_lt_u32 s{sCNT}, 64
            s_cbranch_scc0 L_c3_xg_no
            s_sleep 16
            s_branch L_c3_xg
            L_c3_xg_ok:
            v_cmp_ne_u32 vcc, s7, v12
            s_cbranch_vccnz L_c3_xg_no
            v_mov_b32 v12, 1
            v_mov_b32 v13, {LFAST}
            s_mov_b64 exec, 1
            ds_write_b32 v13, v12
            L_c3_xg_no:
            s_mov_b64 exec, -1
            """)
        self.stamp(1)
        a('s_branch L_ctail')
    code_kb4 = 6

    def c0(self):
        a = self.a
        a.label('L_c0')
        a(f"""
        s_cmp_eq_u32 s60, 0
        s_cbranch_scc1 L_c0_skip
        s_mov_b32 s63, 6912
        s_mov_b32 s64, s{PWM}
        s_mov_b32 s65, s{PWM+1}
        s_cmp_eq_u32 s60, 1
        s_cbranch_scc1 L_c0_sel
        s_mov_b32 s63, 8192
        s_mov_b32 s64, s{PWQ}
        s_mov_b32 s65, s{PWQ+1}
        L_c0_sel:
        s_mul_i32 s6, s62, 288
        s_mul_i32 s6, s6, s63                ; kh*288*pitch
        s_lshl_b32 s7, s61, 7
        s_add_u32 s6, s6, s7
        s_add_u32 s{SRD_A}, s64, s6
        s_addc_u32 s{SRD_A+1}, s65, 0
        s_mul_i32 s{SRD_A+2}, s63, 288
        s_mov_b32 s{SRD_A+3}, 0x20000
        v_lshrrev_b32 v8, 3, v1
        v_mul_lo_u32 v8, v8, s63
        v_and_b32 v9, 7, v1
        v_lshlrev_b32 v9, 4, v9
        v_add_u32 v8, v8, v9
        s_lshl_b32 s66, s63, 3               ; 8*pitch
        s_mov_b32 s67, 0
        """)
        TB = 24
        for i in range(36):
            a(f'buffer_load_dwordx4 {vr(TB+4*i,4)}, v8, {sr(SRD_A,4)}, s67 offen{NT}')
            if i < 35: a('s_add_u32 s67, s67, s66')
        a('s_barrier')
        self.masks(4, 9)
        a(f"""
        v_lshrrev_b32 v2, 3, v1
        v_mul_u32_u24 v2, 144, v2
        s_lshl_b32 s6, s61, 9                ; ct*512
        s_mul_i32 s7, s62, {MODP_P}
        s_add_u32 s7, s7, {WS_MODP}
        s_cmp_eq_u32 s60, 1
        s_cbranch_scc1 L_c0_pub
        s_mul_i32 s7, s62, {QP_P}
        s_add_u32 s7, s7, {WS_QP}
        L_c0_pub:
        s_add_u32 s68, s6, s7
        s_waitcnt lgkmcnt(0)
        s_add_u32 s{sTAG}, s{sTAG}, 1
        """)
        self.stamp(1)
        self.lds_wait_flag('L_c0_wxx', LF_XX, 8)
        self.stamp(2)
        a(f'ds_read_b128 v[8:11], v2 offset:{LXXT}')
        for n in range(9):
            xb = 8 if n == 0 else TB + 16 * (n - 1)
            a('s_waitcnt lgkmcnt(0)')
            for k in range(4):
                i = 4 * n + k
                A = 16 if i % 2 == 0 else 20
                self.abuild(A, xb + k)
                a(f's_waitcnt vmcnt({35 - i})')
                c = '0' if i == 0 else 'v[12:15]'
                a(f'v_mfma_f32_16x16x32_bf16 v[12:15], {vr(A,4)}, {vr(TB+4*i,4)}, {c}')
                if k == 0 and n < 8:
                    a(f'ds_read_b128 {vr(TB + 16*n, 4)}, v2 offset:{LXXT + 16*(n+1)}')
        self.stamp(3)
        self.set_addr(9, 10)
        a('v_lshlrev_b32 v9, 1, v9')
        self.setsum2([12], [16])
        a(f"""
        v_mov_b32 v18, v17
        v_mov_b32 v17, s{sTAG}
        v_mov_b32 v19, s{sTAG}
        """)
        self.exec_set(self.SETMASK)
        a(f'buffer_store_dwordx4 v[16:19], v9, {sr(SRD_WS,4)}, s68 offen sc1')
        self.exec_all()
        self.stamp(4)
        a('s_branch L_ctail')
        a.label('L_c0_skip')
        a(f"""
        s_barrier
        s_waitcnt lgkmcnt(0)
        s_add_u32 s{sTAG}, s{sTAG}, 1
        s_branch L_ctail
        """)

    def c1(self):
        a = self.a
        a.label('L_c1')
        a(f"""
        v_mov_b32 v8, -1
        v_mov_b32 v9, -1
        v_mov_b32 v10, -1
        v_mov_b32 v11, -1
        v_lshlrev_b32 v12, 4, v1             ; lane*16
        s_lshl_b32 s6, s{sSLOT}, 10
        s_add_u32 s6, s6, {WS_OP}
        buffer_store_dwordx4 v[8:11], v12, {sr(SRD_WS,4)}, s6 offen sc1
        s_cmp_lt_u32 s{sS}, 7
        s_cbranch_scc1 L_c1_ap
        s_mul_i32 s6, s{sF}, 2304
        s_add_u32 s6, s6, {WS_YP}
        buffer_store_dwordx4 v[8:11], v12, {sr(SRD_WS,4)}, s6 offen sc1
        buffer_store_dwordx4 v[8:11], v12, {sr(SRD_WS,4)}, s6 offen offset:1024 sc1
        s_mov_b64 exec, 0xffff
        buffer_store_dwordx4 v[8:11], v12, {sr(SRD_WS,4)}, s6 offen offset:2048 sc1
        s_mov_b64 exec, 0xff
        s_lshl_b32 s6, s{sF}, 7
        s_add_u32 s6, s6, {WS_UX}
        buffer_store_dwordx4 v[8:11], v12, {sr(SRD_WS,4)}, s6 offen sc1
        s_branch L_c1_st
        L_c1_ap:
        L_c1_apdummy:
        L_c1_st:
        s_bitcmp1_b32 s{sG}, 0
        s_cbranch_scc1 L_c1_norc
        s_cmp_ge_u32 s{sS}, 9
        s_cbranch_scc1 L_c1_norc
        s_mov_b64 exec, 0xffff
        s_lshr_b32 s6, s{sG}, 1
        s_mul_i32 s6, s6, 2304
        s_lshl_b32 s7, s{sS}, 8
        s_add_u32 s6, s6, s7
        s_add_u32 s6, s6, {WS_AP}
        buffer_store_dwordx4 v[8:11], v12, {sr(SRD_WS,4)}, s6 offen sc1
        s_cmp_lg_u32 s{sS}, 0
        s_cbranch_scc1 L_c1_norc
        s_mov_b64 exec, 1
        v_mov_b32 v13, 0
        s_lshr_b32 s6, s{sG}, 1
        s_lshl_b32 s6, s6, 7
        s_add_u32 s6, s6, {WS_RC}
        buffer_store_dword v13, v12, {sr(SRD_WS,4)}, s6 offen sc1
        L_c1_norc:
        s_mov_b64 exec, 1
        s_lshl_b32 s6, s{sSLOT}, 7
        s_add_u32 s6, s6, {WS_ST}
        buffer_store_dwordx4 v[8:11], v12, {sr(SRD_WS,4)}, s6 offen sc1
        s_mov_b64 exec, -1
        s_barrier                            ; B0
        s_waitcnt vmcnt(0) lgkmcnt(0)
        s_add_u32 s{sTAG}, s{sTAG}, 1
        v_mov_b32 v13, s{sTAG}
        s_lshl_b32 s6, s{sB}, 2
        s_add_u32 s6, s6, {WS_FLAGS}
        v_mov_b32 v15, 0
        s_mov_b64 exec, 1
        buffer_store_dword v13, v15, {sr(SRD_WS,4)}, s6 offen sc1
        s_mov_b64 exec, -1
        """)
        self.stamp(1)
        a(f"""
        v_lshlrev_b32 v8, 4, v1
        s_lshl_b32 s6, s{sG}, 11
        s_add_u32 s6, s6, {WS_QP}
        s_add_u32 s7, s6, {QP_P}
        s_add_u32 s64, s{PWS}, s6
        s_addc_u32 s65, s{PWS+1}, 0
        s_sleep {self.sl_q0}
        """)
        if self.sl_q1: a(f's_sleep {self.sl_q1}')
        if self.hint: self.shint('L_c1_hint', 64, [4 + kh * QP_P + j * 512 for kh in range(2) for j in range(4)], 66)
        self.stamp(2)
        self.poll_begin('L_c1_q')
        a(f"""
        buffer_load_dwordx4 v[112:115], v8, {sr(SRD_WS,4)}, s6 offen sc1
        buffer_load_dwordx4 v[116:119], v8, {sr(SRD_WS,4)}, s6 offen offset:1024 sc1
        buffer_load_dwordx4 v[120:123], v8, {sr(SRD_WS,4)}, s7 offen sc1
        buffer_load_dwordx4 v[124:127], v8, {sr(SRD_WS,4)}, s7 offen offset:1024 sc1
        s_waitcnt vmcnt(0)
        """)
        self.tag_check(list(range(113, 128, 2)), 128, 129)
        self.poll_end_nz('L_c1_q', 128, sleep=self.sl_p1)
        a(f"""
        v_add_f32 v112, v112, v120
        v_add_f32 v114, v114, v122
        v_add_f32 v116, v116, v124
        v_add_f32 v118, v118, v126
        v_cvt_pk_bf16_f32 v112, v112, v114
        v_cvt_pk_bf16_f32 v113, v116, v118
        v_lshlrev_b32 v8, 2, v1
        ds_write_b32 v8, v112 offset:{LQ}
        ds_write_b32 v8, v113 offset:{LQ+256}
        v_mov_b32 v8, {LF_Q}
        v_mov_b32 v9, 1
        s_waitcnt lgkmcnt(0)
        s_mov_b64 exec, 1
        ds_write_b32 v8, v9
        s_mov_b64 exec, -1
        """)
        self.stamp(3)
        self.lds_wait_cnt('L_c1_wq', LCNT_Q, 8, 46)
        self.stats_pub('c', 1)
        a('s_branch L_ctail')

    def c2(self):
        a = self.a
        a.label('L_c2')
        a(f"""
        v_mov_b32 v13, 0
        v_lshlrev_b32 v14, 2, v1
        s_mov_b64 exec, 0xffff
        ds_write_b32 v14, v13 offset:{LF_XX}
        s_mov_b64 exec, -1
        s_cmp_eq_u32 s60, 0
        s_cbranch_scc1 L_c2_skip
        s_cmp_eq_u32 s60, 2
        s_cbranch_scc1 L_c2_h
        s_mul_i32 s6, s62, 576
        s_add_u32 s{SRD_A}, s{PC}, s6
        s_addc_u32 s{SRD_A+1}, s{PC+1}, 0
        s_mov_b32 s{SRD_A+2}, 576
        s_mov_b32 s{SRD_A+3}, 0x20000
        v_lshlrev_b32 v8, 4, v1
        buffer_load_dwordx4 v[12:15], v8, {sr(SRD_A,4)}, 0 offen
        s_waitcnt lgkmcnt(0)
        s_barrier                            ; B0
        s_waitcnt vmcnt(0)
        s_add_u32 s{sTAG}, s{sTAG}, 1
        """)
        xs = list(range(16, 24))
        for i in range(4): self.unpack(12 + i, 16 + 2 * i, 17 + 2 * i)
        self.silu(xs, list(range(24, 32)))
        for i in range(8): a(f'v_cvt_pk_bf16_f32 v{16+i}, v{16+i}, v{16+i}')
        a(f'v_lshlrev_b32 v8, 2, v1')
        self.exec_set((1 << 36) - 1)
        for e in range(8): a(f'ds_write_b32 v8, v{16+e} offset:{LXXT + 144*e}')
        self.exec_all()
        a('s_branch L_c2_flag')
        a.label('L_c2_h')
        self.srd_plain(SRD_A, PX, 1152)
        a(f"""
        v_lshlrev_b32 v8, 5, v1
        buffer_load_dwordx4 v[12:15], v8, {sr(SRD_A,4)}, 0 offen
        buffer_load_dwordx4 v[16:19], v8, {sr(SRD_A,4)}, 0 offen offset:16
        s_mul_i32 s6, s62, 576
        v_lshlrev_b32 v9, 2, v1
        buffer_load_dword v20, v9, {sr(SRD_A,4)}, s6 offen
        buffer_load_dword v21, v9, {sr(SRD_A,4)}, s6 offen offset:256
        buffer_load_dword v22, v9, {sr(SRD_A,4)}, s6 offen offset:512
        s_waitcnt lgkmcnt(0)
        s_barrier                            ; B0
        s_waitcnt vmcnt(0)
        s_add_u32 s{sTAG}, s{sTAG}, 1
        """)
        xv = list(range(32, 48))
        for i in range(8): self.unpack(12 + i, 32 + 2 * i, 33 + 2 * i)
        a(f'v_add_f32 v26, v32, v33')
        for r in xv[2:]: a(f'v_add_f32 v26, v26, v{r}')
        self.wave_red('v_add_f32', [26], [27])
        a(f'v_mul_f32 v24, {f2u(1.0/576):#x}, v26')
        a('v_mov_b32 v26, 0')
        self.exec_set((1 << 36) - 1)
        for r in xv:
            a(f'v_sub_f32 v29, v{r}, v24')
            a(f'v_fmac_f32 v26, v29, v29')
        self.exec_all()
        self.wave_red('v_add_f32', [26], [27])
        a(f'v_mul_f32 v25, {f2u(1.0/576):#x}, v26')
        self.ln_finish(24, 25, 27)
        for i in range(3): self.unpack(20 + i, 32 + 2 * i, 33 + 2 * i)
        xr = list(range(32, 38))
        self.ln_apply(xr, mean=24, sd=25, tmps=[26, 27, 28])
        self.stamp(1)
        a(f"""
        s_mul_i32 s6, s62, {288*8}
        s_add_u32 s6, s6, {WS_MODP}
        s_add_u32 s7, s6, {MODP_P}
        s_add_u32 s8, s6, {576*8}
        s_add_u32 s9, s7, {576*8}
        v_lshlrev_b32 v8, 4, v1
        s_sleep {self.sl_m0}
        """)
        self.poll_begin('L_c2_mod')
        for base, so in ((64, 's6'), (76, 's8'), (88, 's7'), (100, 's9')):
            a(f'buffer_load_dwordx4 {vr(base,4)}, v8, {sr(SRD_WS,4)}, {so} offen sc1')
            a(f'buffer_load_dwordx4 {vr(base+4,4)}, v8, {sr(SRD_WS,4)}, {so} offen offset:1024 sc1')
        for base in (64, 76, 88, 100):
            a(f'v_mov_b32 v{base+9}, s{sTAG}'); a(f'v_mov_b32 v{base+11}, s{sTAG}')
            a(f'v_mov_b32 v{base+8}, 0'); a(f'v_mov_b32 v{base+10}, 0')
        a('s_mov_b64 exec, 0xffff')
        for base, so in ((64, 's6'), (76, 's8'), (88, 's7'), (100, 's9')):
            a(f'buffer_load_dwordx4 {vr(base+8,4)}, v8, {sr(SRD_WS,4)}, {so} offen offset:2048 sc1')
        a('s_mov_b64 exec, -1')
        a('s_waitcnt vmcnt(0)')
        self.tag_check(list(range(65, 112, 2)), 48, 49)
        self.poll_end_nz('L_c2_mod', 48, sleep=self.sl_p1)
        self.stamp(2)
        for e in range(6):
            a(f'v_add_f32 v{48+e}, v{64+2*e}, v{88+2*e}')
            a(f'v_add_f32 v{56+e}, v{76+2*e}, v{100+2*e}')
        sa = list(range(48, 54)); ca = list(range(56, 62))
        T = list(range(64, 70))
        self.rnd(sa + ca, T)
        for r in ca: a(f'v_add_f32 v{r}, 1.0, v{r}')
        self.rnd(ca, T)
        for x, c in zip(xr, ca): a(f'v_mul_f32 v{x}, v{x}, v{c}')
        self.rnd(xr, T)
        for x, s, d in zip(xr, sa, range(16, 22)): a(f'v_add_f32 v{d}, v{x}, v{s}')
        for i in range(6): a(f'v_cvt_pk_bf16_f32 v{16+i}, v{16+i}, v{16+i}')
        a(f"""
        v_and_b32 v8, 3, v1
        v_mul_u32_u24 v8, 288, v8
        v_lshrrev_b32 v9, 2, v1
        v_lshlrev_b32 v9, 2, v9
        v_add_u32 v8, v8, v9
        ds_write_b32 v8, v16 offset:{LXXT}
        ds_write_b32 v8, v17 offset:{LXXT+144}
        ds_write_b32 v8, v18 offset:{LXXT+64}
        ds_write_b32 v8, v19 offset:{LXXT+64+144}
        s_mov_b64 exec, 0xffff
        ds_write_b32 v8, v20 offset:{LXXT+128}
        ds_write_b32 v8, v21 offset:{LXXT+128+144}
        s_mov_b64 exec, -1
        """)
        a.label('L_c2_flag')
        a(f"""
        v_mov_b32 v13, 1
        v_mov_b32 v14, {LF_XX}
        s_waitcnt lgkmcnt(0)
        s_mov_b64 exec, 1
        ds_write_b32 v14, v13
        s_mov_b64 exec, -1
        """)
        self.stamp(3)
        a('s_branch L_ctail')
        a.label('L_c2_skip')
        a(f"""
        s_waitcnt lgkmcnt(0)
        s_barrier
        s_add_u32 s{sTAG}, s{sTAG}, 1
        """)

    def ln_finish(self, mean, var, t):
        a = self.a
        self.rnd([mean, var], [t])
        a(f'v_add_f32 v{var}, {f2u(1e-5):#x}, v{var}')
        self.rnd([var], [t])
        a(f'v_sqrt_f32 v{var}, v{var}')
        self.rnd([var], [t])
        a(f'v_rcp_f32 v{var}, v{var}')

    def ln_apply(self, xr, mean, sd, tmps):
        a = self.a
        for r in xr: a(f'v_sub_f32 v{r}, v{r}, v{mean}')
        self.rnd(xr, tmps)
        for r in xr: a(f'v_mul_f32 v{r}, v{r}, v{sd}')
        self.rnd(xr, tmps)

    def ffn_consts_issue(self):
        a = self.a
        for p, so in ((0, 8), (1, 9)):
            for arr in range(3):
                if arr: a(f's_add_u32 s10, s{so}, {576*8*arr}')
                sreg = f's{so}' if arr == 0 else 's10'
                b = 64 + 24 * p + 8 * arr
                a(f'buffer_load_dwordx4 {vr(b,4)}, v9, {sr(SRD_WS,4)}, {sreg} offen sc1')
                a(f'buffer_load_dwordx4 {vr(b+4,4)}, v9, {sr(SRD_WS,4)}, {sreg} offen offset:16 sc1')
    def ffn_consts_prep(self):
        a = self.a
        self.srd_plain(SRD_B, PX, 1152)
        a(f"""
        s_mul_i32 s6, s{sW}, 288
        v_lshlrev_b32 v8, 3, v1
        s_mul_i32 s7, s{sW}, {144*8}
        s_add_u32 s8, s7, {WS_MODP + 1152*8}
        s_add_u32 s9, s8, {MODP_P}
        v_lshlrev_b32 v9, 5, v1
        """)
        self.exec_set((1 << 36) - 1)
        a(f'buffer_load_dwordx2 v[40:41], v8, {sr(SRD_B,4)}, s6 offen')
        self.exec_all()
    def ffn_consts_finish(self):
        a = self.a
        self.exec_set((1 << 36) - 1)
        a(f's_mov_b32 s{sCNT}, 0')
        a('s_branch L_ct_mod_chk')
        a.label('L_ct_mod')
        self.ffn_consts_issue()
        a.label('L_ct_mod_chk')
        a('s_waitcnt vmcnt(0)')
        self.tag_check(list(range(65, 112, 2)), 44, 45)
        self.poll_end_nz('L_ct_mod', 44, sleep=4)
        for i in range(12): a(f'v_add_f32 v{24+i}, v{64+2*i}, v{88+2*i}')
        T = list(range(42, 48))
        self.rnd(list(range(24, 36)), T)
        for i in range(4): a(f'v_add_f32 v{32+i}, 1.0, v{32+i}')
        self.rnd(list(range(32, 36)), T)
        self.unpack(40, 36, 37); self.unpack(41, 38, 39)
        self.exec_all()

    def red_consts(self):
        a = self.a
        self.srd_plain(SRD_B, PX, 1152)
        a(f"""
        v_and_b32 v8, 3, v1
        v_lshlrev_b32 v9, 5, v8
        v_lshlrev_b32 v8, 3, v8
        s_lshl_b32 s6, s69, 5
        buffer_load_dwordx2 v[40:41], v8, {sr(SRD_B,4)}, s6 offen
        s_lshl_b32 s7, s69, 7
        s_add_u32 s8, s7, {WS_MODP + 1152*8}
        s_add_u32 s9, s8, {MODP_P}
        s_add_u32 s10, s8, {1728*8}
        s_add_u32 s11, s9, {1728*8}
        """)
        self.poll_begin('L_ct_red')
        for b, so in ((128, 's8'), (136, 's10'), (144, 's9'), (152, 's11')):
            a(f'buffer_load_dwordx4 {vr(b,4)}, v9, {sr(SRD_WS,4)}, {so} offen sc1')
            a(f'buffer_load_dwordx4 {vr(b+4,4)}, v9, {sr(SRD_WS,4)}, {so} offen offset:16 sc1')
        a('s_waitcnt vmcnt(0)')
        self.tag_check(list(range(129, 160, 2)), 44, 45)
        self.poll_end_nz('L_ct_red', 44, sleep=4)
        for i in range(8): a(f'v_add_f32 v{24+i}, v{128+2*i}, v{144+2*i}')
        self.rnd(list(range(24, 32)), list(range(44, 48)))
        self.unpack(40, 36, 37); self.unpack(41, 38, 39)

    def ctail(self):
        a = self.a
        a.label('L_ctail')
        self.stamp(5)
        WB = 64
        self.masks(4, 8)
        a(f"""
        s_cmp_lg_u32 s{sW}, 3
        s_cbranch_scc1 L_ct_norole
        """)
        self.lds_wait_cnt('L_ct_wv', LCNT_T, 8, 46)
        a(f"""
        v_mov_b32 v46, 1
        v_mov_b32 v47, 0
        s_lshr_b32 s6, s{sG}, 1
        s_lshl_b32 s6, s6, 7
        s_add_u32 s6, s6, {WS_RC}
        s_mov_b64 exec, 1
        buffer_atomic_add v46, v47, {sr(SRD_WS,4)}, s6 offen sc0 sc1
        s_waitcnt vmcnt(0)
        v_and_b32 v46, 31, v46
        v_add_u32 v46, 1, v46
        v_mov_b32 v47, {LROLE}
        ds_write_b32 v47, v46
        s_mov_b64 exec, -1
        L_ct_norole:
        v_mov_b32 v46, {LROLE}
        s_mov_b32 s{sCNT}, 0
        L_ct_role:
        ds_read_b32 v47, v46
        s_add_u32 s{sCNT}, s{sCNT}, 1
        s_cmp_lt_u32 s{sCNT}, {MAXSPIN*8}
        s_cbranch_scc0 L_ct_role_done
        s_waitcnt lgkmcnt(0)
        v_readfirstlane_b32 s70, v47
        s_cmp_lg_u32 s70, 0
        s_cbranch_scc1 L_ct_role_done
        s_sleep 1
        s_branch L_ct_role
        L_ct_role_done:
        s_waitcnt lgkmcnt(0)
        s_sub_u32 s70, s70, 1                ; rank
        """)
        a(f"""
        s_cmp_lt_u32 s70, 9
        s_cbranch_scc1 L_ct_wor
        s_cmp_lt_u32 s70, 27
        s_cbranch_scc1 L_ct_ffn2
        s_lshr_b32 s6, s{sG}, 1
        s_mul_i32 s69, s6, 5
        s_add_u32 s69, s69, s70
        s_sub_u32 s69, s69, 27               ; r
        s_cmp_ge_u32 s69, 36
        s_cbranch_scc1 L_ct_end
        s_cmp_lg_u32 s{sW}, 3
        s_cbranch_scc1 L_ct_end
        """)
        self.red_consts()
        self.reducer()
        a.label('L_ct_end')
        self.end_wave({})
        a.label('L_ct_wor')
        a(f"""
        s_mov_b32 s71, s70                   ; ct
        s_lshr_b32 s6, s{sG}, 1
        s_lshl_b32 s6, s6, 9                 ; x*512 rows
        s_lshl_b32 s7, s{sW}, 6
        s_add_u32 s6, s6, s7
        s_mul_i32 s6, s6, 1152
        s_lshl_b32 s7, s71, 7
        s_add_u32 s6, s6, s7
        """)
        self.srd(SRD_A, PWO, 6, f'{4096*1152}')
        a(f"""
        s_sub_u32 s{SRD_A+2}, s{SRD_A+2}, s6
        v_lshrrev_b32 v8, 3, v1
        v_mul_u32_u24 v8, 1152, v8
        v_and_b32 v9, 7, v1
        v_lshl_add_u32 v42, v9, 4, v8
        """)
        self.lds_wait_cnt('L_wo_wv', LCNT_V, 8, 46)
        self.stamp(12)
        for n in range(16):
            gp, i = n // 8, n % 8
            if n == self.wo_pre: self.lds_wait_cnt('L_wo_wp', LCNT2, 8, 46)
            a(f's_mov_b32 s7, {9216*i + 294912*gp}')
            a(f'buffer_load_dwordx4 {vr(WB+32*gp+4*i,4)}, v42, {sr(SRD_A,4)}, s7 offen{NT}')
        if self.wo_pre >= 16: self.lds_wait_cnt('L_wo_wp', LCNT2, 8, 46)
        self.stamp(6)
        self.hop1_prep()
        self.hop1_stats()
        self.hop1(WB)
        self.end_wave({3: 3, 8: 7, 9: 8})
        a.label('L_ct_ffn2')
        W1B, W2B = 64, 100
        a(f"""
        s_lshr_b32 s{sF}, s{sG}, 1
        s_mul_i32 s{sF}, s{sF}, 18
        s_add_u32 s{sF}, s{sF}, s70
        s_sub_u32 s{sF}, s{sF}, 9
        s_and_b32 s6, s{sF}, 1
        s_mul_i32 s6, s6, 288
        s_mul_i32 s7, s{sW}, 72
        s_add_u32 s6, s6, s7
        s_mul_i32 s6, s6, 9216
        s_lshr_b32 s7, s{sF}, 1
        s_lshl_b32 s7, s7, 7
        s_add_u32 s6, s6, s7
        """)
        self.srd(SRD_A, PW1, 6, f'{576*9216}')
        a(f"""
        s_sub_u32 s{SRD_A+2}, s{SRD_A+2}, s6
        v_lshrrev_b32 v8, 3, v1
        v_mul_u32_u24 v8, 9216, v8
        v_and_b32 v9, 7, v1
        v_lshl_add_u32 v44, v9, 4, v8        ; v44 = w1 voffset
        """)
        self.w2_loads(W2B)
        self.chain_consts()
        vm = VM(a)
        lst = [('w1', i) for i in range(9)] + [('w2', n) for n in range(8)]
        if self.ffn_mode == 1:
            self.lds_wait_cnt('L_ffn_wv', LCNT_V, 8, 46)
            for _ in range(self.sl_ffn // 100): a('s_sleep 100')
            if self.sl_ffn % 100: a(f's_sleep {self.sl_ffn % 100}')
            self.stamp(10)
        elif self.thr_ffn > 0: self.lds_wait_cnt('L_ffn_wv', LCNT_V, 8, 46)
        def sig_w():
            a(f"""
            v_mov_b32 v46, {LCNT_W}
            v_mov_b32 v47, 1
            s_mov_b64 exec, 1
            ds_add_u32 v46, v47
            s_mov_b64 exec, -1
            """)
        split = 9 + self.w2_pre if self.w2_late else 99
        for idx, (k, i) in enumerate(lst):
            if idx == split:
                sig_w()
                self.gemv1_prep()
                self.stamp(6)
                self.lds_wait_cnt('L_ffn_wh', LCNT_H2, 4, 46)
            if self.ffn_mode == 1:
                if idx >= self.dt_ffn: vm.wait(lst[idx - self.dt_ffn])
            elif idx == self.thr_ffn:
                self.lds_wait_cnt('L_ffn_wp', LCNT2, 8, 46)
                if self.sl_ffn: a(f's_sleep {self.sl_ffn}')
                self.stamp(10)
            if idx == 9: self.stamp(11)
            if k == 'w1':
                a(f's_mov_b32 s64, {73728*i}')
                vm.issue((k, i), f'buffer_load_dwordx4 {vr(W1B+4*i,4)}, v44, {sr(SRD_A,4)}, s64 offen{NT}')
            else:
                ro, kk = i // 2, i % 2
                a(f's_mov_b32 s64, {9216*ro}')
                vm.issue((k, i), f'buffer_load_dwordx4 {vr(W2B+16*kk+4*ro,4)}, v45, {sr(SRD_B,4)}, s64 offen offset:{512*kk}{NT}')
        a(f"""
        s_cmp_lg_u32 s{sW}, 0
        s_cbranch_scc1 L_w2_no3
        """)
        for ro in range(4):
            a(f's_mov_b32 s64, {9216*ro}')
            a(f'buffer_load_dwordx4 {vr(W2B+32+4*ro,4)}, v45, {sr(SRD_B,4)}, s64 offen offset:1024{NT}')
        a.label('L_w2_no3')
        if not self.w2_late: sig_w()
        if not self.w2_late:
            self.gemv1_prep()
            self.stamp(6)
        a('s_barrier')
        a('s_barrier')
        self.stamp(8)
        self.gemv1(W1B, 148, 8)
        self.stamp(9)
        self.gemv2(W2B, 64)
        self.stamp(13)
        self.end_wave()

    def stats_pub(self, tag, who):
        a = self.a
        a(f"""
        s_cmp_lg_u32 s{sW}, {who}
        s_cbranch_scc1 L_nostat{tag}
        v_bfe_u32 v12, v1, 3, 1
        v_lshlrev_b32 v12, 5, v12
        ds_read_b128 v[16:19], v12 offset:{LMX}
        ds_read_b128 v[20:23], v12 offset:{LMX+16}
        ds_read_b128 v[152:155], v12 offset:{LLS}
        ds_read_b128 v[156:159], v12 offset:{LLS+16}
        s_lshl_b32 s12, s{sSLOT}, 7
        s_add_u32 s12, s12, {WS_ST}
        v_lshrrev_b32 v12, 2, v12            ; head*8
        s_waitcnt lgkmcnt(0)
        v_max3_f32 v160, v16, v17, v18
        v_max3_f32 v161, v20, v21, v22
        v_max3_f32 v160, v160, v19, v23
        v_max_f32 v160, v160, v161
        """)
        for i in range(8): a(f'v_sub_f32 v{16+i}, v{16+i}, v160')
        for i in range(8): a(f'v_mul_f32 v{16+i}, s{sLOG2E}, v{16+i}')
        for i in range(8): a(f'v_exp_f32 v{16+i}, v{16+i}')
        a('v_mul_f32 v161, v16, v152')
        for i in range(1, 8): a(f'v_fmac_f32 v161, v{16+i}, v{152+i}')
        a(f"""
        s_mov_b64 exec, 0x101
        buffer_store_dwordx2 v[160:161], v12, {sr(SRD_WS,4)}, s12 offen sc1
        s_mov_b64 exec, -1
        L_nostat{tag}:
        """)

    def l2_prefetch(self, ptr, base_expr_lines, nbytes, total, tag, lanes_stride=128):
        a = self.a
        PF = self.pf_policy
        a(base_expr_lines)
        self.srd_plain(80, ptr, total)
        a(f'v_lshlrev_b32 v47, 7, v1')
        nl = nbytes // 128
        k = 0
        while nl > 0:
            n = min(nl, 64)
            if n < 64: self.exec_set((1 << n) - 1)
            a(f'buffer_load_dword v43, v47, s[80:83], s14 offen{PF}')
            if n < 64: self.exec_all()
            nl -= n; k += 1
            if nl > 0: a('s_add_u32 s14, s14, 8192')

    def pf_wo(self, tag):
        a = self.a
        if not self.pf1: return
        a(f'''
        s_cmp_lg_u32 s{sW}, {self.pf1_wave}
        s_cbranch_scc1 L_pfwo{tag}
        ''')
        self.l2_prefetch(PWO, f'''
        s_mul_i32 s14, s{sG}, {256*1152}
        s_mul_i32 s15, s{sS}, 18432
        s_add_u32 s14, s14, s15
        ''', 18432, 4096*1152, tag)
        a.label(f'L_pfwo{tag}')

    def pf_w2(self):
        a = self.a
        if not self.pf2: return
        self.l2_prefetch(PW2, f'''
        s_mul_i32 s14, s{sG}, {288*1152}
        s_lshl_b32 s15, s{sS}, 2
        s_add_u32 s15, s15, s{sW}
        s_mul_i32 s15, s15, {96*128}
        s_add_u32 s14, s14, s15
        ''', 96*128, 4608*1152, 'w2')

    def chain_consts(self):
        a = self.a
        B = 64
        a(f"""
        s_mul_i32 s7, s{sW}, {144*8}
        s_add_u32 s8, s7, {WS_MODP + 1152*8}
        v_lshlrev_b32 v46, 4, v1
        s_mov_b32 s{sCNT}, 0
        L_cc:
        """)
        for arr in range(3):
            for p in range(2):
                b = B + (arr * 2 + p) * 8
                a(f's_add_u32 s9, s8, {576*8*arr + MODP_P*p}')
                a(f'buffer_load_dwordx4 {vr(b,4)}, v46, {sr(SRD_WS,4)}, s9 offen sc1')
                a(f'v_mov_b32 v{b+4}, 0'); a(f'v_mov_b32 v{b+5}, s{sTAG}'); a(f'v_mov_b32 v{b+6}, 0'); a(f'v_mov_b32 v{b+7}, s{sTAG}')
        a('s_mov_b64 exec, 0xff')
        for arr in range(3):
            for p in range(2):
                b = B + (arr * 2 + p) * 8
                a(f's_add_u32 s9, s8, {576*8*arr + MODP_P*p}')
                a(f'buffer_load_dwordx4 {vr(b+4,4)}, v46, {sr(SRD_WS,4)}, s9 offen offset:1024 sc1')
        a('s_mov_b64 exec, -1')
        a('s_waitcnt vmcnt(0)')
        self.tag_check(list(range(B + 1, B + 48, 2)), 112, 113)
        self.poll_end_nz('L_cc', 112, sleep=4)
        for arr in range(3):
            b0 = B + arr * 16; b1 = b0 + 8
            for j, off in enumerate((0, 2, 4, 6)):
                a(f'v_add_f32 v{112+4*arr+j}, v{b0+off}, v{b1+off}')
        allr = list(range(112, 124))
        T = list(range(124, 130))
        self.rnd(allr, T)
        for j in range(4): a(f'v_add_f32 v{120+j}, 1.0, v{120+j}')
        self.rnd(list(range(120, 124)), T)
        a(f"""
        s_mul_i32 s7, s{sW}, 576
        v_lshlrev_b32 v46, 3, v1
        v_add_u32 v46, s7, v46
        """)
        for arr in range(3):
            a(f'ds_write_b64 v46, {vr(112+4*arr,2)} offset:{LCON + 2304*arr}')
        a('s_mov_b64 exec, 0xff')
        for arr in range(3):
            a(f'ds_write_b64 v46, {vr(114+4*arr,2)} offset:{LCON + 2304*arr + 512}')
        a(f"""
        v_mov_b32 v46, {LCNT_C}
        v_mov_b32 v47, 1
        s_mov_b64 exec, 1
        ds_add_u32 v46, v47
        s_mov_b64 exec, -1
        """)

    def stream_consts(self):
        a = self.a
        self.srd_plain(SRD_B, PX, 1152)
        a(f"""
        s_mul_i32 s6, s{sW}, 288
        v_lshlrev_b32 v8, 3, v1
        buffer_load_dwordx2 v[40:41], v8, {sr(SRD_B,4)}, s6 offen
        """)
    def stream_consts_finish(self):
        a = self.a
        self.lds_wait_cnt('L_sc_w', LCNT_C, 4, 14)
        a(f"""
        s_mul_i32 s6, s{sW}, 576
        v_lshlrev_b32 v8, 4, v1
        v_add_u32 v8, s6, v8
        ds_read_b128 v[24:27], v8 offset:{LCON}
        ds_read_b128 v[28:31], v8 offset:{LCON+2304}
        ds_read_b128 v[32:35], v8 offset:{LCON+4608}
        s_waitcnt vmcnt(0) lgkmcnt(0)
        """)
        self.unpack(40, 36, 37); self.unpack(41, 38, 39)

    def hop1_prep(self):
        a = self.a
        a(f"""
        v_lshrrev_b32 v8, 4, v1
        v_lshlrev_b32 v9, 10, v8             ; pp*1024
        v_and_b32 v10, 15, v1
        v_lshl_add_u32 v9, v10, 4, v9
        v_lshlrev_b32 v8, 7, v8
        s_lshr_b32 s12, s{sG}, 1             ; x
        s_lshl_b32 s6, s12, 15               ; x*32*1024
        s_lshl_b32 s7, s{sW}, 8
        s_add_u32 s6, s6, s7
        s_add_u32 s6, s6, {WS_OP}
        s_lshl_b32 s8, s12, 12               ; x*32*128
        s_lshr_b32 s7, s{sW}, 1
        s_lshl_b32 s7, s7, 3
        s_add_u32 s8, s8, s7
        s_add_u32 s8, s8, {WS_ST}            ; group 2x+1 = +2048
        s_lshl_b32 s7, s{sW}, 9
        v_lshlrev_b32 v10, 4, v10
        v_add_u32 v10, s7, v10
        v_lshrrev_b32 v11, 3, v1
        v_lshlrev_b32 v11, 2, v11
        v_add_u32 v11, s7, v11
        s_mul_i32 s73, s12, 2304
        s_lshl_b32 s7, s71, 8
        s_add_u32 s73, s73, s7
        s_add_u32 s73, s73, {WS_AP}
        """)
        self.set_addr(2, 40)
        a(f"""
        s_lshl_b32 s7, s{sW}, 8
        v_add_u32 v2, s7, v2
        v_lshlrev_b32 v41, 4, v1             ; v41 = l*16
        """)

    def hop1_stats(self):
        a = self.a
        self.poll_begin('L_h1s')
        for gp in range(2):
            a(f's_add_u32 s9, s8, {2048*gp}')
            for i in range(4):
                a(f'buffer_load_dwordx2 {vr(128+8*gp+2*i,2)}, v8, {sr(SRD_WS,4)}, s9 offen offset:{512*i} sc1')
        a('s_waitcnt vmcnt(0)')
        self.sent_check(list(range(128, 144)), 144, 145)
        self._poll_tail('L_h1s', 4)
        for gp in range(2):
            b = 128 + 8 * gp
            a(f'v_max3_f32 v{144+gp}, v{b}, v{b+2}, v{b+4}')
            a(f'v_max_f32 v{144+gp}, v{144+gp}, v{b+6}')
        self.xgroup('v_max_f32', [144, 145], [146, 147])
        for gp in range(2):
            b = 128 + 8 * gp; e = 160 + 4 * gp
            for i in range(4): a(f'v_sub_f32 v{e+i}, v{b+2*i}, v{144+gp}')
        for r in range(160, 168): a(f'v_mul_f32 v{r}, s{sLOG2E}, v{r}')
        for r in range(160, 168): a(f'v_exp_f32 v{r}, v{r}')
        for gp in range(2):
            b = 128 + 8 * gp; e = 160 + 4 * gp
            a(f'v_mul_f32 v{148+gp}, v{e}, v{b+1}')
            for i in range(1, 4): a(f'v_fmac_f32 v{148+gp}, v{e+i}, v{b+1+2*i}')
        self.xgroup('v_add_f32', [148, 149], [146, 147])
        a('v_rcp_f32 v148, v148'); a('v_rcp_f32 v149, v149')
        for gp in range(2):
            for i in range(4): a(f'v_mul_f32 v{160+4*gp+i}, v{160+4*gp+i}, v{148+gp}')

    def hop1(self, WB):
        a = self.a
        S = 128
        a(f's_mov_b32 s{sCNT}, 0')
        a.label('L_h1')
        for n in range(8):
            gp, i = n // 4, n % 4
            a(f's_add_u32 s9, s6, {16384*gp + 4096*i}')
            a(f'buffer_load_dwordx4 {vr(S+4*n,4)}, v9, {sr(SRD_WS,4)}, s9 offen sc1')
        a('s_waitcnt vmcnt(0)')
        self.sent_check(list(range(S, S + 32)), 56, 57)
        self._poll_tail('L_h1', 0)
        if self.diag: a(f'v_writelane_b32 v3, s{sCNT}, 13')
        for gp in range(2):
            o = 48 + 4 * gp; e = 160 + 4 * gp; b = S + 16 * gp
            for r in range(4): a(f'v_mul_f32 v{o+r}, v{e}, v{b+r}')
            for i in range(1, 4):
                for r in range(4): a(f'v_fmac_f32 v{o+r}, v{e+i}, v{b+4*i+r}')
        self.xgroup('v_add_f32', list(range(48, 56)), list(range(56, 64)))
        self.stamp(8)
        for r in range(48, 56): a(f'v_cvt_pk_bf16_f32 v{r}, v{r}, v{r}')
        a(f"""
        s_mov_b64 exec, 0xffff
        ds_write_b128 v10, v[48:51] offset:{LOXX2}
        ds_write_b128 v10, v[52:55] offset:{LOXX2+256}
        s_mov_b64 exec, -1
        s_waitcnt lgkmcnt(0)
        """)
        for n in range(16):
            gp, i = n // 8, n % 8
            a(f'ds_read_b32 v{128+n}, v11 offset:{LOXX2 + 256*gp + 32*i}')
        Areg = lambda i: (12, 16, 20)[i % 3]
        a('s_waitcnt lgkmcnt(15)')
        self.abuild(Areg(0), 128)
        for n in range(16):
            if n < 15:
                a(f's_waitcnt lgkmcnt({14-n})')
                self.abuild(Areg(n + 1), 128 + n + 1)
            gp, i = n // 8, n % 8
            c = '0' if n == 0 else 'v[52:55]'
            a(f'v_mfma_f32_16x16x32_bf16 v[52:55], {vr(Areg(n),4)}, {vr(WB+32*gp+4*i,4)}, {c}')
        self.setsum2([52], [60])
        self.exec_set(self.SETMASK)
        a(f'ds_write_b64 v2, v[60:61] offset:{LAP}')
        self.exec_all()
        a(f"""
        s_waitcnt lgkmcnt(0)
        s_barrier
        s_cmp_lg_u32 s{sW}, 0
        s_cbranch_scc1 L_h1_nopub
        s_mov_b64 exec, 0xffff
        ds_read_b128 v[12:15], v41 offset:{LAP}
        ds_read_b128 v[16:19], v41 offset:{LAP+256}
        ds_read_b128 v[20:23], v41 offset:{LAP+512}
        ds_read_b128 v[44:47], v41 offset:{LAP+768}
        s_waitcnt lgkmcnt(0)
        """)
        for r in range(4):
            a(f'v_add_f32 v{12+r}, v{12+r}, v{16+r}')
            a(f'v_add_f32 v{20+r}, v{20+r}, v{44+r}')
        for r in range(4): a(f'v_add_f32 v{12+r}, v{12+r}, v{20+r}')
        a(f"""
        buffer_store_dwordx4 v[12:15], v41, {sr(SRD_WS,4)}, s73 offen sc1
        s_mov_b64 exec, -1
        L_h1_nopub:
        """)
        self.stamp(9)

    def hop2(self):
        a = self.a
        GB = 104
        a(f"""
        v_lshlrev_b32 v9, 4, v1
        s_mul_i32 s7, s{sW}, 576
        v_add_u32 v8, s7, v9
        s_add_u32 s7, s7, {WS_AP}
        s_lshl_b32 s6, s{sW}, 4
        v_mov_b32 v10, s6
        v_mov_b32 v11, 0
        """)
        self.lds_wait_cnt('L_h2_ww', LCNT_W, 4, 14)
        if self.sl_h2: a(f's_sleep {self.sl_h2}')
        self.exec_set((1 << 36) - 1)
        HA, HB = 40, 104
        def hissue(base):
            a('s_mov_b32 s6, s7')
            for p in range(8):
                a(f'buffer_load_dwordx4 {vr(base+4*p,4)}, v9, {sr(SRD_WS,4)}, s6 offen sc1')
                if p < 7: a('s_add_u32 s6, s6, 2304')
        def hsum(base):
            for st in (4, 2):
                for p in range(st):
                    for r in range(4): a(f'v_add_f32 v{base+4*p+r}, v{base+4*p+r}, v{base+4*(p+st)+r}')
            for r in range(4): a(f'v_add_f32 v{20+r}, v{base+r}, v{base+4+r}')
            a(f"""
            v_add_f32 v12, v20, v21
            v_add_f32 v13, v22, v23
            v_add_f32 v12, v12, v13
            v_cmp_u_f32 vcc, v12, v12
            """)
        if self.h2_db:
            hissue(HA)
            a(f's_sleep {self.sl_stag}')
            a(f's_mov_b32 s{sCNT}, 0')
            a.label('L_h2')
            hissue(HB)
            a('s_waitcnt vmcnt(8)')
            hsum(HA)
            a('s_cbranch_vccz L_h2_done')
            hissue(HA)
            a('s_waitcnt vmcnt(8)')
            hsum(HB)
            a(f"""
            s_cbranch_vccz L_h2_done
            s_add_u32 s{sCNT}, s{sCNT}, 1
            s_cmp_lt_u32 s{sCNT}, {MAXSPIN}
            s_cbranch_scc1 L_h2
            L_h2_done:
            """)
        else:
            a(f's_mov_b32 s{sCNT}, 0')
            a.label('L_h2')
            hissue(HA)
            a('s_waitcnt vmcnt(0)')
            hsum(HA)
            self._poll_tail('L_h2', self.sl_h2p)
        if self.w2_late:
            a(f"""
            v_mov_b32 v14, {LCNT_H2}
            v_mov_b32 v15, 1
            s_mov_b64 exec, 1
            ds_add_u32 v14, v15
            """)
            self.exec_set((1 << 36) - 1)
        self.stamp(10)
        GB = 20
        av = [20, 21, 22, 23]
        T = [12, 13]
        self.rnd(av, T)
        for r in range(4): a(f'v_mul_f32 v{GB+r}, v{GB+r}, v{24+r}')
        self.rnd(av, T)
        for r in range(4): a(f'v_add_f32 v{GB+r}, v{GB+r}, v{36+r}')
        self.rnd(av, T)
        a(f'v_readfirstlane_b32 s64, v{GB}')
        self.exec_all()
        a('v_mov_b32 v16, 0'); a('v_mov_b32 v17, 0')
        self.exec_set((1 << 36) - 1)
        for r in range(4): a(f'v_subrev_f32 v{12+r}, s64, v{GB+r}')
        a('v_add_f32 v16, v12, v13'); a('v_mul_f32 v17, v12, v12')
        a('v_add_f32 v18, v14, v15'); a('v_fmac_f32 v17, v13, v13')
        a('v_add_f32 v16, v16, v18'); a('v_fmac_f32 v17, v14, v14')
        a('v_fmac_f32 v17, v15, v15')
        self.exec_all()
        self.wave_red('v_add_f32', [16, 17], [18, 19])
        a(f"""
        v_mov_b32 v18, v17
        v_mov_b32 v17, v16
        v_mov_b32 v16, s64
        v_mov_b32 v19, 0
        s_mov_b64 exec, 1
        ds_write_b128 v10, v[16:19] offset:{LST2}
        s_mov_b64 exec, -1
        s_waitcnt lgkmcnt(0)
        s_barrier                            ; Bh1
        s_waitcnt vmcnt(0)
        ds_read_b128 v[116:119], v11 offset:{LST2}
        ds_read_b128 v[120:123], v11 offset:{LST2+16}
        ds_read_b128 v[124:127], v11 offset:{LST2+32}
        ds_read_b128 v[128:131], v11 offset:{LST2+48}
        s_waitcnt lgkmcnt(0)
        v_add_f32 v16, v116, v120
        v_add_f32 v17, v124, v128
        v_add_f32 v18, v117, v121
        v_add_f32 v19, v125, v129
        v_add_f32 v16, v16, v17
        v_add_f32 v18, v18, v19
        v_mul_f32 v16, 0x43100000, v16       ; *144
        v_add_f32 v16, v16, v18
        v_mul_f32 v16, {f2u(1.0/576):#x}, v16   ; mean (f32)
        """)
        for w in range(4): a(f'v_sub_f32 v{116+4*w}, v{116+4*w}, v16')
        for w in range(4): a(f'v_add_f32 v{117+4*w}, v{117+4*w}, v{117+4*w}')
        for w in range(4): a(f'v_fmac_f32 v{117+4*w}, 0x43100000, v{116+4*w}')
        for w in range(4): a(f'v_fmac_f32 v{118+4*w}, v{116+4*w}, v{117+4*w}')
        a(f"""
        v_add_f32 v17, v118, v122
        v_add_f32 v18, v126, v130
        v_add_f32 v17, v17, v18
        v_mul_f32 v17, {f2u(1.0/576):#x}, v17
        """)
        self.ln_finish(16, 17, 18)
        self.ln_apply(av, mean=16, sd=17, tmps=T)
        for r in range(4): a(f'v_mul_f32 v{GB+r}, v{GB+r}, v{32+r}')
        self.rnd(av, T)
        for r in range(4): a(f'v_add_f32 v{GB+r}, v{GB+r}, v{28+r}')
        for r in range(4): a(f'v_cvt_pk_bf16_f32 v{GB+r}, v{GB+r}, v{GB+r}')
        self.exec_set((1 << 36) - 1)
        a(f'ds_write_b128 v8, {vr(GB,4)} offset:{LH2}')
        self.exec_all()
        a('s_waitcnt lgkmcnt(0)')
        self.stamp(11)
        a('s_barrier')
        self.end_wave()

    def reducer(self):
        a = self.a
        GB = 96
        a(f"""
        v_lshrrev_b32 v8, 2, v1
        v_mul_u32_u24 v8, 2304, v8
        v_and_b32 v9, 3, v1
        v_lshl_add_u32 v8, v9, 4, v8
        s_lshl_b32 s7, s69, 6
        s_add_u32 s6, s7, {WS_AP}
        """)
        self.srd_plain(SRD_A, POUT, 1152)
        self.poll_begin('L_r1')
        a(f"""
        v_mov_b32 v12, 0
        v_mov_b32 v13, 0
        v_mov_b32 v14, 0
        v_mov_b32 v15, 0
        s_mov_b32 exec_hi, 0
        buffer_load_dwordx4 v[12:15], v8, {sr(SRD_WS,4)}, s6 offen sc1
        s_mov_b64 exec, -1
        s_waitcnt vmcnt(0)
        """)
        av = [12, 13, 14, 15]
        self.row_red('v_add_f32', av, rors=(8, 4))
        self.xgroup('v_add_f32', av, [16, 17, 18, 19])
        a(f"""
        v_add_f32 v16, v12, v13
        v_add_f32 v17, v14, v15
        v_add_f32 v16, v16, v17
        """)
        self.poll_end('L_r1', 16, sleep=2)
        self.rnd(av, [16, 17])
        for r in range(4): a(f'v_mul_f32 v{12+r}, v{12+r}, v{24+r}')
        self.rnd(av, [16, 17])
        for r in range(4): a(f'v_add_f32 v{32+r}, v{12+r}, v{36+r}')
        self.rnd([32, 33, 34, 35], [16, 17])
        a(f"""
        v_lshlrev_b32 v10, 3, v1
        s_lshl_b32 s10, s69, 5
        v_mov_b32 v14, s{sTAG}
        v_mov_b32 v15, {WS_EPOCH}
        """)
        self.stamp(10)
        a(f's_add_u32 s7, s7, {WS_YP}')
        a(f's_sleep {self.sl_h2}')
        RA, RB = 96, 132
        def rissue(base):
            a('s_mov_b32 s6, s7')
            for i in range(9):
                a(f'buffer_load_dwordx4 {vr(base+4*i,4)}, v8, {sr(SRD_WS,4)}, s6 offen sc1')
                if i < 8: a(f's_add_u32 s6, s6, {16*2304}')
        def rsum(base):
            for (x, y) in ((0, 1), (2, 3), (4, 5), (6, 7), (0, 2), (4, 6), (0, 8)):
                for r in range(4): a(f'v_add_f32 v{base+4*x+r}, v{base+4*x+r}, v{base+4*y+r}')
            for r in range(4): a(f'v_add_f32 v{44+r}, v{base+r}, v{base+16+r}')
        rissue(RA)
        a(f's_sleep {self.sl_stag}')
        a(f's_mov_b32 s{sCNT}, 0')
        a.label('L_r2')
        rissue(RB)
        a('s_waitcnt vmcnt(9)')
        self.sent_check(list(range(RA, RA + 36)), 16, 17)
        a('s_cbranch_vccz L_r2_useA')
        rissue(RA)
        a('s_waitcnt vmcnt(9)')
        self.sent_check(list(range(RB, RB + 36)), 16, 17)
        a(f"""
        s_cbranch_vccz L_r2_useB
        s_add_u32 s{sCNT}, s{sCNT}, 1
        s_cmp_lt_u32 s{sCNT}, {MAXSPIN}
        s_cbranch_scc1 L_r2
        L_r2_useB:
        """)
        rsum(RB)
        a('s_branch L_r2_done')
        a.label('L_r2_useA')
        rsum(RA)
        a.label('L_r2_done')
        GB = 44
        yv = [GB, GB + 1, GB + 2, GB + 3]
        self.row_red('v_add_f32', yv, rors=(8, 4))
        self.xgroup('v_add_f32', yv, [16, 17, 18, 19])
        self.stamp(11)
        self.rnd(yv, [16, 17])
        for r in range(4): a(f'v_mul_f32 v{GB+r}, v{GB+r}, v{28+r}')
        self.rnd(yv, [16, 17])
        for r in range(4): a(f'v_add_f32 v{GB+r}, v{GB+r}, v{32+r}')
        a(f"""
        v_cvt_pk_bf16_f32 v12, v{GB}, v{GB+1}
        v_cvt_pk_bf16_f32 v13, v{GB+2}, v{GB+3}
        s_mov_b64 exec, 0xf
        buffer_store_dwordx2 v[12:13], v10, {sr(SRD_A,4)}, s10 offen
        s_mov_b64 exec, 1
        s_cmp_lg_u32 s69, 0
        s_cbranch_scc1 L_r_noepoch
        buffer_store_dword v14, v15, {sr(SRD_WS,4)}, 0 offen sc1
        L_r_noepoch:
        s_mov_b64 exec, -1
        """)
        self.end_wave()

    def build(self):
        self.prologue()
        self.stream()
        self.chain()
        self.a.label('L_exit')
        self.a('s_endpgm')
        self.a.label('L_code_end')
        body = self.a.text()
        return wrap(body, 256, 768, LDS_BYTES, 168)

if __name__ == '__main__':
    import argparse
    ap = argparse.ArgumentParser()
    ap.add_argument('-o', default='k.s'); ap.add_argument('--diag', action='store_true')
    ap.add_argument('--depth', type=int, default=3)
    for n, d in (('sl_stream', 16), ('sl_p1', 4), ('sl_q0', 32), ('sl_m0', 8), ('sl_h2', 16)):
        ap.add_argument('--' + n, type=int, default=d)
    ap.add_argument('--nopf', action='store_true')
    ap.add_argument('--nb1', type=int, default=16); ap.add_argument('--extra', type=int, default=0); ap.add_argument('--dk', type=int, default=3); ap.add_argument('--early_wo', type=int, default=4); ap.add_argument('--early_w2', type=int, default=4); ap.add_argument('--nohint', action='store_true')
    for n, d in (('dt_wo', 2), ('thr_wo', 8), ('dt_ffn', 2), ('thr_ffn', 6)): ap.add_argument('--' + n, type=int, default=d)
    ap.add_argument('--w2_first', action='store_true'); ap.add_argument('--pf1', action='store_true'); ap.add_argument('--pf2', action='store_true'); ap.add_argument('--pf_nont', action='store_true'); ap.add_argument('--sl_ffn', type=int, default=0); ap.add_argument('--early2', action='store_true'); ap.add_argument('--sl_q1', type=int, default=0); ap.add_argument('--cks', default='4,7,10,13'); ap.add_argument('--wo_wait', action='store_true'); ap.add_argument('--wo_first', action='store_true'); ap.add_argument('--tk', type=int, default=8); ap.add_argument('--sl_stag', type=int, default=4); ap.add_argument('--sl_hint', type=int, default=8)
    args = ap.parse_args()
    g = Gen(depth=args.depth, diag=args.diag, sl_stream=args.sl_stream, sl_p1=args.sl_p1, sl_q0=args.sl_q0, sl_m0=args.sl_m0, sl_h2=args.sl_h2, prefetch_code=not args.nopf, nb1=args.nb1, extra=args.extra, sl_hint=args.sl_hint, dk=args.dk, early_wo=args.early_wo, early_w2=args.early_w2, hint=not args.nohint, dt_wo=args.dt_wo, thr_wo=args.thr_wo, dt_ffn=args.dt_ffn, thr_ffn=args.thr_ffn, w2_first=args.w2_first, pf1=args.pf1, pf2=args.pf2, pf_nt=not args.pf_nont, sl_ffn=args.sl_ffn, early2=args.early2, sl_q1=args.sl_q1, cks=tuple(int(x) for x in args.cks.split(',')), wo_wait=args.wo_wait, ffn_first=not args.wo_first, tk=args.tk, sl_stag=args.sl_stag)
    s = g.build()
    open(args.o, 'w').write(s)
    print('hazard pads inserted:', g.a.ninsert, 'lines', s.count('\n'))
```
